```python
import torch

def _softmax(x, axis=-1):
    return torch.softmax(x, dim=axis)
def _gelu(x):
    return torch.nn.functional.gelu(x, approximate="tanh")
def _silu(x):
    return torch.nn.functional.silu(x)
def _sigmoid(x):
    return torch.sigmoid(x)
def _layernorm(x, axis=-1, eps=1e-5):
    m = x.mean(dim=axis, keepdim=True)
    v = x.var(dim=axis, keepdim=True, unbiased=False)
    return (x - m) / torch.sqrt(v + eps)
def _scatter_add(tgt, idx, src, axis=0):
    return tgt.clone().index_add_(axis, idx, src)
def _segment_sum(src, seg, n):
    out = torch.zeros((n,) + src.shape[1:], dtype=src.dtype)
    return out.index_add_(0, seg, src)
def _pad(x, pw):
    flat = tuple(v for pair in reversed(pw) for v in pair)
    return torch.nn.functional.pad(x, flat)

kernel_name = 'standalone__mha_softmax__near_ridge'

def setup_inputs():

    _w = (lambda a: (lambda t: t.to(torch.bfloat16) if t.is_floating_point() else t)(torch.as_tensor(a)))
    B, H, Sq, Sk, D = 16, 32, 304, 1024, 128
    return {
        "q": _w((lambda *s: torch.randn(*s, dtype=torch.bfloat16) * 0.8)(B, H, Sq, D)),
        "k": _w((lambda *s: torch.randn(*s, dtype=torch.bfloat16) * 0.8)(B, H, Sk, D)),
        "v": _w((lambda *s: torch.randn(*s, dtype=torch.bfloat16) * 0.05)(B, H, Sk, D)),
    }

def reference(q, k, v):
    scale = q.shape[-1] ** -0.5
    scores = torch.einsum("bhqd,bhkd->bhqk", q, k) * scale
    p = _softmax(scores, axis=-1)
    return torch.einsum("bhqk,bhkd->bhqd", p, v)
```

```python
import re

REG_RE = re.compile(r'^(-?)(?:abs\()?([vas])(?:(\d+)|\[(\d+):(\d+)\])\)?$')
TRANS = ('v_exp_f32', 'v_log_f32', 'v_rcp_f32', 'v_rsq_f32', 'v_sqrt_f32')


def regs_of(tok):
    tok = tok.strip()
    if tok in ('m0', 'vcc', 'exec', 'scc'):
        return {(tok, 0)}
    if tok.startswith('|') and tok.endswith('|'):
        tok = tok[1:-1]
    m = REG_RE.match(tok)
    if not m:
        return set()
    k = m.group(2)
    if m.group(3) is not None:
        return {(k, int(m.group(3)))}
    return {(k, i) for i in range(int(m.group(4)), int(m.group(5)) + 1)}


class Ins:
    def __init__(self, text):
        self.text = text
        t = text.split(';')[0].strip()
        self.label = t.endswith(':')
        self.directive = t.startswith('.') and not self.label
        self.rd = set()
        self.wr = set()
        self.kind = 'other'
        self.mn = ''
        self.srcc = set()
        self.srcab = set()
        self.states = 1
        if self.label or self.directive or not t:
            self.kind = 'none'
            self.states = 0
            return
        parts = t.split(None, 1)
        mn = parts[0]
        self.mn = mn
        rest = parts[1] if len(parts) > 1 else ''
        rest = re.split(r'\s+op_sel', rest)[0]
        ops = [o.strip() for o in rest.split(',')] if rest else []
        if ops:
            ops[-1] = ops[-1].split()[0] if ops[-1].split() else ops[-1]
        R = regs_of
        if mn.startswith('v_mfma'):
            self.kind = 'mfma'
            self.wr = R(ops[0])
            self.srcab = R(ops[1]) | R(ops[2])
            self.srcc = R(ops[3])
            self.rd = self.srcab | self.srcc
            self.passes = 8 if '32x32' in mn else 4
        elif mn.startswith('ds_read'):
            self.kind = 'dsr'
            self.wr = R(ops[0])
            self.rd = R(ops[1])
        elif mn.startswith('ds_write'):
            self.kind = 'dsw'
            for o in ops:
                self.rd |= R(o)
        elif mn.startswith('buffer_load') or mn.startswith('global_load'):
            if ' lds' in rest:
                self.kind = 'dma'
                for o in ops:
                    self.rd |= R(o)
                self.rd.add(('m0', 0))
            else:
                self.kind = 'vload'
                self.wr = R(ops[0])
                for o in ops[1:]:
                    self.rd |= R(o)
        elif mn.startswith('buffer_store') or mn.startswith('global_store'):
            self.kind = 'vstore'
            for o in ops:
                self.rd |= R(o)
            self.data = R(ops[0]) if mn.startswith('buffer') else R(ops[1])
        elif mn.startswith('v_'):
            self.kind = 'valu'
            self.wr = R(ops[0])
            for o in ops[1:]:
                self.rd |= R(o)
            if mn.startswith('v_permlane'):
                self.wr |= R(ops[1])
                self.rd |= R(ops[0])
            if mn.startswith('v_fmac') or mn.startswith('v_dot2c'):
                self.rd |= R(ops[0])
            if mn.startswith('v_cndmask') and len(ops) == 3:
                self.rd.add(('vcc', 0))
            self.trans = any(mn.startswith(x) for x in TRANS)
        elif mn == 's_nop':
            self.kind = 'nop'
            self.states = int(ops[0], 0) + 1
        elif mn.startswith('s_'):
            self.kind = 'salu'
            if mn.startswith(('s_cmp', 's_cbranch', 's_branch', 's_waitcnt', 's_barrier', 's_endpgm', 's_setprio', 's_sleep')):
                for o in ops:
                    self.rd |= R(o)
            else:
                if ops:
                    self.wr = R(ops[0])
                for o in ops[1:]:
                    self.rd |= R(o)


def need_states(p, c):
    n = 0
    vec = lambda s: {r for r in s if r[0] in 'va'}
    if p.kind == 'mfma':
        big = 12 if p.passes == 8 else 8
        if c.kind == 'valu' and (p.wr & (c.rd | c.wr)):
            n = max(n, big)
        if c.kind in ('dsw', 'vstore', 'dma', 'dsr', 'vload') and (p.wr & (c.rd | c.wr)):
            n = max(n, big)
        if c.kind == 'mfma':
            if p.wr & c.srcab:
                n = max(n, big)
            if p.wr & c.srcc and not (p.wr == c.srcc and p.passes == c.passes):
                n = max(n, big - 2)
            if (p.wr & c.wr) and not (p.wr == c.wr):
                n = max(n, big)
        if c.kind == 'valu' and (p.srcc & c.wr):
            n = max(n, 7 if p.passes == 8 else 3)
    if p.kind == 'valu':
        if c.kind == 'mfma' and (vec(p.wr) & c.rd):
            n = max(n, 2)
        if c.kind == 'valu':
            if p.trans and (p.wr & c.rd) and not c.trans:
                n = max(n, 1)
            if c.mn.startswith('v_permlane') and (p.wr & c.rd):
                n = max(n, 2)
            if c.mn.startswith(('v_readfirstlane', 'v_readlane')) and (vec(p.wr) & c.rd):
                n = max(n, 1)
            sw = {r for r in p.wr if r[0] in ('s', 'vcc')}
            if sw & c.rd:
                n = max(n, 2)
        sw = {r for r in p.wr if r[0] == 's'}
        if c.kind in ('dma', 'vload', 'vstore') and (sw & c.rd):
            n = max(n, 5)
        if c.kind == 'salu' and (sw & c.rd):
            n = max(n, 1)
    if p.kind == 'salu' and ('m0', 0) in p.wr and c.kind == 'dma':
        n = max(n, 1)
    if p.kind == 'vstore' and len(p.data) > 2 and c.kind in ('valu', 'dsr', 'vload', 'mfma') and (p.data & c.wr):
        n = max(n, 2)
    return n


def check_hazards(seq, what=''):
    bad = []
    seq = [i for i in seq if i.kind != 'none']
    for ci, c in enumerate(seq):
        dist = 0
        for pi in range(ci - 1, max(-1, ci - 24), -1):
            p = seq[pi]
            n = need_states(p, c)
            if n > dist:
                bad.append((what, p.text, c.text, n, dist))
            dist += p.states
            if dist >= 20:
                break
    return bad


class Asm:
    def __init__(self):
        self.ins = []
        self.pend = []
        self.nmfma = 0
        self.auto_nop = True
        self.lag = 3

    def raw(self, text):
        i = Ins(text)
        self.ins.append(i)
        return i

    def label(self, name):
        self.raw(name + ':')

    def e(self, text):
        i = Ins(text)
        if i.kind == 'none':
            self.ins.append(i)
            return i
        if i.mn == 's_waitcnt':
            m = re.search(r'lgkmcnt\((\d+)\)', text)
            if m:
                n = int(m.group(1))
                self.pend = self.pend[len(self.pend) - n:] if n < len(self.pend) and n > 0 else ([] if n == 0 else self.pend)
        touched = i.rd | i.wr
        need = -1
        for p, (regs, _) in enumerate(self.pend):
            if regs & touched:
                need = p
        if need >= 0:
            while need + 1 < len(self.pend) and self.nmfma - self.pend[need + 1][1] >= self.lag:
                need += 1
            n = len(self.pend) - 1 - need
            n = min(n, 15)
            self.ins.append(Ins('s_waitcnt lgkmcnt(%d)' % n))
            self.pend = self.pend[len(self.pend) - n:] if n > 0 else []
        if self.auto_nop:
            dist = 0
            short = 0
            for p in reversed(self.ins[-40:]):
                if p.kind == 'none':
                    continue
                n = need_states(p, i)
                short = max(short, n - dist)
                dist += p.states
                if dist >= 20:
                    break
            while short > 0:
                k = min(short, 16)
                self.ins.append(Ins('s_nop %d' % (k - 1)))
                short -= k
        self.ins.append(i)
        if i.kind in ('dsr', 'dsw'):
            self.pend.append((set(i.wr), self.nmfma))
        if i.kind == 'mfma':
            self.nmfma += 1
        return i

    def mark(self):
        return len(self.ins)

    def text(self):
        out = []
        for i in self.ins:
            if i.label or i.directive:
                out.append(i.text)
            else:
                out.append('    ' + i.text)
        return '\n'.join(out) + '\n'
```

```python
import sys, struct, math
from asmlib import Asm, Ins, check_hazards

NAME = 'standalone__mha_softmax__near_ridge'
PIECE = 1088
BLK = 8 * PIECE
PART = 16 * PIECE
STEP = 2 * PART
RING = 4 * STEP
SCR = RING
LDS_BYTES = 163840
QH = 304 * 256
KH = 1024 * 256

V_KPAT, V_VPAT, V_DMA = 1, 2, 3
V_KA = (4, 5)
V_VA = (6, 7)
V_L = (8, 9, 10)
V_OOFF, V_L16 = 11, 12
O_A, O_B = 16, 80
NM = (144, 160, 176)
SB = (192, 208, 224)
T0 = 240
A_Q = (0, 32, 64)
A_K = 96
A_V = 128
A_OC = 160
S_SRDA, S_SRDB, S_SRDO = 12, 16, 20
S_OFFA, S_OFFB, S_DMAB, S_T, S_HEAD, S_INC = 24, 25, 26, 27, 28, 29
S_D1, S_D2, S_RS, S_W, S_C, S_W4352, S_T0, S_T1, S_NEXT, S_PAR, S_HS = 30, 31, 32, 33, 34, 36, 37, 38, 39, 40, 41
S_XM = 42
S_T2, S_T3 = 44, 45
S_NRS = 46


def f32bits(x):
    return struct.unpack('<I', struct.pack('<f', x))[0]


def vr(b, n=1):
    return 'v%d' % b if n == 1 else 'v[%d:%d]' % (b, b + n - 1)


def ar(b, n=1):
    return 'a%d' % b if n == 1 else 'a[%d:%d]' % (b, b + n - 1)


def sr(b, n=1):
    return 's%d' % b if n == 1 else 's[%d:%d]' % (b, b + n - 1)


MF = 'v_mfma_f32_32x32x16_bf16'


def qk(tile, sbuf, czero=False):
    out = []
    for j in range(8):
        if j == 0:
            c = '0' if czero else vr(NM[tile], 16)
        else:
            c = vr(SB[sbuf], 16)
        out.append('%s %s, %s, %s, %s' % (MF, vr(SB[sbuf], 16), ar(A_K + 4 * j, 4), ar(A_Q[tile] + 4 * j, 4), c))
    return out


def oreg(tile, db):
    if tile == 0:
        return vr(O_A + 16 * db, 16)
    if tile == 1:
        return vr(O_B + 16 * db, 16)
    return ar(A_OC + 16 * db, 16)


def pv(tile, sbuf, czero=False):
    out = []
    for ks in range(2):
        for db in range(4):
            o = oreg(tile, db)
            c = '0' if (czero and ks == 0) else o
            out.append('%s %s, %s, %s, %s' % (MF, o, ar(A_V + 4 * (ks * 4 + db), 4), vr(SB[sbuf] + 4 * ks, 4), c))
    return out


def kread(j):
    return 'ds_read_b128 %s, %s offset:%d' % (ar(A_K + 4 * j, 4), vr(V_KA[j & 1]), (j >> 1) * 64)


def vread(n):
    idx, t = n >> 1, n & 1
    ks, db = idx >> 2, idx & 3
    return 'ds_read_b64_tr_b16 %s, %s offset:%d' % (ar(A_V + 4 * idx + 2 * t, 2), vr(V_VA[t]), ks * 4 * PIECE + db * 64)


def softmax_ops(tile, sbuf, first=False):
    s = SB[sbuf]
    l = V_L[tile]
    ops = []
    for r in range(17):
        if r < 16:
            ops.append((r, 'v_exp_f32 %s, %s' % (vr(s + r), vr(s + r))))
        if r >= 1:
            p = r - 1
            if first and p == 0:
                ops.append((r, 'v_mov_b32 %s, %s' % (vr(l), vr(s + p))))
            else:
                ops.append((r, 'v_add_f32 %s, %s, %s' % (vr(l), vr(l), vr(s + p))))
            if p & 1:
                k = p >> 1
                ops.append((r, 'v_cvt_pk_bf16_f32 %s, %s, %s' % (vr(s + k), vr(s + 2 * k), vr(s + 2 * k + 1))))
    return ops


def max_ops(tile, sbuf):
    s = SB[sbuf]
    t, u = T0 + 2 * tile, T0 + 2 * tile + 1
    ops = ['v_max3_f32 %s, %s, %s, %s' % (vr(t), vr(s), vr(s + 1), vr(s + 2))]
    for r in range(3, 15, 2):
        ops.append('v_max3_f32 %s, %s, %s, %s' % (vr(t), vr(t), vr(s + r), vr(s + r + 1)))
    ops.append('v_max_f32 %s, %s, %s' % (vr(t), vr(t), vr(s + 15)))
    ops.append('v_mov_b32 %s, %s' % (vr(u), vr(t)))
    ops.append('v_permlane32_swap_b32 %s, %s' % (vr(t), vr(u)))
    ops.append('v_max_f32 %s, %s, %s' % (vr(t), vr(t), vr(u)))
    for r in range(16):
        ops.append('v_sub_f32 %s, %s, %s' % (vr(s + r), vr(s + r), vr(t)))
    nm = ['v_sub_f32 %s, 0, %s' % (vr(NM[tile] + r), vr(t)) for r in range(16)]
    return ops, nm


def dma_ops(opt, part, p, base=S_DMAB):
    fl = opt.get('dmaflags', '')
    srd = S_SRDA if part == 0 else S_SRDB
    off = S_OFFA if part == 0 else S_OFFB
    m0 = 's_add_u32 m0, %s, %d' % (sr(base), part * PART + p * 64)
    ld = 'buffer_load_dwordx4 %s, %s, %s offen offset:%d%s lds' % (vr(V_DMA), sr(srd, 4), sr(off), p * 1024, fl)
    return m0, ld


def cost(text):
    return 2 if text.startswith('v_exp') else 1


def merge(a, mfmas, fillers, budget=6):
    fi = 0
    for mi, (text, need) in enumerate(mfmas):
        while fi < need:
            assert fillers[fi][1] <= mi, (fillers[fi], mi, text)
            a.e(fillers[fi][0])
            fi += 1
        a.e(text)
        b = budget
        while fi < len(fillers) and fillers[fi][1] <= mi + 1 and b > 0:
            b -= cost(fillers[fi][0])
            a.e(fillers[fi][0])
            fi += 1
    while fi < len(fillers):
        a.e(fillers[fi][0])
        fi += 1


def next_slot(a, dst, src):
    a.e('s_add_u32 %s, %s, %d' % (sr(dst), sr(src), STEP))
    a.e('s_cmp_ge_u32 %s, %d' % (sr(dst), RING))
    a.e('s_cselect_b32 %s, 0, %s' % (sr(dst), sr(dst)))


def set_srd(a, srd, ptr, head, stride, tmp):
    a.e('s_min_u32 %s, %s, 511' % (sr(tmp), sr(head)))
    a.e('s_mul_i32 %s, %s, %d' % (sr(tmp), sr(tmp), stride))
    a.e('s_add_u32 %s, %s, %s' % (sr(srd), sr(ptr), sr(tmp)))
    a.e('s_addc_u32 %s, %s, 0' % (sr(srd + 1), sr(ptr + 1)))
    a.e('s_and_b32 %s, %s, 0xffff' % (sr(srd + 1), sr(srd + 1)))
    a.e('s_cmp_lt_u32 %s, 512' % sr(head))
    a.e('s_cselect_b32 %s, %d, 0' % (sr(srd + 2), stride))


def issue_step(a, opt, base=S_DMAB):
    for part in range(2):
        for p in range(4):
            m0, ld = dma_ops(opt, part, p, base)
            a.e(m0)
            a.e(ld)


def gen(opt):
    a = Asm()
    e = a.e
    nodma = opt.get('nodma', False)
    e('s_cmp_ge_u32 s2, 256')
    e('s_cbranch_scc1 L_end')
    e('s_load_dwordx8 s[4:11], s[0:1], 0')
    e('v_lshrrev_b32 v13, 6, v0')
    e('v_and_b32 v0, 63, v0')
    e('v_readfirstlane_b32 %s, v13' % sr(S_W))
    e('v_and_b32 v13, 31, v0')
    e('v_lshrrev_b32 v14, 5, v0')
    e('v_and_b32 v15, 3, v13')
    e('v_lshrrev_b32 v240, 4, v13')
    e('v_lshl_add_u32 v15, v240, 2, v15')
    e('v_bfe_u32 v240, v13, 2, 2')
    e('v_mul_u32_u24 v241, %d, v15' % PIECE)
    e('v_lshl_add_u32 v241, v240, 8, v241')
    e('v_xor_b32 v242, v14, v240')
    e('v_lshl_add_u32 %s, v242, 4, v241' % vr(V_KPAT))
    e('v_lshl_add_u32 v241, v15, 2, v240')
    e('v_lshlrev_b32 v241, 8, v241')
    e('v_lshl_add_u32 %s, v14, 4, v241' % vr(V_OOFF))
    e('v_lshlrev_b32 %s, 4, v0' % vr(V_L16))
    e('v_bfe_u32 v240, v0, 2, 2')
    e('v_mul_u32_u24 v241, %d, v240' % PIECE)
    e('v_lshl_add_u32 v241, v14, 8, v241')
    e('v_bfe_u32 v242, v0, 4, 1')
    e('v_and_b32 v243, 1, v0')
    e('v_lshl_add_u32 v242, v242, 1, v243')
    e('v_xor_b32 v242, v242, v14')
    e('v_lshl_add_u32 v241, v242, 4, v241')
    e('v_bfe_u32 v242, v0, 1, 1')
    e('v_lshl_add_u32 v241, v242, 3, v241')
    e('v_add_u32 %s, %d, v241' % (vr(V_VPAT), PART))
    e('v_lshrrev_b32 v240, 4, v0')
    e('v_and_b32 v241, 15, v0')
    e('v_xor_b32 v241, v241, v240')
    e('v_lshlrev_b32 v241, 4, v241')
    e('v_lshl_add_u32 v241, v240, 8, v241')
    e('s_lshl_b32 %s, %s, 12' % (sr(S_T0), sr(S_W)))
    e('v_add_u32 %s, %s, v241' % (vr(V_DMA), sr(S_T0)))
    e('s_mul_i32 %s, %s, %d' % (sr(S_W4352), sr(S_W), 4 * PIECE))
    e('s_and_b32 %s, %s, 1' % (sr(S_T0), sr(S_W)))
    e('s_mul_i32 %s, %s, %d' % (sr(S_PAR), sr(S_T0), BLK))
    e('s_lshl_b32 %s, %s, 1' % (sr(S_T0), sr(S_PAR)))
    e('s_sub_u32 %s, %d, %s' % (sr(S_D1), BLK, sr(S_T0)))
    c = f32bits(128 ** -0.5 * math.log2(math.e))
    e('s_mov_b32 %s, 0x%08x' % (sr(S_C), c))
    e('s_mov_b32 %s, 0x%08x' % (sr(S_C + 1), c))
    e('s_cmp_lt_u32 %s, 2' % sr(S_W))
    e('s_cselect_b32 %s, -1, 0xffff' % sr(S_XM))
    e('s_mov_b32 %s, %s' % (sr(S_XM + 1), sr(S_XM)))
    for srd in (S_SRDA, S_SRDB, S_SRDO):
        e('s_mov_b32 %s, 0x00020000' % sr(srd + 3))
    e('s_mov_b32 %s, s2' % sr(S_HEAD))
    e('s_mov_b32 %s, 0' % sr(S_HS))
    e('s_waitcnt lgkmcnt(0)')
    set_srd(a, S_SRDA, 4, S_HEAD, QH, S_T0)
    set_srd(a, S_SRDB, 4, S_HEAD, QH, S_T0)
    for st in range(3):
        e('s_mov_b32 %s, %d' % (sr(S_OFFA), st * 32768))
        e('s_mov_b32 %s, %d' % (sr(S_OFFB), st * 32768 + 16384))
        e('s_add_u32 %s, %s, %d' % (sr(S_DMAB), sr(S_W4352), st * STEP))
        issue_step(a, opt)
    set_srd(a, S_SRDA, 6, S_HEAD, KH, S_T0)
    set_srd(a, S_SRDB, 8, S_HEAD, KH, S_T0)
    e('s_mov_b32 %s, 0' % sr(S_OFFA))
    e('s_mov_b32 %s, 0' % sr(S_OFFB))
    e('s_add_u32 %s, %s, %d' % (sr(S_DMAB), sr(S_W4352), 3 * STEP))
    issue_step(a, opt)
    e('s_waitcnt vmcnt(8)')
    a.label('L_head')
    m_head = a.mark()
    e('s_barrier')
    next_slot(a, S_T1, S_HS)
    next_slot(a, S_T2, S_T1)
    next_slot(a, S_RS, S_T2)
    e('s_cmp_lt_u32 %s, 2' % sr(S_W))
    e('s_cselect_b32 %s, %s, %s' % (sr(S_T0), sr(S_HS), sr(S_T1)))
    e('s_cselect_b32 %s, 0, %d' % (sr(S_T3), BLK))
    e('s_add_u32 %s, %s, %s' % (sr(S_T3), sr(S_T3), sr(S_T2)))
    e('s_lshl_b32 %s, %s, 1' % (sr(S_D2), sr(S_PAR)))
    e('s_add_u32 %s, %s, %s' % (sr(S_T0), sr(S_T0), sr(S_D2)))
    e('v_add_u32 v240, %s, %s' % (sr(S_T0), vr(V_KPAT)))
    e('v_xor_b32 v241, 32, v240')
    e('v_add_u32 v242, %s, %s' % (sr(S_T3), vr(V_KPAT)))
    e('v_xor_b32 v243, 32, v242')
    RAW = 144
    for tile in range(3):
        for j in range(8):
            base = (240 if tile < 2 else 242) + (j & 1)
            off = (j >> 1) * 64 + (BLK if tile == 1 else 0)
            e('ds_read_b128 %s, %s offset:%d' % (vr(RAW + 32 * tile + 4 * j, 4), vr(base), off))
    e('s_add_u32 %s, %s, %s' % (sr(S_T0), sr(S_RS), sr(S_PAR)))
    e('v_add_u32 %s, %s, %s' % (vr(V_KA[0]), sr(S_T0), vr(V_KPAT)))
    e('v_xor_b32 %s, 32, %s' % (vr(V_KA[1]), vr(V_KA[0])))
    e('v_add_u32 %s, %s, %s' % (vr(V_VA[0]), sr(S_T0), vr(V_VPAT)))
    e('v_xor_b32 %s, 32, %s' % (vr(V_VA[1]), vr(V_VA[0])))
    e('v_add_u32 %s, 512, %s' % (vr(V_VA[1]), vr(V_VA[1])))
    e('s_add_u32 %s, %s, 256' % (sr(S_NEXT), sr(S_HEAD)))
    e('s_mov_b32 %s, 16384' % sr(S_INC))
    e('s_waitcnt vmcnt(0) lgkmcnt(0)')
    e('s_barrier')
    for j in range(8):
        e(kread(j))
    for n in range(16):
        e(vread(n))
    dm = []
    for st, slot in ((1, S_HS), (2, S_T1), (3, S_T2)):
        dm.append('s_mov_b32 %s, %d' % (sr(S_OFFA), st * 16384))
        dm.append('s_mov_b32 %s, %d' % (sr(S_OFFB), st * 16384))
        dm.append('s_add_u32 %s, %s, %s' % (sr(S_DMAB), sr(S_W4352), sr(slot)))
        for part in range(2):
            for p in range(4):
                dm.extend(dma_ops(opt, part, p))
    di = 0
    for r in range(96):
        x = RAW + r
        t = 244 + 2 * (r % 4)
        e('v_lshlrev_b32 %s, 16, %s' % (vr(t), vr(x)))
        e('v_and_b32 %s, 0xffff0000, %s' % (vr(t + 1), vr(x)))
        e('v_pk_mul_f32 %s, %s, %s' % (vr(t, 2), vr(t, 2), sr(S_C, 2)))
        if di < len(dm):
            e(dm[di]); di += 1
        e('v_cvt_pk_bf16_f32 %s, %s, %s' % (vr(t), vr(t), vr(t + 1)))
        e('v_accvgpr_write_b32 %s, %s' % (ar(r), vr(t)))
    assert di == len(dm)
    e('s_mov_b32 %s, %d' % (sr(S_OFFA), 4 * 16384))
    e('s_mov_b32 %s, %d' % (sr(S_OFFB), 4 * 16384))
    next_slot(a, S_NRS, S_RS)
    e('s_sub_u32 %s, %s, %s' % (sr(S_D2), sr(S_NRS), sr(S_RS)))
    e('s_sub_u32 %s, %s, %s' % (sr(S_D2), sr(S_D2), sr(S_D1)))
    e('s_add_u32 %s, %s, %s' % (sr(S_DMAB), sr(S_RS), sr(S_W4352)))
    e('s_mov_b32 %s, %s' % (sr(S_RS), sr(S_NRS)))
    e('s_mov_b32 %s, 1' % sr(S_T))
    kadv = lambda d: ['v_add_u32 %s, %s, %s' % (vr(x), sr(d), vr(x)) for x in V_KA]
    vadv = lambda d: ['v_add_u32 %s, %s, %s' % (vr(x), sr(d), vr(x)) for x in V_VA]
    for t in kadv(S_D1) + vadv(S_D1):
        e(t)
    F = []
    marks = {}

    def addF(texts, after):
        for t in texts:
            F.append((t, after))

    for u, aft in ((0, 10), (1, 18)):
        mo, nm = max_ops(u, u)
        addF(mo, aft)
        addF([t for _, t in softmax_ops(u, u, first=True)], aft)
        marks['sm%d' % u] = len(F)
        addF(nm, aft)
        marks['nm%d' % u] = len(F)
        if u == 0:
            pass
    for j in range(8):
        F.append((kread(j), 24))
    addF(kadv(S_D2), 24)
    marks['kb1'] = len(F)
    mo, nm = max_ops(2, 2)
    addF(mo, 26)
    addF([t for _, t in softmax_ops(2, 2, first=True)], 26)
    marks['sm2'] = len(F)
    addF(nm, 26)
    sm3 = softmax_ops(0, 1)
    head3 = [t for g, t in sm3 if g <= 13]
    vr1 = [(vread(n), 48 + (n >> 1) + 1) for n in range(16)]
    hi = 0
    for n in range(16):
        F.append(vr1[n])
        if n >= 4:
            for _ in range(3):
                if hi < len(head3):
                    F.append((head3[hi], 50)); hi += 1
    addF(vadv(S_D2), 56)
    while hi < len(head3):
        F.append((head3[hi], 50)); hi += 1
    M = []
    M += [(t, 0) for t in qk(0, 0, True)]
    M += [(t, 0) for t in qk(1, 1, True)]
    M += [(t, 0) for t in qk(2, 2, True)]
    M += [(t, marks['sm0']) for t in pv(0, 0, True)]
    M += [(t, marks['sm1']) for t in pv(1, 1, True)]
    M += [(t, marks['kb1']) for t in qk(0, 1)]
    M += [(t, marks['sm2']) for t in pv(2, 2, True)]
    M += [(t, marks['sm2']) for t in qk(1, 2)]
    merge(a, M, F)
    e('s_waitcnt vmcnt(16) lgkmcnt(0)')
    e('s_barrier')
    if opt.get('align', True):
        a.raw('.p2align 6')
    a.label('L_loop')
    m_loop = a.mark()
    groups = [pv(0, 1), qk(0, 0), pv(1, 2), qk(1, 1), pv(0, 0), qk(2, 0), pv(1, 1), qk(0, 1), pv(2, 0), qk(1, 2)]
    mf = [t for g in groups for t in g]
    gaps = [[] for _ in range(80)]
    units = [(0, 0, 8), (1, 1, 24), (2, 0, 40), (0, 1, 56), (1, 2, 72)]
    for tile, sbuf, q in units:
        for g, t in softmax_ops(tile, sbuf):
            gaps[(q + 10 + g) % 80].append((1 if t.startswith('v_exp') else 3, t))
    kb0_gap = [0, 1, 2, 3, 4, 5, 6, 7]
    for j in range(8):
        gaps[kb0_gap[j]].append((2, kread(j)))
    for i, t in enumerate(kadv(S_D1)):
        gaps[9 + 2 * i].append((4, t))
    for n in range(16):
        gaps[16 + n].append((2, vread(n)))
    for i, t in enumerate(vadv(S_D1)):
        gaps[33 + 2 * i].append((4, t))
    for j in range(8):
        gaps[41 + j].append((2, kread(j)))
    for i, t in enumerate(kadv(S_D2)):
        gaps[51 + 2 * i].append((4, t))
    vb1_gap = [64, 65, 65, 66, 67, 67, 68, 69, 69, 70, 71, 71, 72, 73, 73, 74]
    for n in range(16):
        assert vb1_gap[n] >= 64 + (n >> 1)
        gaps[vb1_gap[n]].append((2, vread(n)))
    for i, t in enumerate(vadv(S_D2)):
        gaps[75 + 2 * i].append((4, t))
    dgaps = opt.get('dgaps', [9, 11, 13, 15, 33, 35, 37, 39])
    k = 0
    for part in range(2):
        for p in range(4):
            m0, ld = dma_ops(opt, part, p)
            if not nodma:
                gaps[dgaps[k] - 1].append((5, m0))
                gaps[dgaps[k]].append((6, ld))
            k += 1
    sal = ['s_add_u32 %s, %s, %d' % (sr(S_NRS), sr(S_RS), STEP),
           's_cmp_ge_u32 %s, %d' % (sr(S_NRS), RING),
           's_cselect_b32 %s, 0, %s' % (sr(S_NRS), sr(S_NRS))]
    for t in sal:
        gaps[49].append((7, t))
    gaps[50].append((0, 's_sub_u32 %s, %s, %s' % (sr(S_D2), sr(S_NRS), sr(S_RS))))
    gaps[50].append((0, 's_sub_u32 %s, %s, %s' % (sr(S_D2), sr(S_D2), sr(S_D1))))
    gaps[55].append((7, 's_add_u32 %s, %s, %s' % (sr(S_DMAB), sr(S_RS), sr(S_W4352))))
    gaps[57].append((7, 's_mov_b32 %s, %s' % (sr(S_RS), sr(S_NRS))))
    gaps[57].append((7, 's_add_u32 %s, %s, %s' % (sr(S_OFFA), sr(S_OFFA), sr(S_INC))))
    gaps[59].append((7, 's_add_u32 %s, %s, %s' % (sr(S_OFFB), sr(S_OFFB), sr(S_INC))))
    gaps[59].append((7, 's_add_u32 %s, %s, 1' % (sr(S_T), sr(S_T))))
    gaps[61].append((7, 's_cmp_eq_u32 %s, 13' % sr(S_T)))
    gaps[61].append((8, 's_cbranch_scc1 L_toq'))
    gaps[61].append((9, 'L_toq_ret:'))
    gaps[78].append((7, 's_cmp_lt_u32 %s, 16' % sr(S_T)))
    a.auto_nop = False
    for k in range(80):
        e(mf[k])
        for _, t in sorted(gaps[k], key=lambda x: x[0]):
            e(t)
    e('s_waitcnt vmcnt(16) lgkmcnt(0)')
    e('s_barrier')
    e('s_cbranch_scc1 L_loop')
    a.auto_nop = True
    m_tail = a.mark()
    F = []
    tail3 = [t for g, t in sm3 if g > 13]
    addF(tail3, 0)
    marks['t3'] = len(F)
    addF([t for _, t in softmax_ops(1, 2)], 2)
    marks['t4'] = len(F)
    p3 = pv(0, 1)
    M = [(t, 0) for t in p3[:4]] + [(t, marks['t3']) for t in p3[4:]] + [(t, marks['t4']) for t in pv(1, 2)]
    merge(a, M, F)
    set_srd(a, S_SRDA, 6, S_NEXT, KH, S_T0)
    set_srd(a, S_SRDB, 8, S_NEXT, KH, S_T0)
    e('s_mov_b32 %s, 0' % sr(S_OFFA))
    e('s_mov_b32 %s, 0' % sr(S_OFFB))
    issue_step(a, opt)
    e('s_mov_b32 %s, %s' % (sr(S_HS), sr(S_RS)))
    set_srd(a, S_SRDO, 10, S_HEAD, QH, S_T0)
    for x in range(3):
        e('v_mov_b32 %s, %s' % (vr(240 + x), vr(V_L[x])))
    for x in range(3):
        e('v_permlane32_swap_b32 %s, %s' % (vr(V_L[x]), vr(240 + x)))
    for x in range(3):
        e('v_add_f32 %s, %s, %s' % (vr(V_L[x]), vr(V_L[x]), vr(240 + x)))
    e('v_rcp_f32 v244, %s' % vr(V_L[0]))
    e('v_rcp_f32 v246, %s' % vr(V_L[1]))
    e('s_and_b32 %s, %s, 1' % (sr(S_T0), sr(S_W)))
    e('s_cmp_lt_u32 %s, 2' % sr(S_W))
    e('s_movk_i32 %s, 256' % sr(S_T1))
    e('s_cselect_b32 %s, 8192, %s' % (sr(S_T1), sr(S_T1)))
    e('s_cselect_b32 %s, 0, 16384' % sr(S_T2))
    e('s_add_u32 %s, %s, %d' % (sr(S_T2), sr(S_T2), SCR))
    e('s_mul_i32 %s, %s, %s' % (sr(S_T3), sr(S_T0), sr(S_T1)))
    e('s_sub_u32 %s, %s, %s' % (sr(S_T1), sr(S_T1), sr(S_T3)))
    e('s_add_u32 %s, %s, %s' % (sr(S_T3), sr(S_T3), sr(S_T2)))
    e('s_add_u32 %s, %s, %s' % (sr(S_T1), sr(S_T1), sr(S_T2)))
    e('v_add_u32 v248, %s, %s' % (sr(S_T3), vr(V_L16)))
    e('v_add_u32 v249, %s, %s' % (sr(S_T1), vr(V_L16)))
    e('v_bfe_u32 v250, %s, 7, 2' % vr(V_L16))
    e('v_mul_u32_u24 v250, %d, v250' % PIECE)
    e('v_bfe_u32 v251, %s, 4, 3' % vr(V_L16))
    e('v_lshl_add_u32 v250, v251, 3, v250')
    e('v_add_u32 v251, %s, v250' % sr(S_W4352))
    e('s_xor_b32 %s, %s, 1' % (sr(S_T2), sr(S_W)))
    e('s_mul_i32 %s, %s, %d' % (sr(S_T2), sr(S_T2), 4 * PIECE))
    e('v_add_u32 v250, %s, v250' % sr(S_T2))
    e('v_mov_b32 v252, %s' % vr(NM[2]))
    e('v_mov_b32 v253, %s' % vr(V_L[2]))
    e('ds_write_b64 v251, v[252:253] offset:1024')
    e('s_mov_b64 exec, %s' % sr(S_XM, 2))
    e('s_cmp_eq_u32 %s, 0' % sr(S_T0))
    e('s_cbranch_scc0 L_odd')
    for par in range(2):
        if par == 1:
            a.label('L_odd')
        send = A_OC + (32 if par == 0 else 0)
        keep = A_OC + (0 if par == 0 else 32)
        for qd in range(8):
            e('ds_write_b128 v248, %s offset:%d' % (ar(send + 4 * qd, 4), qd * 1024))
        for r in range(32):
            e('v_accvgpr_read_b32 %s, %s' % (vr(144 + r), ar(keep + r)))
        if par == 0:
            e('s_branch L_xdone')
    a.label('L_xdone')
    e('s_waitcnt lgkmcnt(0)')
    e('s_barrier')
    for qd in range(8):
        e('ds_read_b128 %s, v249 offset:%d' % (vr(192 + 4 * qd, 4), qd * 1024))
    e('s_mov_b64 exec, -1')
    e('ds_read_b64 v[254:255], v250 offset:1024')
    e('s_lshl_b32 %s, %s, 14' % (sr(S_T1), sr(S_W)))
    e('v_add_u32 v13, %s, %s' % (sr(S_T1), vr(V_OOFF)))
    e('v_add_u32 v14, 8192, v13')
    e('s_lshr_b32 %s, %s, 1' % (sr(S_T1), sr(S_W)))
    e('s_lshl_b32 %s, %s, 13' % (sr(S_T1), sr(S_T1)))
    e('s_lshl_b32 %s, %s, 7' % (sr(S_T2), sr(S_T0)))
    e('s_add_u32 %s, %s, %s' % (sr(S_T1), sr(S_T1), sr(S_T2)))
    e('s_add_u32 %s, %s, 65536' % (sr(S_T1), sr(S_T1)))
    e('v_add_u32 v15, %s, %s' % (sr(S_T1), vr(V_OOFF)))
    sfl = opt.get('stflags', '')
    for base, rr, vo in ((O_A, 244, 13), (O_B, 246, 14)):
        for g in range(8):
            o = base + 8 * g
            for x in range(4):
                e('v_pk_mul_f32 %s, %s, %s op_sel_hi:[1,0]' % (vr(o + 2 * x, 2), vr(o + 2 * x, 2), vr(rr, 2)))
            for x in range(4):
                e('v_cvt_pk_bf16_f32 %s, %s, %s' % (vr(o + x), vr(o + 2 * x), vr(o + 2 * x + 1)))
            e('buffer_store_dwordx4 %s, %s, %s, 0 offen offset:%d%s' % (vr(o, 4), vr(vo), sr(S_SRDO, 4), g * 32, sfl))
    e('v_min_f32 v240, v252, v254')
    e('v_sub_f32 v241, v240, v252')
    e('v_sub_f32 v242, v240, v254')
    e('v_exp_f32 v241, v241')
    e('v_exp_f32 v242, v242')
    e('v_mul_f32 v243, v253, v241')
    e('v_fmac_f32 v243, v255, v242')
    e('v_rcp_f32 v243, v243')
    e('v_mul_f32 v244, v241, v243')
    e('v_mul_f32 v246, v242, v243')
    for g in range(4):
        o, p = 144 + 8 * g, 192 + 8 * g
        for x in range(4):
            e('v_pk_mul_f32 %s, %s, v[244:245] op_sel_hi:[1,0]' % (vr(o + 2 * x, 2), vr(o + 2 * x, 2)))
        for x in range(4):
            e('v_pk_fma_f32 %s, %s, v[246:247], %s op_sel_hi:[1,0,1]' % (vr(o + 2 * x, 2), vr(p + 2 * x, 2), vr(o + 2 * x, 2)))
        for x in range(4):
            e('v_cvt_pk_bf16_f32 %s, %s, %s' % (vr(o + x), vr(o + 2 * x), vr(o + 2 * x + 1)))
        e('buffer_store_dwordx4 %s, v15, %s, 0 offen offset:%d%s' % (vr(o, 4), sr(S_SRDO, 4), g * 32, sfl))
    e('s_mov_b32 %s, %s' % (sr(S_HEAD), sr(S_NEXT)))
    e('s_cmp_lt_u32 %s, 512' % sr(S_HEAD))
    e('s_waitcnt vmcnt(28)')
    e('s_cbranch_scc1 L_head')
    m_end = a.mark()
    a.label('L_end')
    e('s_endpgm')
    a.label('L_toq')
    set_srd(a, S_SRDA, 4, S_NEXT, QH, S_T0)
    set_srd(a, S_SRDB, 4, S_NEXT, QH, S_T0)
    e('s_mov_b32 %s, 0' % sr(S_OFFA))
    e('s_mov_b32 %s, 16384' % sr(S_OFFB))
    e('s_mov_b32 %s, 32768' % sr(S_INC))
    e('s_branch L_toq_ret')

    I = a.ins
    seq = I[m_head:m_tail] + I[m_loop:m_tail] + I[m_tail:m_end] + I[m_head:m_loop]
    bad = check_hazards(seq, 'main')
    for b in bad:
        print('HAZARD', b, file=sys.stderr)
    assert not bad
    nloop = sum(1 for i in I[m_loop:m_tail] if i.kind != 'none')
    print('loop instrs: %d' % nloop, file=sys.stderr)

    hdr = open('cdna_kernels/%s.s.ref' % NAME).read().split('\n')
    top = [l for l in hdr[:9]]
    out = '\n'.join(top) + '\n'
    out += '; @launch grid=(256,1,1) block=(256,1,1) lds=%d\n' % LDS_BYTES
    out += '.amdgcn_target "amdgcn-amd-amdhsa--gfx950"\n.text\n.globl %s_kernel\n.p2align 8\n.type %s_kernel,@function\n%s_kernel:\n' % (NAME, NAME, NAME)
    out += a.text()
    out += '''.section .rodata,"a"
.p2align 6
.amdhsa_kernel %s_kernel
  .amdhsa_next_free_vgpr 512
  .amdhsa_next_free_sgpr 102
  .amdhsa_accum_offset 256
  .amdhsa_group_segment_fixed_size 0
  .amdhsa_kernarg_size 48
  .amdhsa_user_sgpr_count 2
  .amdhsa_user_sgpr_kernarg_segment_ptr 1
  .amdhsa_system_sgpr_workgroup_id_x 1
.end_amdhsa_kernel
''' % NAME
    return out


if __name__ == '__main__':
    opt = {}
    outp = sys.argv[1]
    for kv in sys.argv[2:]:
        k, v = kv.split('=', 1)
        try:
            v = eval(v)
        except Exception:
            pass
        opt[k] = v
    open(outp, 'w').write(gen(opt))
```

```python
import re

REG_RE = re.compile(r'^(-?)(?:abs\()?([vas])(?:(\d+)|\[(\d+):(\d+)\])\)?$')
TRANS = ('v_exp_f32', 'v_log_f32', 'v_rcp_f32', 'v_rsq_f32', 'v_sqrt_f32')


def regs_of(tok):
    tok = tok.strip()
    if tok in ('m0', 'vcc', 'exec', 'scc'):
        return {(tok, 0)}
    if tok.startswith('|') and tok.endswith('|'):
        tok = tok[1:-1]
    m = REG_RE.match(tok)
    if not m:
        return set()
    k = m.group(2)
    if m.group(3) is not None:
        return {(k, int(m.group(3)))}
    return {(k, i) for i in range(int(m.group(4)), int(m.group(5)) + 1)}


class Ins:
    def __init__(self, text):
        self.text = text
        t = text.split(';')[0].strip()
        self.label = t.endswith(':')
        self.directive = t.startswith('.') and not self.label
        self.rd = set()
        self.wr = set()
        self.kind = 'other'
        self.mn = ''
        self.srcc = set()
        self.srcab = set()
        self.states = 1
        if self.label or self.directive or not t:
            self.kind = 'none'
            self.states = 0
            return
        parts = t.split(None, 1)
        mn = parts[0]
        self.mn = mn
        rest = parts[1] if len(parts) > 1 else ''
        rest = re.split(r'\s+op_sel', rest)[0]
        ops = [o.strip() for o in rest.split(',')] if rest else []
        if ops:
            ops[-1] = ops[-1].split()[0] if ops[-1].split() else ops[-1]
        R = regs_of
        if mn.startswith('v_mfma'):
            self.kind = 'mfma'
            self.wr = R(ops[0])
            self.srcab = R(ops[1]) | R(ops[2])
            self.srcc = R(ops[3])
            self.rd = self.srcab | self.srcc
            self.passes = 8 if '32x32' in mn else 4
        elif mn.startswith('ds_read'):
            self.kind = 'dsr'
            self.wr = R(ops[0])
            self.rd = R(ops[1])
        elif mn.startswith('ds_write'):
            self.kind = 'dsw'
            for o in ops:
                self.rd |= R(o)
        elif mn.startswith('buffer_load') or mn.startswith('global_load'):
            if ' lds' in rest:
                self.kind = 'dma'
                for o in ops:
                    self.rd |= R(o)
                self.rd.add(('m0', 0))
            else:
                self.kind = 'vload'
                self.wr = R(ops[0])
                for o in ops[1:]:
                    self.rd |= R(o)
        elif mn.startswith('buffer_store') or mn.startswith('global_store'):
            self.kind = 'vstore'
            for o in ops:
                self.rd |= R(o)
            self.data = R(ops[0]) if mn.startswith('buffer') else R(ops[1])
        elif mn.startswith('v_'):
            self.kind = 'valu'
            self.wr = R(ops[0])
            for o in ops[1:]:
                self.rd |= R(o)
            if mn.startswith('v_permlane'):
                self.wr |= R(ops[1])
                self.rd |= R(ops[0])
            if mn.startswith('v_fmac') or mn.startswith('v_dot2c'):
                self.rd |= R(ops[0])
            if mn.startswith('v_cndmask') and len(ops) == 3:
                self.rd.add(('vcc', 0))
            self.trans = any(mn.startswith(x) for x in TRANS)
        elif mn == 's_nop':
            self.kind = 'nop'
            self.states = int(ops[0], 0) + 1
        elif mn.startswith('s_'):
            self.kind = 'salu'
            if mn.startswith(('s_cmp', 's_cbranch', 's_branch', 's_waitcnt', 's_barrier', 's_endpgm', 's_setprio', 's_sleep')):
                for o in ops:
                    self.rd |= R(o)
            else:
                if ops:
                    self.wr = R(ops[0])
                for o in ops[1:]:
                    self.rd |= R(o)


def need_states(p, c):
    n = 0
    vec = lambda s: {r for r in s if r[0] in 'va'}
    if p.kind == 'mfma':
        big = 12 if p.passes == 8 else 8
        if c.kind == 'valu' and (p.wr & (c.rd | c.wr)):
            n = max(n, big)
        if c.kind in ('dsw', 'vstore', 'dma', 'dsr', 'vload') and (p.wr & (c.rd | c.wr)):
            n = max(n, big)
        if c.kind == 'mfma':
            if p.wr & c.srcab:
                n = max(n, big)
            if p.wr & c.srcc and not (p.wr == c.srcc and p.passes == c.passes):
                n = max(n, big - 2)
            if (p.wr & c.wr) and not (p.wr == c.wr):
                n = max(n, big)
        if c.kind == 'valu' and (p.srcc & c.wr):
            n = max(n, 7 if p.passes == 8 else 3)
    if p.kind == 'valu':
        if c.kind == 'mfma' and (vec(p.wr) & c.rd):
            n = max(n, 2)
        if c.kind == 'valu':
            if p.trans and (p.wr & c.rd) and not c.trans:
                n = max(n, 1)
            if c.mn.startswith('v_permlane') and (p.wr & c.rd):
                n = max(n, 2)
            if c.mn.startswith(('v_readfirstlane', 'v_readlane')) and (vec(p.wr) & c.rd):
                n = max(n, 1)
            sw = {r for r in p.wr if r[0] in ('s', 'vcc')}
            if sw & c.rd:
                n = max(n, 2)
        sw = {r for r in p.wr if r[0] == 's'}
        if c.kind in ('dma', 'vload', 'vstore') and (sw & c.rd):
            n = max(n, 5)
        if c.kind == 'salu' and (sw & c.rd):
            n = max(n, 1)
    if p.kind == 'salu' and ('m0', 0) in p.wr and c.kind == 'dma':
        n = max(n, 1)
    if p.kind == 'vstore' and len(p.data) > 2 and c.kind in ('valu', 'dsr', 'vload', 'mfma') and (p.data & c.wr):
        n = max(n, 2)
    return n


def check_hazards(seq, what=''):
    bad = []
    seq = [i for i in seq if i.kind != 'none']
    for ci, c in enumerate(seq):
        dist = 0
        for pi in range(ci - 1, max(-1, ci - 24), -1):
            p = seq[pi]
            n = need_states(p, c)
            if n > dist:
                bad.append((what, p.text, c.text, n, dist))
            dist += p.states
            if dist >= 20:
                break
    return bad


class Asm:
    def __init__(self):
        self.ins = []
        self.pend = []
        self.nmfma = 0
        self.auto_nop = True
        self.lag = 3
        self.vmq = []

    def raw(self, text):
        i = Ins(text)
        self.ins.append(i)
        return i

    def label(self, name):
        self.raw(name + ':')

    def e(self, text):
        if text.startswith('WAITVM'):
            tag = text.split()[1]
            idx = [k for k, t in enumerate(self.vmq) if t == tag]
            assert idx, (tag, self.vmq)
            n = len(self.vmq) - 1 - idx[-1]
            assert n <= 63
            return self.e('s_waitcnt vmcnt(%d) ; wait %s' % (n, tag))
        i = Ins(text)
        if i.kind in ('dma', 'vload', 'vstore'):
            m = re.search(r'@(\w+)', text)
            self.vmq.append(m.group(1) if m else '-')
        if i.kind == 'none':
            self.ins.append(i)
            return i
        if i.mn == 's_waitcnt':
            m = re.search(r'lgkmcnt\((\d+)\)', text)
            if m:
                n = int(m.group(1))
                self.pend = self.pend[len(self.pend) - n:] if n < len(self.pend) and n > 0 else ([] if n == 0 else self.pend)
        touched = i.rd | i.wr
        need = -1
        for p, (regs, _) in enumerate(self.pend):
            if regs & touched:
                need = p
        if need >= 0:
            while need + 1 < len(self.pend) and self.nmfma - self.pend[need + 1][1] >= self.lag:
                need += 1
            n = len(self.pend) - 1 - need
            n = min(n, 15)
            self.ins.append(Ins('s_waitcnt lgkmcnt(%d)' % n))
            self.pend = self.pend[len(self.pend) - n:] if n > 0 else []
        if self.auto_nop:
            dist = 0
            short = 0
            for p in reversed(self.ins[-40:]):
                if p.kind == 'none':
                    continue
                n = need_states(p, i)
                short = max(short, n - dist)
                dist += p.states
                if dist >= 20:
                    break
            while short > 0:
                k = min(short, 16)
                self.ins.append(Ins('s_nop %d' % (k - 1)))
                short -= k
        self.ins.append(i)
        if i.kind in ('dsr', 'dsw'):
            self.pend.append((set(i.wr), self.nmfma))
        if i.kind == 'mfma':
            self.nmfma += 1
        return i

    def mark(self):
        return len(self.ins)

    def text(self):
        out = []
        for i in self.ins:
            if i.label or i.directive:
                out.append(i.text)
            else:
                out.append('    ' + i.text)
        return '\n'.join(out) + '\n'
```

```python
import sys, struct, math
from asmlib import Asm, Ins, check_hazards

NAME = 'standalone__mha_softmax__near_ridge'
LDS_BYTES = 163840
QH = 304 * 256
KH = 1024 * 256
VRING = 65536
SLOT = 16384

V_KA = [1, 2, 3, 4]
V_VA = [5, 6, 7, 8, 9, 10, 11, 12]
V_DK = [13, 14, 15, 16]
V_DV = [17, 18]
V_L = [19, 20, 21, 22, 23]
V_QOFF, V_OOFF = 24, 25
V_QP, V_OP = 26, 27
V_R, V_U = 28, 30
OB = 32
NM = 192
SB = (212, 228)
T0 = 244
A_Q, A_K, A_V, A_SP = 0, 80, 144, 208
S_SRDK, S_SRDV, S_SRDQ, S_SRDO = 12, 16, 20, 24
S_OFF, S_WB, S_CNT, S_HI, S_W = 28, 29, 30, 31, 32
S_C, S_THR, S_MASK = 34, 36, 37
S_FLAG = 38
S_BAD = 40
S_T0, S_T1, S_T2 = 41, 42, 43
S_HEAD = 44


def f32bits(x):
    return struct.unpack('<I', struct.pack('<f', x))[0]


def vr(b, n=1):
    return 'v%d' % b if n == 1 else 'v[%d:%d]' % (b, b + n - 1)


def ar(b, n=1):
    return 'a%d' % b if n == 1 else 'a[%d:%d]' % (b, b + n - 1)


def sr(b, n=1):
    return 's%d' % b if n == 1 else 's[%d:%d]' % (b, b + n - 1)


MF = 'v_mfma_f32_16x16x32_bf16'


def qk(j, sb):
    out = []
    for kt in range(4):
        d = vr(SB[sb] + 4 * kt, 4)
        for js in range(4):
            c = vr(NM + 4 * j, 4) if js == 0 else d
            out.append('%s %s, %s, %s, %s' % (MF, d, ar(A_K + 16 * kt + 4 * js, 4), ar(A_Q + 16 * j + 4 * js, 4), c))
    return out


def pv(j, sb, czero=False):
    out = []
    for db in range(8):
        o = vr(OB + 32 * j + 4 * db, 4)
        for ks in range(2):
            c = '0' if (czero and ks == 0) else o
            out.append('%s %s, %s, %s, %s' % (MF, o, ar(A_V + 32 * ks + 4 * db, 4), vr(SB[sb] + 4 * ks, 4), c))
    return out


def kread(i, slot):
    kt, js = i >> 2, i & 3
    return 'ds_read_b128 %s, %s offset:%d' % (ar(A_K + 4 * i, 4), vr(V_KA[js]), slot * SLOT + kt * 4096)


def vread(i, t, slot):
    db, ks = i >> 1, i & 1
    return 'ds_read_b64_tr_b16 %s, %s offset:%d' % (ar(A_V + 32 * ks + 4 * db + 2 * t, 2), vr(V_VA[db]), slot * SLOT + ks * 8192 + t * 4096)


def softmax_ops(j, sb, first=False):
    s = SB[sb]
    l = V_L[j]
    ops = []
    for r in range(16):
        ops.append((2 * r, 'v_exp_f32 %s, %s' % (vr(s + r), vr(s + r))))
        if first and r == 0:
            ops.append((2 * r + 1, 'v_mov_b32 %s, %s' % (vr(l), vr(s + r))))
        else:
            ops.append((2 * r + 1, 'v_add_f32 %s, %s, %s' % (vr(l), vr(l), vr(s + r))))
        if r & 1:
            k = r >> 1
            ops.append((2 * r + 1, 'v_cvt_pk_bf16_f32 %s, %s, %s' % (vr(s + k), vr(s + 2 * k), vr(s + 2 * k + 1))))
    return ops


def dma_ops(opt, slot, tag):
    fl = opt.get('dmaflags', ' nt')
    o = ['s_add_u32 m0, %s, %d' % (sr(S_WB), slot * SLOT)]
    for p in range(4):
        o.append('buffer_load_dwordx4 %s, %s, %s offen offset:%d%s lds ; @%s' % (vr(V_DK[p]), sr(S_SRDK, 4), sr(S_OFF), p * 1024, fl, tag))
    o.append('s_add_u32 m0, %s, %d' % (sr(S_WB), VRING + slot * SLOT))
    for p in range(4):
        o.append('buffer_load_dwordx4 %s, %s, %s offen offset:%d%s lds ; @%s' % (vr(V_DV[p & 1]), sr(S_SRDV, 4), sr(S_OFF), p * 1024, fl, tag))
    o.append('s_add_u32 %s, %s, %d' % (sr(S_OFF), sr(S_OFF), SLOT))
    return o


def qload(opt, j, dst, tag):
    fl = opt.get('qflags', ' nt')
    o = ['v_add_u32 %s, %d, %s' % (vr(V_QP), j * 4096, vr(V_QOFF))] if j else ['v_mov_b32 %s, %s' % (vr(V_QP), vr(V_QOFF))]
    for js in range(4):
        o.append('buffer_load_dwordx4 %s, %s, %s, 0 offen offset:%d%s ; @%s' % (dst(js), vr(V_QP), sr(S_SRDQ, 4), js * 64, fl, tag))
    return o


def prescale(j, src, from_acc):
    o = []
    for g in range(4):
        T = [T0 + 2 * x for x in range(4)]
        for x in range(4):
            if from_acc:
                o.append('v_accvgpr_read_b32 %s, %s' % (vr(T[x] + 1), ar(src + 4 * g + x)))
        for x in range(4):
            s = vr(T[x] + 1) if from_acc else vr(src + 4 * g + x)
            o.append('v_lshlrev_b32 %s, 16, %s' % (vr(T[x]), s))
        for x in range(4):
            s = vr(T[x] + 1) if from_acc else vr(src + 4 * g + x)
            o.append('v_and_b32 %s, %s, %s' % (vr(T[x] + 1), sr(S_MASK), s))
        for x in range(4):
            o.append('v_pk_mul_f32 %s, %s, %s' % (vr(T[x], 2), vr(T[x], 2), sr(S_C, 2)))
        for x in range(4):
            o.append('v_cvt_pk_bf16_f32 %s, %s, %s' % (vr(T[x]), vr(T[x]), vr(T[x] + 1)))
        for x in range(4):
            o.append('v_accvgpr_write_b32 %s, %s' % (ar(A_Q + 16 * j + 4 * g + x), vr(T[x])))
    return o


def epi_head(j):
    l, u = vr(V_L[j]), vr(V_U)
    o = ['v_mov_b32 %s, %s' % (u, l),
         'v_add_u32 %s, %d, %s' % (vr(V_OP), j * 4096, vr(V_OOFF)) if j else 'v_mov_b32 %s, %s' % (vr(V_OP), vr(V_OOFF)),
         's_nop 0',
         'v_permlane16_swap_b32 %s, %s' % (l, u),
         'v_add_f32 %s, %s, %s' % (l, l, u),
         'v_mov_b32 %s, %s' % (u, l),
         's_nop 1',
         'v_permlane32_swap_b32 %s, %s' % (l, u),
         'v_add_f32 %s, %s, %s' % (l, l, u),
         'v_rcp_f32 %s, %s' % (vr(V_R), l),
         'v_cmp_nge_f32 vcc, %s, %s' % (sr(S_THR), l),
         's_or_b64 %s, %s, vcc' % (sr(S_FLAG, 2), sr(S_FLAG, 2))]
    return o


def epi_group(opt, j, m, pk):
    o = []
    b = OB + 32 * j + 8 * m
    if pk:
        for x in range(4):
            o.append('v_pk_mul_f32 %s, %s, %s op_sel_hi:[1,0]' % (vr(b + 2 * x, 2), vr(b + 2 * x, 2), vr(V_R, 2)))
    else:
        for x in range(8):
            o.append('v_mul_f32 %s, %s, %s' % (vr(b + x), vr(V_R), vr(b + x)))
    for x in (0, 2, 1, 3):
        pass
    for x in range(4):
        o.append('v_cvt_pk_bf16_f32 %s, %s, %s' % (vr(b + x), vr(b + 2 * x), vr(b + 2 * x + 1)))
    o.append('NOPIF')
    o.append('v_permlane16_swap_b32 %s, %s' % (vr(b), vr(b + 2)))
    o.append('v_permlane16_swap_b32 %s, %s' % (vr(b + 1), vr(b + 3)))
    o.append('buffer_store_dwordx4 %s, %s, %s, 0 offen offset:%d%s ; @st' % (vr(b, 4), vr(V_OP), sr(S_SRDO, 4), m * 64, opt.get('stflags', '')))
    return [x for x in o if x != 'NOPIF']


def epilogue(opt, j, pk):
    o = epi_head(j)
    for m in range(4):
        o += epi_group(opt, j, m, pk)
    return o


def is_mem(t):
    return t.startswith(('ds_', 'buffer_', 'global_'))


def cost(t):
    if t.startswith(('v_exp', 'v_rcp')):
        return 8
    if t.endswith(':'):
        return 0
    return 4


def merge(a, mfmas, fillers, budget=8):
    fi = 0
    for mi, (text, need) in enumerate(mfmas):
        while fi < need:
            assert fillers[fi][1] <= mi, (fillers[fi], mi, text)
            a.e(fillers[fi][0])
            fi += 1
        a.e(text)
        b = budget
        valu = False
        while fi < len(fillers) and fillers[fi][1] <= mi + 1 and b > 0:
            t = fillers[fi][0]
            if is_mem(t) and valu:
                break
            if cost(t) > b and b < budget:
                break
            valu = valu or t.startswith('v_')
            b -= cost(t)
            a.e(t)
            fi += 1
    while fi < len(fillers):
        a.e(fillers[fi][0])
        fi += 1


def set_srd(a, srd, ptr, off, size):
    a.e('s_add_u32 %s, %s, %s' % (sr(srd), sr(ptr), sr(off)))
    a.e('s_addc_u32 %s, %s, 0' % (sr(srd + 1), sr(ptr + 1)))
    a.e('s_and_b32 %s, %s, 0xffff' % (sr(srd + 1), sr(srd + 1)))
    a.e('s_mov_b32 %s, %s' % (sr(srd + 2), size))


W0 = 14


def body_tables(opt, slot, first=False):
    sbuf = lambda u: (slot + u) & 1
    groups = [qk(0, sbuf(0)), pv(4, sbuf(-1)), qk(1, sbuf(1)), pv(0, sbuf(0), first), qk(2, sbuf(2)), pv(1, sbuf(1), first),
              qk(3, sbuf(3)), pv(2, sbuf(2), first), qk(4, sbuf(4)), pv(3, sbuf(3), first)]
    mf = [t for g in groups for t in g]
    gaps = [[] for _ in range(160)]
    if first:
        for k in range(16, 32):
            mf[k] = None
    else:
        for g, t in softmax_ops(4, sbuf(-1)):
            k = 128 + W0 + g - 160
            if k >= 0:
                gaps[k].append((5, t))
    for u in range(5):
        for g, t in softmax_ops(u, sbuf(u), first):
            k = 32 * u + W0 + g
            if first and u == 0 and k < 32:
                k = min(7 + g, 15)
            if k < 160:
                gaps[k].append((5, t))
    for i in range(16):
        if not first:
            for t in range(2):
                gaps[17 + 2 * i].append((0, vread(i, t, slot)))
        gaps[129 + 2 * i].append((0, kread(i, (slot + 1) & 3)))
    if not opt.get('nodma'):
        dg = opt.get('dgaps', [3, 7, 11, 51, 55, 63, 67, 71, 75, 79, 83])
        if first:
            dg = [0, 1, 2, 3, 4, 4, 5, 6, 35, 39, 43]
        for k, t in zip(dg, dma_ops(opt, (slot + 3) & 3, 'kv')):
            gaps[k].append((0 if is_mem(t) else 1, t))
    return mf, gaps


def emit_body(a, opt, mf, gaps, barwait, auto=False):
    a.auto_nop = auto
    for k in range(160):
        if mf[k] is not None:
            a.e(mf[k])
        for _, t in sorted(gaps[k], key=lambda x: x[0]):
            if opt.get('nolds') and t.startswith('ds_read'):
                continue
            a.e(t)
        if k == 127:
            a.e(barwait)
            a.e('s_barrier')
    a.auto_nop = True


def spread(gaps, ops, start, per_gap=2, prio=6):
    k, n = start, 0
    for t in ops:
        if t.startswith('s_nop'):
            k += 1; n = 0
            continue
        if is_mem(t):
            k += 1; n = 0
            gaps[k].append((0, t)); n += 1
            continue
        if t.startswith('v_permlane') and n < 0:
            pass
        if n >= per_gap:
            k += 1; n = 0
        gaps[k].append((prio, t)); n += 1
    return k


def gen(opt):
    a = Asm()
    a.lag = 8
    e = a.e
    diag = opt.get('diag', False)

    def stamp(i, real=False):
        if diag:
            e('%s s[%d:%d]' % ('s_memrealtime' if real else 's_memtime', 48 + 2 * i, 49 + 2 * i))
            e('s_waitcnt lgkmcnt(0)')

    def dump_stamps():
        if not diag:
            return
        e('s_lshl_b32 s80, s2, 2')
        e('s_add_u32 s80, s80, %s' % sr(S_W))
        e('s_lshl_b32 s80, s80, 7')
        e('s_lshl_b32 s81, %s, 6' % sr(S_HI))
        e('s_add_u32 s80, s80, s81')
        e('v_mov_b32 v31, s80')
        for q in range(4):
            for x in range(4):
                e('v_mov_b32 v%d, s%d' % (252 + x, 48 + 4 * q + x))
            e('s_mov_b64 exec, 1')
            e('global_store_dwordx4 v31, v[252:255], s[84:85] offset:%d' % (16 * q))
            e('s_mov_b64 exec, -1')
            e('s_nop 1')

    e('s_cmp_ge_u32 s2, 256')
    e('s_cbranch_scc1 L_end')
    e('s_load_dwordx8 s[4:11], s[0:1], 0')
    if diag:
        e('s_load_dwordx2 s[84:85], s[0:1], 40')
        stamp(0)
        stamp(6, True)
    e('v_lshrrev_b32 v244, 6, v0')
    e('v_and_b32 v0, 63, v0')
    e('v_readfirstlane_b32 %s, v244' % sr(S_W))
    e('v_and_b32 v244, 15, v0')
    e('v_lshrrev_b32 v245, 4, v0')
    e('s_mul_i32 %s, %s, %d' % (sr(S_T0), sr(S_W), 80 * 256))
    e('v_lshlrev_b32 v246, 8, v244')
    e('v_add_u32 v246, %s, v246' % sr(S_T0))
    e('v_lshl_add_u32 %s, v245, 4, v246' % vr(V_QOFF))
    e('v_and_b32 v247, 1, v245')
    e('v_lshl_add_u32 v246, v247, 5, v246')
    e('v_lshrrev_b32 v247, 1, v245')
    e('v_lshl_add_u32 %s, v247, 4, v246' % vr(V_OOFF))
    e('s_lshl_b32 %s, %s, 12' % (sr(S_WB), sr(S_W)))
    c = f32bits(128 ** -0.5 * math.log2(math.e))
    e('s_mov_b32 %s, 0x%08x' % (sr(S_C), c))
    e('s_mov_b32 %s, 0x%08x' % (sr(S_C + 1), c))
    e('s_mov_b32 %s, 0x%08x' % (sr(S_THR), f32bits(2.0 ** 24)))
    e('s_mov_b32 %s, 0xffff0000' % sr(S_MASK))
    for srd in (S_SRDK, S_SRDV, S_SRDQ, S_SRDO):
        e('s_mov_b32 %s, 0x00020000' % sr(srd + 3))
    e('s_lshl_b32 %s, s2, 1' % sr(S_HEAD))
    e('s_mov_b32 %s, 0' % sr(S_HI))
    e('s_mov_b32 %s, 0' % sr(S_OFF))
    e('s_mov_b32 %s, 0' % sr(S_BAD))
    e('s_mul_i32 %s, %s, %d' % (sr(S_T1), sr(S_HEAD), QH))
    e('s_lshl_b32 %s, %s, 18' % (sr(S_T2), sr(S_HEAD)))
    e('s_waitcnt lgkmcnt(0)')
    set_srd(a, S_SRDQ, 4, S_T1, QH)
    for j in range(5):
        for t in qload(opt, j, lambda js: vr(OB + 16 * j + 4 * js, 4), 'q%d' % j):
            e(t)
    set_srd(a, S_SRDK, 6, S_T2, 2 * KH)
    set_srd(a, S_SRDV, 8, S_T2, 2 * KH)
    e('v_lshlrev_b32 v246, 8, v245')
    e('v_add_u32 v246, %s, v246' % sr(S_WB))
    for p in range(4):
        e('v_add_u32 v247, %d, v245' % (4 * p))
        e('v_xor_b32 v247, v247, v244')
        e('v_lshl_add_u32 %s, v247, 4, v246' % vr(V_DK[p]))
    for p in range(2):
        e('v_add_u32 v247, %d, v245' % (4 * p))
        e('v_lshlrev_b32 v247, 1, v247')
        e('v_xor_b32 v247, v247, v244')
        e('v_lshl_add_u32 %s, v247, 4, v246' % vr(V_DV[p]))
    for t in dma_ops(opt, 0, 's0'):
        e(t)
    for js in range(4):
        e('v_add_u32 v247, %d, v245' % (4 * js))
        e('v_xor_b32 v247, v247, v244')
        e('v_lshlrev_b32 v247, 4, v247')
        e('v_lshl_add_u32 %s, v244, 8, v247' % vr(V_KA[js]))
    e('v_bfe_u32 v246, v0, 2, 2')
    e('v_lshl_add_u32 v247, v245, 2, v246')
    e('v_and_b32 v248, 7, v247')
    e('v_lshlrev_b32 v247, 8, v247')
    e('v_and_b32 v249, 3, v0')
    e('v_lshl_add_u32 v247, v249, 3, v247')
    e('v_add_u32 v247, %d, v247' % VRING)
    for db in range(8):
        e('v_xor_b32 v249, %d, v248' % db)
        e('v_lshl_add_u32 %s, v249, 5, v247' % vr(V_VA[db]))
    later = {0: dma_ops(opt, 1, 's1'), 2: dma_ops(opt, 2, 's2')}
    for j in range(5):
        e('WAITVM q%d' % j)
        if j == 0:
            stamp(1)
        ps = prescale(j, OB + 16 * j, False)
        ex = list(later.get(j, []))
        for n, t in enumerate(ps):
            e(t)
            if n % 6 == 5 and ex:
                e(ex.pop(0))
        for t in ex:
            e(t)
    e('WAITVM s0')
    e('s_barrier')
    for i in range(16):
        e(kread(i, 0))
    for i in range(16):
        for t in range(2):
            e(vread(i, t, 0))
    a.label('L_head')
    m_head = a.mark()
    e('s_waitcnt lgkmcnt(0)')
    stamp(2)
    e('s_mul_i32 %s, %s, %d' % (sr(S_T1), sr(S_HEAD), QH))
    set_srd(a, S_SRDO, 10, S_T1, QH)
    e('s_add_u32 %s, %s, %d' % (sr(S_T1), sr(S_T1), QH))
    e('s_cmp_eq_u32 %s, 0' % sr(S_HI))
    e('s_cselect_b32 %s, %d, 0' % (sr(S_T2), QH))
    e('s_cselect_b32 %s, %s, 0' % (sr(S_T1), sr(S_T1)))
    set_srd(a, S_SRDQ, 4, S_T1, sr(S_T2))
    e('s_mov_b64 %s, 0' % sr(S_FLAG, 2))
    e('s_mov_b32 %s, 4' % sr(S_CNT))
    M, F = [], []
    for j in range(5):
        d = vr(NM + 4 * j, 4)
        for js in range(4):
            M.append(('%s %s, %s, %s, %s' % (MF, d, ar(A_K + 4 * js, 4), ar(A_Q + 16 * j + 4 * js, 4), '0' if js == 0 else d), 0))
    zero4 = ['v_mov_b32 %s, 0' % vr(OB + 128 + x) for x in range(32)]
    for t in zero4[:12]:
        F.append((t, 0))
    for j in range(5):
        n = NM + 4 * j
        t, u = vr(T0 + 2 * j), vr(T0 + 2 * j + 1)
        ops = ['v_max3_f32 %s, %s, %s, %s' % (t, vr(n), vr(n + 1), vr(n + 2)),
               'v_max_f32 %s, %s, %s' % (t, t, vr(n + 3)),
               'v_mov_b32 %s, %s' % (u, t),
               zero4[12 + 4 * j], zero4[13 + 4 * j],
               'v_permlane16_swap_b32 %s, %s' % (t, u),
               'v_max_f32 %s, %s, %s' % (t, t, u),
               'v_mov_b32 %s, %s' % (u, t),
               zero4[14 + 4 * j], zero4[15 + 4 * j],
               'v_permlane32_swap_b32 %s, %s' % (t, u)]
        ops += ['v_min_f32 %s, -%s, -%s' % (vr(n + x), t, u) for x in range(4)]
        for o in ops:
            F.append((o, min(4 * j + 7, 20)))
    merge(a, M, F)
    e('s_cmp_lg_u32 %s, 3' % sr(S_W))
    e('s_cbranch_scc1 L_nodummy')
    for x in range(4):
        e('v_mov_b32 %s, 0x%08x' % (vr(NM + 16 + x), f32bits(-1e30)))
    a.label('L_nodummy')
    e('s_nop 1')
    stamp(3)
    if opt.get('looprt'):
        stamp(6, True)
    mf, gaps = body_tables(opt, 0, first=True)
    emit_body(a, opt, mf, gaps, 's_waitcnt vmcnt(16)', auto=True)
    e('s_branch L_b1')
    m_first_end = a.mark()
    marks = {}
    def seed_pend(slot):
        a.pend = [(Ins(kread(i, slot)).wr, a.nmfma - (31 - 2 * i)) for i in range(16)]
    a.raw('.p2align 6')
    for slot in range(4):
        a.label('L_b%d' % slot)
        marks[slot] = a.mark()
        seed_pend(slot)
        mf, gaps = body_tables(opt, slot)
        if slot == 2:
            gaps[87].append((1, 's_sub_u32 %s, %s, 1' % (sr(S_CNT), sr(S_CNT))))
            gaps[91].append((1, 's_cmp_eq_u32 %s, 0' % sr(S_CNT)))
        emit_body(a, opt, mf, gaps, 's_waitcnt vmcnt(16)')
        if slot == 2:
            e('s_cbranch_scc1 L_last')
    e('s_branch L_b0')
    marks[4] = a.mark()
    a.label('L_last')
    m_last = a.mark()
    stamp(4)
    if opt.get('looprt'):
        stamp(7, True)
    seed_pend(3)
    a.vmq = ['n1'] * 8 + ['n2'] * 8
    mf, gaps = body_tables(opt, 3)
    k = 0
    for j in (2, 3, 4):
        k = spread(gaps, qload(opt, j, lambda js: ar(A_SP + 16 * (j - 2) + 4 * js, 4), 'q%d' % j), k)
    assert k < 32
    spread(gaps, qload(opt, 0, lambda js: ar(A_Q + 4 * js, 4), 'q0'), 48)
    spread(gaps, qload(opt, 1, lambda js: ar(A_Q + 16 + 4 * js, 4), 'q1'), 56)
    for j in range(3):
        k = spread(gaps, epilogue(opt, j, False), 48 + 32 * j + 4, per_gap=3)
        assert k < 48 + 32 * (j + 1) + 4, k
    emit_body(a, opt, mf, gaps, 'WAITVM n1', auto=True)
    sb4 = (3 + 4) & 1
    M, F = [], []
    for g, t in softmax_ops(4, sb4):
        if 128 + W0 + g >= 160:
            F.append((t, 0))
    n4 = len(F)
    ep3 = epilogue(opt, 3, False)
    vr0 = [(vread(i, t, 0), i + 1) for i in range(16) for t in range(2)]
    ei = 0
    for i in range(16):
        F += vr0[2 * i:2 * i + 2]
        for _ in range(2):
            if ei < len(ep3):
                F.append((ep3[ei], 0)); ei += 1
    F += [(t, 16) for t in ep3[ei:]]
    M = [(t, n4) for t in pv(4, sb4)]
    merge(a, M, F, budget=16)
    for t in epilogue(opt, 4, True):
        e(t)
    e('s_cmp_lg_u64 %s, 0' % sr(S_FLAG, 2))
    e('s_cselect_b32 %s, 1, 0' % sr(S_T0))
    e('s_lshl_b32 %s, %s, %s' % (sr(S_T0), sr(S_T0), sr(S_HI)))
    e('s_or_b32 %s, %s, %s' % (sr(S_BAD), sr(S_BAD), sr(S_T0)))
    stamp(5)
    if not opt.get('looprt'):
        stamp(7, True)
    dump_stamps()
    e('s_cmp_lg_u32 %s, 0' % sr(S_HI))
    e('s_cbranch_scc1 L_fin')
    if diag:
        stamp(0)
        if not opt.get('looprt'):
            stamp(6, True)
    e('s_mov_b32 %s, 1' % sr(S_HI))
    e('s_add_u32 %s, %s, 1' % (sr(S_HEAD), sr(S_HEAD)))
    for j in (2, 3, 4, 0, 1):
        e('WAITVM q%d' % j)
        if j == 2:
            stamp(1)
        src = A_SP + 16 * (j - 2) if j >= 2 else A_Q + 16 * j
        for t in prescale(j, src, True):
            e(t)
    e('s_branch L_head')
    m_end = a.mark()
    a.label('L_fin')
    a.label('L_end')
    e('s_endpgm')

    I = a.ins
    B = lambda s: I[marks[s]:marks[s + 1]]
    seq = I[m_head:m_first_end] + B(1) + B(2) + B(3) + B(0) + B(1) + B(2) + I[m_last:m_end] + I[m_head:m_first_end]
    bad = check_hazards(seq, 'main')
    for b in bad[:8]:
        print('HAZARD', b, file=sys.stderr)
    assert not bad or opt.get('nocheck')
    nloop = sum(1 for i in B(0) if i.kind != 'none')
    print('body instrs: %d, total %d' % (nloop, len(I)), file=sys.stderr)

    hdr = open('cdna_kernels/%s.s.ref' % NAME).read().split('\n')
    out = '\n'.join(hdr[:9]) + '\n'
    out += '; @launch grid=(256,1,1) block=(256,1,1) lds=%d\n' % LDS_BYTES
    out += '.amdgcn_target "amdgcn-amd-amdhsa--gfx950"\n.text\n.globl %s_kernel\n.p2align 8\n.type %s_kernel,@function\n%s_kernel:\n' % (NAME, NAME, NAME)
    out += a.text()
    out += '''.section .rodata,"a"
.p2align 6
.amdhsa_kernel %s_kernel
  .amdhsa_next_free_vgpr 512
  .amdhsa_next_free_sgpr 102
  .amdhsa_accum_offset 256
  .amdhsa_group_segment_fixed_size 0
  .amdhsa_kernarg_size 48
  .amdhsa_user_sgpr_count 2
  .amdhsa_user_sgpr_kernarg_segment_ptr 1
  .amdhsa_system_sgpr_workgroup_id_x 1
.end_amdhsa_kernel
''' % NAME
    return out


if __name__ == '__main__':
    opt = {}
    outp = sys.argv[1]
    for kv in sys.argv[2:]:
        k, v = kv.split('=', 1)
        try:
            v = eval(v)
        except Exception:
            pass
        opt[k] = v
    open(outp, 'w').write(gen(opt))
```

```python
import re

REG_RE = re.compile(r'^(-?)(?:abs\()?([vas])(?:(\d+)|\[(\d+):(\d+)\])\)?$')
TRANS = ('v_exp_f32', 'v_log_f32', 'v_rcp_f32', 'v_rsq_f32', 'v_sqrt_f32')


def regs_of(tok):
    tok = tok.strip()
    if tok in ('m0', 'vcc', 'exec', 'scc'):
        return {(tok, 0)}
    if tok.startswith('|') and tok.endswith('|'):
        tok = tok[1:-1]
    m = REG_RE.match(tok)
    if not m:
        return set()
    k = m.group(2)
    if m.group(3) is not None:
        return {(k, int(m.group(3)))}
    return {(k, i) for i in range(int(m.group(4)), int(m.group(5)) + 1)}


class Ins:
    def __init__(self, text):
        self.text = text
        t = text.split(';')[0].strip()
        self.label = t.endswith(':')
        self.directive = t.startswith('.') and not self.label
        self.rd = set()
        self.wr = set()
        self.kind = 'other'
        self.mn = ''
        self.srcc = set()
        self.srcab = set()
        self.states = 1
        if self.label or self.directive or not t:
            self.kind = 'none'
            self.states = 0
            return
        parts = t.split(None, 1)
        mn = parts[0]
        self.mn = mn
        rest = parts[1] if len(parts) > 1 else ''
        rest = re.split(r'\s+op_sel', rest)[0]
        ops = [o.strip() for o in rest.split(',')] if rest else []
        if ops:
            ops[-1] = ops[-1].split()[0] if ops[-1].split() else ops[-1]
        R = regs_of
        if mn.startswith('v_mfma'):
            self.kind = 'mfma'
            self.wr = R(ops[0])
            self.srcab = R(ops[1]) | R(ops[2])
            self.srcc = R(ops[3])
            self.rd = self.srcab | self.srcc
            self.passes = 8 if '32x32' in mn else 4
        elif mn.startswith('ds_read'):
            self.kind = 'dsr'
            self.wr = R(ops[0])
            self.rd = R(ops[1])
        elif mn.startswith('ds_write'):
            self.kind = 'dsw'
            for o in ops:
                self.rd |= R(o)
        elif mn.startswith('buffer_load') or mn.startswith('global_load'):
            if ' lds' in rest:
                self.kind = 'dma'
                for o in ops:
                    self.rd |= R(o)
                self.rd.add(('m0', 0))
            else:
                self.kind = 'vload'
                self.wr = R(ops[0])
                for o in ops[1:]:
                    self.rd |= R(o)
        elif mn.startswith('buffer_store') or mn.startswith('global_store'):
            self.kind = 'vstore'
            for o in ops:
                self.rd |= R(o)
            self.data = R(ops[0]) if mn.startswith('buffer') else R(ops[1])
        elif mn.startswith('v_'):
            self.kind = 'valu'
            self.wr = R(ops[0])
            for o in ops[1:]:
                self.rd |= R(o)
            if mn.startswith('v_permlane'):
                self.wr |= R(ops[1])
                self.rd |= R(ops[0])
            if mn.startswith('v_fmac') or mn.startswith('v_dot2c'):
                self.rd |= R(ops[0])
            if mn.startswith('v_cndmask') and len(ops) == 3:
                self.rd.add(('vcc', 0))
            self.trans = any(mn.startswith(x) for x in TRANS)
        elif mn == 's_nop':
            self.kind = 'nop'
            self.states = int(ops[0], 0) + 1
        elif mn.startswith('s_'):
            self.kind = 'salu'
            if mn.startswith(('s_cmp', 's_cbranch', 's_branch', 's_waitcnt', 's_barrier', 's_endpgm', 's_setprio', 's_sleep')):
                for o in ops:
                    self.rd |= R(o)
            else:
                if ops:
                    self.wr = R(ops[0])
                for o in ops[1:]:
                    self.rd |= R(o)


def need_states(p, c):
    n = 0
    vec = lambda s: {r for r in s if r[0] in 'va'}
    if p.kind == 'mfma':
        big = 12 if p.passes == 8 else 8
        if c.kind == 'valu' and (p.wr & (c.rd | c.wr)):
            n = max(n, big)
        if c.kind in ('dsw', 'vstore', 'dma', 'dsr', 'vload') and (p.wr & (c.rd | c.wr)):
            n = max(n, big)
        if c.kind == 'mfma':
            if p.wr & c.srcab:
                n = max(n, big)
            if p.wr & c.srcc and not (p.wr == c.srcc and p.passes == c.passes):
                n = max(n, big - 2)
            if (p.wr & c.wr) and not (p.wr == c.wr):
                n = max(n, big)
        if c.kind == 'valu' and (p.srcc & c.wr):
            n = max(n, 7 if p.passes == 8 else 3)
    if p.kind == 'valu':
        if c.kind == 'mfma' and (vec(p.wr) & c.rd):
            n = max(n, 2)
        if c.kind == 'valu':
            if p.trans and (p.wr & c.rd) and not c.trans:
                n = max(n, 1)
            if c.mn.startswith('v_permlane') and (p.wr & c.rd):
                n = max(n, 2)
            if c.mn.startswith(('v_readfirstlane', 'v_readlane')) and (vec(p.wr) & c.rd):
                n = max(n, 1)
            sw = {r for r in p.wr if r[0] in ('s', 'vcc')}
            if sw & c.rd:
                n = max(n, 2)
        sw = {r for r in p.wr if r[0] == 's'}
        if c.kind in ('dma', 'vload', 'vstore') and (sw & c.rd):
            n = max(n, 5)
        if c.kind == 'salu' and (sw & c.rd):
            n = max(n, 1)
    if p.kind == 'salu' and ('m0', 0) in p.wr and c.kind == 'dma':
        n = max(n, 1)
    if p.kind == 'vstore' and len(p.data) > 2 and c.kind in ('valu', 'dsr', 'vload', 'mfma') and (p.data & c.wr):
        n = max(n, 2)
    return n


def check_hazards(seq, what=''):
    bad = []
    seq = [i for i in seq if i.kind != 'none']
    for ci, c in enumerate(seq):
        dist = 0
        for pi in range(ci - 1, max(-1, ci - 24), -1):
            p = seq[pi]
            n = need_states(p, c)
            if n > dist:
                bad.append((what, p.text, c.text, n, dist))
            dist += p.states
            if dist >= 20:
                break
    return bad


class Asm:
    def __init__(self):
        self.ins = []
        self.pend = []
        self.nmfma = 0
        self.auto_nop = True
        self.lag = 3
        self.vmq = []

    def raw(self, text):
        i = Ins(text)
        self.ins.append(i)
        return i

    def label(self, name):
        self.raw(name + ':')

    def e(self, text):
        if text.startswith('WAITVM'):
            tag = text.split()[1]
            idx = [k for k, t in enumerate(self.vmq) if t == tag]
            if not idx and getattr(self, 'lenient', False):
                return None
            assert idx, (tag, self.vmq)
            n = sum(1 for t in self.vmq[idx[-1] + 1:] if t != 'st' or getattr(self, 'count_st', False))
            n = min(n, 60)
            return self.e('s_waitcnt vmcnt(%d) ; wait %s' % (n, tag))
        for pat in getattr(self, 'drop', ()):
            if pat in text:
                return None
        i = Ins(text)
        if i.kind in ('dma', 'vload', 'vstore'):
            m = re.search(r'@(\w+)', text)
            self.vmq.append(m.group(1) if m else '-')
        if i.kind == 'none':
            self.ins.append(i)
            return i
        if i.mn == 's_waitcnt':
            m = re.search(r'lgkmcnt\((\d+)\)', text)
            if m:
                n = int(m.group(1))
                self.pend = self.pend[len(self.pend) - n:] if n < len(self.pend) and n > 0 else ([] if n == 0 else self.pend)
        touched = i.rd | i.wr
        need = -1
        for p, (regs, _) in enumerate(self.pend):
            if regs & touched:
                need = p
        if need >= 0:
            while need + 1 < len(self.pend) and self.nmfma - self.pend[need + 1][1] >= self.lag:
                need += 1
            n = len(self.pend) - 1 - need
            n = min(n, 15)
            self.ins.append(Ins('s_waitcnt lgkmcnt(%d)' % n))
            self.pend = self.pend[len(self.pend) - n:] if n > 0 else []
        if self.auto_nop:
            dist = 0
            short = 0
            for p in reversed(self.ins[-40:]):
                if p.kind == 'none':
                    continue
                n = need_states(p, i)
                short = max(short, n - dist)
                dist += p.states
                if dist >= 20:
                    break
            while short > 0:
                k = min(short, 16)
                self.ins.append(Ins('s_nop %d' % (k - 1)))
                short -= k
        self.ins.append(i)
        if i.kind in ('dsr', 'dsw'):
            self.pend.append((set(i.wr), self.nmfma))
        if i.kind == 'mfma':
            self.nmfma += 1
        return i

    def mark(self):
        return len(self.ins)

    def text(self):
        out = []
        for i in self.ins:
            if i.label or i.directive:
                out.append(i.text)
            else:
                out.append('    ' + i.text)
        return '\n'.join(out) + '\n'
```

```python
import sys, struct, math
from asmlib import Asm, Ins, check_hazards

NAME = 'standalone__mha_softmax__near_ridge'
LDS_BYTES = 163840
QH = 304 * 256
KH = 1024 * 256
VRING = 65536
SLOT = 16384

V_KA = [1, 2, 3, 4]
V_VA = [5, 6, 7, 8, 9, 10, 11, 12]
V_DK = [13, 14, 15, 16]
V_DV = [17, 18]
V_L = [19, 20, 21, 22, 23]
V_QOFF, V_OOFF = 24, 25
V_QP, V_OP = 26, 27
V_R, V_U = 28, 30
OB = 32
NM = 192
SB = (212, 228)
T0 = 244
A_Q, A_K, A_V, A_SP = 0, 80, 144, 208
S_SRDK, S_SRDV, S_SRDQ, S_SRDO = 12, 16, 20, 24
S_OFF, S_WB, S_CNT, S_HI, S_W = 28, 29, 30, 31, 32
S_C, S_THR, S_MASK = 34, 36, 37
S_FLAG = (38, 90)
S_ENDV = 40
S_T0, S_T1, S_T2 = 41, 42, 43
S_HEAD = 44
S_SRDO2 = 92


def f32bits(x):
    return struct.unpack('<I', struct.pack('<f', x))[0]


def vr(b, n=1):
    return 'v%d' % b if n == 1 else 'v[%d:%d]' % (b, b + n - 1)


def ar(b, n=1):
    return 'a%d' % b if n == 1 else 'a[%d:%d]' % (b, b + n - 1)


def sr(b, n=1):
    return 's%d' % b if n == 1 else 's[%d:%d]' % (b, b + n - 1)


MF = 'v_mfma_f32_16x16x32_bf16'
ALAG = 0


def qk(j, sb):
    out = []
    for kt in range(4):
        d = vr(SB[sb] + 4 * kt, 4)
        for js in range(4):
            c = vr(NM + 4 * j, 4) if js == 0 else d
            out.append('%s %s, %s, %s, %s' % (MF, d, ar(A_K + 16 * kt + 4 * js, 4), ar(A_Q + 16 * j + 4 * js, 4), c))
    return out


def pv(j, sb, czero=False):
    out = []
    for db in range(8):
        o = vr(OB + 32 * j + 4 * db, 4)
        for ks in range(2):
            c = '0' if (czero and ks == 0) else o
            out.append('%s %s, %s, %s, %s' % (MF, o, ar(A_V + 32 * ks + 4 * db, 4), vr(SB[sb] + 4 * ks, 4), c))
    return out


def kread(i, slot):
    kt, js = i >> 2, i & 3
    return 'ds_read_b128 %s, %s offset:%d' % (ar(A_K + 4 * i, 4), vr(V_KA[js]), slot * SLOT + kt * 4096)


def vread(i, t, slot):
    db, ks = i >> 1, i & 1
    return 'ds_read_b64_tr_b16 %s, %s offset:%d' % (ar(A_V + 32 * ks + 4 * db + 2 * t, 2), vr(V_VA[db]), slot * SLOT + ks * 8192 + t * 4096)


def softmax_ops(j, sb, first=False):
    s = SB[sb]
    l = V_L[j]
    ops = []
    for r in range(16):
        ops.append((2 * r - ALAG, 'v_exp_f32 %s, %s' % (vr(s + r), vr(s + r))))
        if first and r == 0:
            ops.append((2 * r + 1, 'v_mov_b32 %s, %s' % (vr(l), vr(s + r))))
        else:
            ops.append((2 * r + 1, 'v_add_f32 %s, %s, %s' % (vr(l), vr(l), vr(s + r))))
        if r & 1:
            k = r >> 1
            ops.append((2 * r + 1, 'v_cvt_pk_bf16_f32 %s, %s, %s' % (vr(s + k), vr(s + 2 * k), vr(s + 2 * k + 1))))
    ops.sort(key=lambda x: x[0])
    return ops


def dma_ops(opt, slot, tag):
    fl = opt.get('dmaflags', ' nt')
    o = ['s_add_u32 m0, %s, %d' % (sr(S_WB), slot * SLOT)]
    for p in range(4):
        o.append('buffer_load_dwordx4 %s, %s, %s offen offset:%d%s lds ; @%s' % (vr(V_DK[p]), sr(S_SRDK, 4), sr(S_OFF), p * 1024, fl, tag))
    o.append('s_add_u32 m0, %s, %d' % (sr(S_WB), VRING + slot * SLOT))
    for p in range(4):
        o.append('buffer_load_dwordx4 %s, %s, %s offen offset:%d%s lds ; @%s' % (vr(V_DV[p & 1]), sr(S_SRDV, 4), sr(S_OFF), p * 1024, fl, tag))
    o.append('s_add_u32 %s, %s, %d' % (sr(S_OFF), sr(S_OFF), SLOT))
    return o


def qload(opt, j, dst, tag):
    fl = opt.get('qflags', ' nt')
    o = ['v_add_u32 %s, %d, %s' % (vr(V_QP), j * 4096, vr(V_QOFF))] if j else ['v_mov_b32 %s, %s' % (vr(V_QP), vr(V_QOFF))]
    for js in range(4):
        o.append('buffer_load_dwordx4 %s, %s, %s, 0 offen offset:%d%s ; @%s' % (dst(js), vr(V_QP), sr(S_SRDQ, 4), js * 64, fl, tag))
    return o


def prescale(j, src, from_acc):
    o = []
    for g in range(4):
        T = [T0 + 2 * x for x in range(4)]
        for x in range(4):
            if from_acc:
                o.append('v_accvgpr_read_b32 %s, %s' % (vr(T[x] + 1), ar(src + 4 * g + x)))
        for x in range(4):
            s = vr(T[x] + 1) if from_acc else vr(src + 4 * g + x)
            o.append('v_lshlrev_b32 %s, 16, %s' % (vr(T[x]), s))
        for x in range(4):
            s = vr(T[x] + 1) if from_acc else vr(src + 4 * g + x)
            o.append('v_and_b32 %s, %s, %s' % (vr(T[x] + 1), sr(S_MASK), s))
        for x in range(4):
            o.append('v_pk_mul_f32 %s, %s, %s' % (vr(T[x], 2), vr(T[x], 2), sr(S_C, 2)))
        for x in range(4):
            o.append('v_cvt_pk_bf16_f32 %s, %s, %s' % (vr(T[x]), vr(T[x]), vr(T[x] + 1)))
        for x in range(4):
            o.append('v_accvgpr_write_b32 %s, %s' % (ar(A_Q + 16 * j + 4 * g + x), vr(T[x])))
    return o


STAGE = 131072


def prescale_lds(j):
    o = []
    for js in range(4):
        o.append('ds_read_b128 %s, %s offset:%d' % (vr(OB + 16 * j + 4 * js, 4), vr(OB + 64 + js), j * 4096))
    return o


def epi_head(j, h):
    l, u = vr(V_L[j]), vr(V_U)
    return ['v_mov_b32 %s, %s' % (u, l),
            'v_permlane16_swap_b32 %s, %s' % (l, u),
            'v_add_f32 %s, %s, %s' % (l, l, u),
            'v_mov_b32 %s, %s' % (u, l),
            'v_permlane32_swap_b32 %s, %s' % (l, u),
            'v_add_f32 %s, %s, %s' % (l, l, u),
            'v_rcp_f32 %s, %s' % (vr(V_R), l),
            'v_cmp_nge_f32 %s, %s, %s' % (sr(96, 2), sr(S_THR), l),
            's_or_b64 %s, %s, %s' % (sr(S_FLAG[h], 2), sr(S_FLAG[h], 2), sr(96, 2))]


def epi_pack(j, pk=True):
    o = []
    for mm in range(2):
        for m in (2 * mm, 2 * mm + 1):
            b = OB + 32 * j + 8 * m
            if pk:
                for x in range(4):
                    o.append('v_pk_mul_f32 %s, %s, %s op_sel_hi:[1,0]' % (vr(b + 2 * x, 2), vr(b + 2 * x, 2), vr(V_R, 2)))
            else:
                for x in range(8):
                    o.append('v_mul_f32 %s, %s, %s' % (vr(b + x), vr(V_R), vr(b + x)))
        for m in (2 * mm, 2 * mm + 1):
            b = OB + 32 * j + 8 * m
            for x in range(4):
                o.append('v_cvt_pk_bf16_f32 %s, %s, %s' % (vr(b + x), vr(b + 2 * x), vr(b + 2 * x + 1)))
        for m in (2 * mm, 2 * mm + 1):
            b = OB + 32 * j + 8 * m
            o.append('v_permlane16_swap_b32 %s, %s' % (vr(b), vr(b + 2)))
            o.append('v_permlane16_swap_b32 %s, %s' % (vr(b + 1), vr(b + 3)))
    return o


def epi_park(j):
    return ['v_accvgpr_write_b32 %s, %s' % (ar(A_SP + 16 * (j - 2) + 4 * m + x), vr(OB + 32 * j + 8 * m + x))
            for m in range(4) for x in range(4)]


def epi_store(j, srd, fl, parked=False):
    o = ['v_add_u32 %s, %d, %s' % (vr(V_OP), j * 4096, vr(V_OOFF)) if j else 'v_mov_b32 %s, %s' % (vr(V_OP), vr(V_OOFF))]
    for m in range(4):
        d = ar(A_SP + 16 * (j - 2) + 4 * m, 4) if parked else vr(OB + 32 * j + 8 * m, 4)
        o.append('buffer_store_dwordx4 %s, %s, %s, 0 offen offset:%d%s ; @st' % (d, vr(V_OP), sr(srd, 4), m * 64, fl))
    return o


def is_mem(t):
    return t.startswith(('ds_', 'buffer_', 'global_'))


def cost(t):
    if t.startswith(('v_exp', 'v_rcp')):
        return 8
    if t.endswith(':'):
        return 0
    return 4


def merge(a, mfmas, fillers, budget=8):
    fi = 0
    for mi, (text, need) in enumerate(mfmas):
        while fi < need:
            assert fillers[fi][1] <= mi, (fillers[fi], mi, text)
            a.e(fillers[fi][0])
            fi += 1
        a.e(text)
        b = budget
        valu = False
        while fi < len(fillers) and fillers[fi][1] <= mi + 1 and b > 0:
            t = fillers[fi][0]
            if is_mem(t) and valu:
                break
            if cost(t) > b and b < budget:
                break
            valu = valu or t.startswith('v_')
            b -= cost(t)
            a.e(t)
            fi += 1
    while fi < len(fillers):
        a.e(fillers[fi][0])
        fi += 1


def set_srd(a, srd, ptr, off, size):
    a.e('s_add_u32 %s, %s, %s' % (sr(srd), sr(ptr), sr(off)))
    a.e('s_addc_u32 %s, %s, 0' % (sr(srd + 1), sr(ptr + 1)))
    a.e('s_and_b32 %s, %s, 0xffff' % (sr(srd + 1), sr(srd + 1)))
    a.e('s_mov_b32 %s, %s' % (sr(srd + 2), size))


W0 = 14
DG = [51, 55, 63, 67, 71, 75, 79, 83, 87, 91, 95]


def body_tables(opt, slot, cold=False, fresh=False, dma=True, kpre=True):
    sbuf = lambda u: (slot + u) & 1
    groups = [qk(0, sbuf(0)), pv(4, sbuf(-1)), qk(1, sbuf(1)), pv(0, sbuf(0), fresh), qk(2, sbuf(2)), pv(1, sbuf(1), fresh),
              qk(3, sbuf(3)), pv(2, sbuf(2), fresh), qk(4, sbuf(4)), pv(3, sbuf(3), fresh)]
    mf = [t for g in groups for t in g]
    gaps = [[] for _ in range(160)]
    if cold:
        for k in range(16, 32):
            mf[k] = None
    else:
        for g, t in softmax_ops(4, sbuf(-1)):
            k = 128 + W0 + g - 160
            if k >= 0:
                gaps[k].append((5, t))
    for u in range(5):
        for g, t in softmax_ops(u, sbuf(u), fresh):
            k = 32 * u + W0 + g
            if cold and u == 0 and k < 32:
                k = min(7 + g, 15)
            if k < 160:
                gaps[k].append((5, t))
    for i in range(16):
        if not cold:
            for t in range(2):
                gaps[17 + 2 * i].append((0, vread(i, t, slot)))
        if kpre:
            gaps[129 + 2 * i].append((0, kread(i, (slot + 1) & 3)))
    if dma and not opt.get('nodma'):
        dg = opt.get('dgaps', DG)
        if cold:
            place(gaps, dma_ops(opt, 2, 's2'), [0, 1, 2, 3, 4, 4, 5, 6, 35, 39, 43])
            dg = [79, 83, 87, 91, 95, 99, 103, 107, 111, 115, 119]
        place(gaps, dma_ops(opt, (slot + 3) & 3, 'kv'), dg)
    return mf, gaps


def place(gaps, ops, where):
    assert len(ops) == len(where), (len(ops), len(where))
    for k, t in zip(where, ops):
        gaps[k].append((0 if is_mem(t) else (1 if t.startswith('s_') else 6), t))


def block(gaps, k, ops):
    for t in ops:
        gaps[k].append((7, t))


def emit_body(a, opt, mf, gaps, barwait, auto=False, lo=0, hi=160):
    a.auto_nop = auto
    for k in range(lo, hi):
        if mf[k] is not None:
            a.e(mf[k])
        for _, t in sorted(gaps[k], key=lambda x: x[0]):
            a.e(t)
        if k == 127:
            a.e(barwait)
            if opt.get('trace'):
                a.e('s_memrealtime s[86:87]')
                a.e('s_waitcnt lgkmcnt(0)')
                a.e('s_mov_b32 m0, s88')
                a.e('v_writelane_b32 v29, s86, m0')
                a.e('s_add_u32 s88, s88, 1')
            a.e('s_barrier')
    a.auto_nop = True


def max_phase(a, extra, tag):
    M, F = [], []
    extra = list(extra)
    take = lambda n: [extra.pop(0) for _ in range(min(n, len(extra)))]
    for j in range(5):
        d = vr(NM + 4 * j, 4)
        for js in range(4):
            M.append(('%s %s, %s, %s, %s' % (MF, d, ar(A_K + 4 * js, 4), ar(A_Q + 16 * j + 4 * js, 4), '0' if js == 0 else d), 0))
    for t in take(12):
        F.append((t, 0))
    for j in range(5):
        n = NM + 4 * j
        t, u = vr(T0 + 2 * j), vr(T0 + 2 * j + 1)
        ops = ['v_max3_f32 %s, %s, %s, %s' % (t, vr(n), vr(n + 1), vr(n + 2)),
               'v_max_f32 %s, %s, %s' % (t, t, vr(n + 3)),
               'v_mov_b32 %s, %s' % (u, t)] + take(2) + [
               'v_permlane16_swap_b32 %s, %s' % (t, u),
               'v_max_f32 %s, %s, %s' % (t, t, u),
               'v_mov_b32 %s, %s' % (u, t)] + take(2) + [
               'v_permlane32_swap_b32 %s, %s' % (t, u)]
        ops += ['v_min_f32 %s, -%s, -%s' % (vr(n + x), t, u) for x in range(4)]
        for o in ops:
            F.append((o, min(4 * j + 7, 20)))
    merge(a, M, F)
    for t in extra:
        a.e(t)
    a.e('s_cmp_lg_u32 %s, 3' % sr(S_W))
    a.e('s_cbranch_scc1 L_nd%s' % tag)
    for x in range(4):
        a.e('v_mov_b32 %s, 0x%08x' % (vr(NM + 16 + x), f32bits(-1e30)))
    a.label('L_nd%s' % tag)
    a.e('s_nop 1')


ZERO4 = ['v_mov_b32 %s, 0' % vr(OB + 128 + x) for x in range(32)]
ZERO4P = ['v_mov_b64 %s, 0' % vr(OB + 128 + 2 * x, 2) for x in range(16)]


def slow_path(a, opt):
    e = a.e
    a.pend = []
    a.vmq = []
    e('s_or_b64 %s, %s, %s' % (sr(96, 2), sr(S_FLAG[0], 2), sr(S_FLAG[1], 2)))
    e('s_cbranch_scc0 L_fin')
    e('s_waitcnt vmcnt(0) lgkmcnt(0)')
    e('s_lshl_b32 %s, %s, 2' % (sr(S_T0), sr(S_WB)))
    for x in V_KA + V_VA:
        e('v_add_u32 %s, %s, %s' % (vr(x), sr(S_T0), vr(x)))
    for x in V_DK + V_DV:
        e('v_subrev_u32 %s, %s, %s' % (vr(x), sr(S_WB), vr(x)))
    e('s_mov_b32 %s, %s' % (sr(S_WB), sr(S_T0)))
    e('s_mov_b32 %s, 0' % sr(S_HI))
    a.label('L_sp_head')
    e('s_cmp_eq_u32 %s, 0' % sr(S_HI))
    e('s_cselect_b64 %s, %s, %s' % (sr(96, 2), sr(S_FLAG[0], 2), sr(S_FLAG[1], 2)))
    e('s_cmp_eq_u64 %s, 0' % sr(96, 2))
    e('s_cbranch_scc1 L_sp_next')
    e('s_lshl_b32 %s, s2, 1' % sr(S_T1))
    e('s_add_u32 %s, %s, %s' % (sr(S_T1), sr(S_T1), sr(S_HI)))
    e('s_mul_i32 %s, %s, %d' % (sr(S_T1), sr(S_T1), QH))
    set_srd(a, S_SRDQ, 4, S_T1, QH)
    set_srd(a, S_SRDO, 10, S_T1, QH)
    for j in range(5):
        for t in qload(opt, j, lambda js: vr(OB + 16 * j + 4 * js, 4), 'q'):
            e(t)
    e('s_waitcnt vmcnt(0)')
    for j in range(5):
        for t in prescale(j, OB + 16 * j, False):
            e(t)

    def tile_dma(kv):
        for q in range(4):
            e('s_add_u32 m0, %s, %d' % (sr(S_WB), (VRING if kv else 0) + q * 4096))
            e('s_add_u32 %s, %s, %d' % (sr(S_T1), sr(S_OFF), q * 4096))
            for p in range(4):
                e('buffer_load_dwordx4 %s, %s, %s offen offset:%d lds' % (vr(V_DV[p & 1] if kv else V_DK[p]), sr(S_SRDV if kv else S_SRDK, 4), sr(S_T1), p * 1024))

    for j in range(5):
        e('v_mov_b32 %s, 0xff800000' % vr(V_L[j]))
        for x in range(4):
            e('v_mov_b32 %s, 0' % vr(NM + 4 * j + x))
    e('s_lshl_b32 %s, %s, 18' % (sr(S_OFF), sr(S_HI)))
    e('s_mov_b32 %s, 16' % sr(S_CNT))
    a.label('L_sp1')
    tile_dma(0)
    e('s_waitcnt vmcnt(0)')
    for i in range(16):
        e(kread(i, 0))
    for j in range(5):
        for t in qk(j, 0):
            e(t)
        for x in range(8):
            e('v_max3_f32 %s, %s, %s, %s' % (vr(V_L[j]), vr(V_L[j]), vr(SB[0] + 2 * x), vr(SB[0] + 2 * x + 1)))
    e('s_add_u32 %s, %s, %d' % (sr(S_OFF), sr(S_OFF), SLOT))
    e('s_sub_u32 %s, %s, 1' % (sr(S_CNT), sr(S_CNT)))
    e('s_cmp_lg_u32 %s, 0' % sr(S_CNT))
    e('s_cbranch_scc1 L_sp1')
    for j in range(5):
        t, u = vr(V_L[j]), vr(V_U)
        e('v_mov_b32 %s, %s' % (u, t))
        e('v_permlane16_swap_b32 %s, %s' % (t, u))
        e('v_max_f32 %s, %s, %s' % (t, t, u))
        e('v_mov_b32 %s, %s' % (u, t))
        e('v_permlane32_swap_b32 %s, %s' % (t, u))
        for x in range(4):
            e('v_min_f32 %s, -%s, -%s' % (vr(NM + 4 * j + x), t, u))
        e('v_mov_b32 %s, 0' % t)
    for x in range(80):
        e('v_mov_b64 %s, 0' % vr(OB + 2 * x, 2))
    e('s_lshl_b32 %s, %s, 18' % (sr(S_OFF), sr(S_HI)))
    e('s_mov_b32 %s, 16' % sr(S_CNT))
    a.label('L_sp2')
    tile_dma(0)
    tile_dma(1)
    e('s_waitcnt vmcnt(0)')
    for i in range(16):
        e(kread(i, 0))
    for i in range(16):
        for t in range(2):
            e(vread(i, t, 0))
    for j in range(5):
        for t in qk(j, 0):
            e(t)
        for _, t in softmax_ops(j, 0):
            e(t)
        for t in pv(j, 0):
            e(t)
    e('s_add_u32 %s, %s, %d' % (sr(S_OFF), sr(S_OFF), SLOT))
    e('s_sub_u32 %s, %s, 1' % (sr(S_CNT), sr(S_CNT)))
    e('s_cmp_lg_u32 %s, 0' % sr(S_CNT))
    e('s_cbranch_scc1 L_sp2')
    for j in range(5):
        for t in epi_head(j, 0)[:7] + epi_pack(j) + epi_store(j, S_SRDO, ''):
            e(t)
    e('s_waitcnt vmcnt(0)')
    a.label('L_sp_next')
    e('s_add_u32 %s, %s, 1' % (sr(S_HI), sr(S_HI)))
    e('s_cmp_lt_u32 %s, 2' % sr(S_HI))
    e('s_cbranch_scc1 L_sp_head')
    e('s_branch L_fin')


def gen(opt):
    a = Asm()
    a.lag = opt.get('lag', 8)
    e = a.e
    diag = opt.get('diag', False)
    stA = opt.get('sta', '')
    stP = opt.get('stp', '')
    stB = opt.get('stb', ' sc1')
    park = opt.get('park', True)

    def stamp(i, h, real=False):
        if diag:
            b = (64 if h == 0 else 48) + 2 * i
            e('%s s[%d:%d]' % ('s_memrealtime' if real else 's_memtime', b, b + 1))
            e('s_waitcnt lgkmcnt(0)')

    def dump_stamps():
        if not diag:
            return
        e('s_lshl_b32 s80, s2, 2')
        e('s_add_u32 s80, s80, %s' % sr(S_W))
        e('s_lshl_b32 s80, s80, 7')
        e('v_mov_b32 v31, s80')
        for q in range(8):
            for x in range(4):
                e('v_mov_b32 v%d, s%d' % (252 + x, (64 if q < 4 else 32) + 4 * q + x))
            e('s_mov_b64 exec, 1')
            e('global_store_dwordx4 v31, v[252:255], s[84:85] offset:%d' % (16 * q))
            e('s_mov_b64 exec, -1')
            e('s_nop 1')

    e('s_cmp_ge_u32 s2, 256')
    e('s_cbranch_scc1 L_end')
    e('s_load_dwordx8 s[4:11], s[0:1], 0')
    if diag:
        e('s_load_dwordx2 s[84:85], s[0:1], 40')
        stamp(0, 0)
        stamp(6, 0, True)
    e('v_lshrrev_b32 v244, 6, v0')
    e('v_and_b32 v0, 63, v0')
    e('v_readfirstlane_b32 %s, v244' % sr(S_W))
    cpf = opt.get('cpf', 64)
    if cpf:
        e('s_getpc_b64 s[46:47]')
        a.label('L_pc')
        e('s_lshr_b32 %s, s2, 3' % sr(S_T0))
        e('s_lshl_b32 %s, %s, 2' % (sr(S_T0), sr(S_T0)))
        e('s_add_u32 %s, %s, %s' % (sr(S_T0), sr(S_T0), sr(S_W)))
        e('s_and_b32 %s, %s, %d' % (sr(S_T0), sr(S_T0), cpf - 1))
        e('s_lshl_b32 %s, %s, 10' % (sr(S_T0), sr(S_T0)))
        e('s_min_u32 %s, %s, L_slow-L_pc-512' % (sr(S_T0), sr(S_T0)))
        e('v_lshl_add_u32 v245, v0, 4, %s' % sr(S_T0))
        e('global_load_dwordx4 %s, v245, s[46:47] ; @cpf' % ar(A_SP, 4))
    e('v_and_b32 v244, 15, v0')
    e('v_lshrrev_b32 v245, 4, v0')
    e('s_mul_i32 %s, %s, %d' % (sr(S_T0), sr(S_W), 80 * 256))
    e('v_lshlrev_b32 v246, 8, v244')
    e('v_add_u32 v246, %s, v246' % sr(S_T0))
    e('v_lshl_add_u32 %s, v245, 4, v246' % vr(V_QOFF))
    e('s_lshl_b32 %s, s2, 1' % sr(S_HEAD))
    e('s_mul_i32 %s, %s, %d' % (sr(S_T1), sr(S_HEAD), QH))
    e('s_lshl_b32 %s, %s, 18' % (sr(S_T2), sr(S_HEAD)))
    for srd in (S_SRDK, S_SRDV, S_SRDQ, S_SRDO, S_SRDO2):
        e('s_mov_b32 %s, 0x00020000' % sr(srd + 3))
    e('s_waitcnt lgkmcnt(0)')
    set_srd(a, S_SRDQ, 4, S_T1, QH)
    for j in range(5):
        for t in qload(opt, j, lambda js: vr(OB + 16 * j + 4 * js, 4), 'q%d' % j):
            e(t)
    e('v_and_b32 v247, 1, v245')
    e('v_lshl_add_u32 v246, v247, 5, v246')
    e('v_lshrrev_b32 v247, 1, v245')
    e('v_lshl_add_u32 %s, v247, 4, v246' % vr(V_OOFF))
    e('s_lshl_b32 %s, %s, 12' % (sr(S_WB), sr(S_W)))
    c = f32bits(128 ** -0.5 * math.log2(math.e))
    e('s_mov_b32 %s, 0x%08x' % (sr(S_C), c))
    e('s_mov_b32 %s, 0x%08x' % (sr(S_C + 1), c))
    e('s_mov_b32 %s, 0x%08x' % (sr(S_THR), f32bits(opt.get('thr', 2.0 ** 24))))
    e('s_mov_b32 %s, 0xffff0000' % sr(S_MASK))
    e('s_mov_b32 %s, 0' % sr(S_OFF))
    if opt.get('trace'):
        e('s_mov_b32 s88, 0')
        e('v_mov_b32 v29, 0')
    set_srd(a, S_SRDK, 6, S_T2, 2 * KH)
    set_srd(a, S_SRDV, 8, S_T2, 2 * KH)
    e('v_lshlrev_b32 v246, 8, v245')
    e('v_add_u32 v246, %s, v246' % sr(S_WB))
    for p in range(4):
        e('v_add_u32 v247, %d, v245' % (4 * p))
        e('v_xor_b32 v247, v247, v244')
        e('v_lshl_add_u32 %s, v247, 4, v246' % vr(V_DK[p]))
    for p in range(2):
        e('v_add_u32 v247, %d, v245' % (4 * p))
        e('v_lshlrev_b32 v247, 1, v247')
        e('v_xor_b32 v247, v247, v244')
        e('v_lshl_add_u32 %s, v247, 4, v246' % vr(V_DV[p]))
    for t in dma_ops(opt, 0, 's0'):
        e(t)
    for js in range(4):
        e('v_add_u32 v247, %d, v245' % (4 * js))
        e('v_xor_b32 v247, v247, v244')
        e('v_lshlrev_b32 v247, 4, v247')
        e('v_lshl_add_u32 %s, v244, 8, v247' % vr(V_KA[js]))
    e('v_bfe_u32 v246, v0, 2, 2')
    e('v_lshl_add_u32 v247, v245, 2, v246')
    e('v_and_b32 v248, 7, v247')
    e('v_lshlrev_b32 v247, 8, v247')
    e('v_and_b32 v249, 3, v0')
    e('v_lshl_add_u32 v247, v249, 3, v247')
    e('v_add_u32 v247, %d, v247' % VRING)
    for db in range(8):
        e('v_xor_b32 v249, %d, v248' % db)
        e('v_lshl_add_u32 %s, v249, 5, v247' % vr(V_VA[db]))
    set_srd(a, S_SRDO, 10, S_T1, QH)
    e('s_add_u32 %s, %s, %d' % (sr(S_T1), sr(S_T1), QH))
    set_srd(a, S_SRDO2, 10, S_T1, QH)
    set_srd(a, S_SRDQ, 4, S_T1, QH)
    e('s_mov_b64 %s, 0' % sr(S_FLAG[0], 2))
    e('s_mov_b64 %s, 0' % sr(S_FLAG[1], 2))
    e('s_mov_b32 %s, 4' % sr(S_CNT))
    e('s_mov_b32 %s, 0' % sr(S_ENDV))
    e('s_mov_b64 vcc, 0')
    later = {opt.get('s1at', 3): dma_ops(opt, 1, 's1')}
    for j in range(5):
        e('WAITVM q%d' % j)
        if j == 0:
            stamp(1, 0)
        ps = prescale(j, OB + 16 * j, False)
        ex = list(later.get(j, []))
        for n, t in enumerate(ps):
            e(t)
            if n % 6 == 5 and ex:
                e(ex.pop(0))
        for t in ex:
            e(t)
    e('WAITVM s0')
    e('s_barrier')
    for i in range(16):
        e(kread(i, 0))
    for i in range(16):
        for t in range(2):
            e(vread(i, t, 0))
    m_head = a.mark()
    stamp(2, 0)
    max_phase(a, ZERO4, 'a')
    stamp(3, 0)
    mf, gaps = body_tables(opt, 0, cold=True, fresh=True)
    emit_body(a, opt, mf, gaps, 's_waitcnt vmcnt(16)', auto=True)
    e('s_branch L_b1')
    m_first_end = a.mark()

    marks = {}

    def seed_pend(slot):
        a.pend = [(Ins(kread(i, slot)).wr, a.nmfma - (31 - 2 * i)) for i in range(16)]

    cg = 155 if opt.get('trace') else 103
    FREE0 = [1, 3, 7, 11, 15]
    variants = []
    a.raw('.p2align 6')
    for name, j, h in (('qa3', 2, 0), ('qa2', 3, 0), ('qb3', 2, 1), ('qb2', 3, 1), ('qb1', 4, 1), ('qa1', 4, 0)):
        a.label('L_' + name)
        m0_ = a.mark()
        seed_pend(0)
        mf, gaps = body_tables(opt, 0)
        if h == 0:
            place(gaps, qload(opt, j, lambda js: ar(A_SP + 16 * (j - 2) + 4 * js, 4), 'q'), FREE0)
        elif park:
            place(gaps, epi_store(j, S_SRDO, stP, parked=True), FREE0)
        emit_body(a, opt, mf, gaps, None, lo=0, hi=16)
        if name != 'qa1':
            e('s_branch L_b0g1')
        variants.append((m0_, a.mark()))
    for slot in range(4):
        mf, gaps = body_tables(opt, slot)
        if slot == 1:
            gaps[cg].append((1, 's_cmp_le_u32 %s, 2' % sr(S_CNT)))
        if slot == 2:
            gaps[99].append((1, 's_sub_u32 %s, %s, 1' % (sr(S_CNT), sr(S_CNT))))
            gaps[cg].append((1, 's_cmp_eq_u32 %s, %s' % (sr(S_CNT), sr(S_ENDV))))
        if slot == 3:
            gaps[99].append((1, 's_sub_u32 %s, %s, %s' % (sr(S_T2), sr(S_CNT), sr(S_ENDV))))
            gaps[cg].append((1, 's_cmp_eq_u32 %s, 3' % sr(S_T2)))
        marks[slot] = a.mark()
        if slot != 0:
            a.label('L_b%d' % slot)
            seed_pend(slot)
            emit_body(a, opt, mf, gaps, None, lo=0, hi=16)
        a.label('L_b%dg1' % slot)
        assert not a.pend
        emit_body(a, opt, mf, gaps, 's_waitcnt vmcnt(16)', lo=16)
        if slot == 1:
            e('s_cbranch_scc1 L_qlds')
        if slot == 2:
            e('s_cbranch_scc1 L_exit')
    marks[4] = a.mark()
    e('s_cbranch_vccnz L_backb')
    e('s_cbranch_scc1 L_qa3')
    e('s_cmp_eq_u32 %s, 2' % sr(S_T2))
    e('s_cbranch_scc1 L_qa2')
    e('s_branch L_qa1')
    a.label('L_backb')
    e('s_cbranch_scc1 L_qb3')
    e('s_cmp_eq_u32 %s, 2' % sr(S_T2))
    e('s_cbranch_scc1 L_qb2')
    e('s_branch L_qb1')
    a.label('L_qlds')
    m_qlds = a.mark()
    seed_pend(2)
    mf, gaps = body_tables(opt, 2)
    pre = ['s_sub_u32 %s, 2, %s' % (sr(S_T0), sr(S_CNT)),
           's_lshl_b32 %s, %s, 12' % (sr(S_T0), sr(S_T0)),
           's_lshl_b32 %s, %s, 1' % (sr(S_T1), sr(S_WB)),
           's_add_u32 %s, %s, %s' % (sr(S_T1), sr(S_T1), sr(S_T0)),
           's_add_u32 m0, %s, %d' % (sr(S_T1), STAGE),
           's_lshl_b32 %s, %s, 2' % (sr(S_T1), sr(S_WB)),
           's_add_u32 %s, %s, %s' % (sr(S_T1), sr(S_T1), sr(S_T0))]
    ld = ['buffer_load_dwordx4 %s, %s, %s offen offset:%d%s lds' % (vr(V_DK[p]), sr(S_SRDQ, 4), sr(S_T1), p * 1024, opt.get('qflags', ' nt')) for p in range(4)]
    place(gaps, pre + ld, [0, 0, 0, 1, 1, 2, 2, 3, 7, 11, 15])
    emit_body(a, opt, mf, gaps, None, lo=0, hi=16)
    e('s_branch L_b2g1')
    m_qlds_end = a.mark()
    a.label('L_exit')
    e('s_cbranch_vccnz L_lastb')
    m_last = a.mark()
    stamp(4, 0)
    seed_pend(3)
    a.vmq = ['n1'] * 8 + ['ql'] * 4 + ['n2'] * 8
    mf, gaps = body_tables(opt, 3)
    QA = 252
    qa = ['s_lshl_b32 %s, %s, 1' % (sr(S_T1), sr(S_WB)), 's_add_u32 %s, %s, %d' % (sr(S_T1), sr(S_T1), STAGE)]
    qa += ['v_add_u32 %s, %s, %s' % (vr(QA + js), sr(S_T1), vr(V_KA[js])) for js in range(4)]
    place(gaps, qa + ['WAITVM ql'], [1, 1, 3, 3, 7, 7, 11])
    for j in range(2):
        rd = ['ds_read_b128 %s, %s offset:%d' % (ar(A_Q + 16 * j + 4 * js, 4), vr(QA + js), j * 4096) for js in range(4)]
        place(gaps, rd, [32 * j + 16] * 4)
        block(gaps, 32 * j + 29, prescale(j, A_Q + 16 * j, True))
    for j in (2, 3, 4):
        block(gaps, 32 * j + 17, prescale(j, A_SP + 16 * (j - 2), True))
    for j in range(3):
        k = 48 + 32 * j + 17
        block(gaps, k, epi_head(j, 0) + epi_pack(j) + (epi_park(j) if (park and j >= 2) else []))
        if not (park and j >= 2):
            place(gaps, epi_store(j, S_SRDO, stA), [k + 1, k + 4, k + 10, k + 16, k + 22])
    emit_body(a, opt, mf, gaps, 'WAITVM n1', auto=True)
    stamp(5, 0)
    stamp(7, 0, True)
    for x in (0, 1, 2):
        stamp(x, 1)
    stamp(6, 1, True)
    e('s_mov_b32 %s, 14' % sr(S_CNT))
    e('s_mov_b32 %s, 10' % sr(S_ENDV))
    e('s_mov_b64 vcc, -1')
    max_phase(a, epi_head(3, 0) + epi_pack(3, False) + (epi_park(3) if park else []), 'b')
    stamp(3, 1)
    mf, gaps = body_tables(opt, 0, fresh=True)
    if not park:
        place(gaps, epi_store(3, S_SRDO, stA), FREE0)
    block(gaps, 33, epi_head(4, 0) + epi_pack(4) + (epi_park(4) + ZERO4P if park else []))
    if not park:
        place(gaps, epi_store(4, S_SRDO, stA), [34, 99, 103, 107, 111])
        block(gaps, 115, ZERO4P)
    emit_body(a, opt, mf, gaps, 'WAITVM n2', auto=True)
    e('s_branch L_b1')
    m_last_end = a.mark()
    a.label('L_lastb')
    m_lastb = a.mark()
    stamp(4, 1)
    seed_pend(3)
    a.vmq = ['n2'] * 8
    mf, gaps = body_tables(opt, 3, dma=False, kpre=False)
    for j in range(3):
        k = 48 + 32 * j + 17
        block(gaps, k, epi_head(j, 1) + epi_pack(j))
        place(gaps, epi_store(j, S_SRDO2, stB), [k + 1, k + 2, k + 6, k + 10, k + 14])
    emit_body(a, opt, mf, gaps, 'WAITVM n2', auto=True)
    sb4 = (3 + 4) & 1
    F = [(t, 0) for g, t in softmax_ops(4, sb4) if 128 + W0 + g >= 160]
    n4 = len(F)
    F += [(t, 0) for t in epi_head(3, 1) + epi_pack(3, False)]
    merge(a, [(t, n4) for t in pv(4, sb4)], F)
    st3 = epi_store(3, S_SRDO2, stB)
    for t in st3:
        e(t)
    for t in epi_head(4, 1) + epi_pack(4) + epi_store(4, S_SRDO2, stB):
        e(t)
    stamp(5, 1)
    stamp(7, 1, True)
    m_end = a.mark()
    a.label('L_slow')
    slow_path(a, opt)
    a.label('L_fin')
    dump_stamps()
    if opt.get('trace'):
        e('s_lshl_b32 s80, s80, 1')
        e('s_add_u32 s80, s80, 131072')
        e('v_lshl_add_u32 v31, v0, 2, s80')
        e('global_store_dword v31, v29, s[84:85]')
    a.label('L_end')
    e('s_endpgm')

    I = a.ins
    B = lambda s: I[marks[s]:marks[s + 1]]
    bad = []
    seq = I[m_head:m_first_end] + B(1) + B(2) + B(3)
    for lo, hi in variants:
        seq += I[lo:hi] + B(0) + B(1) + B(2) + B(3)
    bad += check_hazards(seq, 'loop')
    g1 = [k for k in range(marks[2], marks[3]) if I[k].text == 'L_b2g1:'][0]
    bad += check_hazards(B(1) + I[m_qlds:m_qlds_end] + I[g1:marks[3]] + I[m_last:m_last_end] + B(1) + B(2) + I[m_lastb:m_end], 'edges')
    sl = I[m_end:]
    bad += check_hazards(sl + sl, 'slow')
    for b in bad[:8]:
        print('HAZARD', b, file=sys.stderr)
    assert not bad or opt.get('nocheck')
    print('body instrs: %d, total %d' % (sum(1 for i in B(1) if i.kind != 'none'), len(I)), file=sys.stderr)

    hdr = open('cdna_kernels/%s.s.ref' % NAME).read().split('\n')
    out = '\n'.join(hdr[:9]) + '\n'
    out += '; @launch grid=(256,1,1) block=(256,1,1) lds=%d\n' % LDS_BYTES
    out += '.amdgcn_target "amdgcn-amd-amdhsa--gfx950"\n.text\n.globl %s_kernel\n.p2align 8\n.type %s_kernel,@function\n%s_kernel:\n' % (NAME, NAME, NAME)
    out += a.text()
    out += '''.section .rodata,"a"
.p2align 6
.amdhsa_kernel %s_kernel
  .amdhsa_next_free_vgpr 512
  .amdhsa_next_free_sgpr 102
  .amdhsa_accum_offset 256
  .amdhsa_group_segment_fixed_size 0
  .amdhsa_kernarg_size 48
  .amdhsa_user_sgpr_count 2
  .amdhsa_user_sgpr_kernarg_segment_ptr 1
  .amdhsa_system_sgpr_workgroup_id_x 1
.end_amdhsa_kernel
''' % NAME
    return out


if __name__ == '__main__':
    opt = {}
    outp = sys.argv[1]
    for kv in sys.argv[2:]:
        k, v = kv.split('=', 1)
        try:
            v = eval(v)
        except Exception:
            pass
        opt[k] = v
    open(outp, 'w').write(gen(opt))
```

```python
import sys, struct, math
from asmlib import Asm, Ins, check_hazards

NAME = 'standalone__mha_softmax__near_ridge'
LDS_BYTES = 163840
QH = 304 * 256
KH = 1024 * 256
VRING = 65536
SLOT = 16384

V_KA = [1, 2, 3, 4]
V_VA = [5, 6, 7, 8, 9, 10, 11, 12]
V_DK = [13, 14, 15, 16]
V_DV = [17, 18]
V_L = [19, 20, 21, 22, 23]
V_OS = 27
V_PW, V_PR, V_LIN = 24, 25, 26
V_R, V_U = 28, 30
OB = 32
NM = 192
SB = (212, 228)
T0 = 244
A_Q, A_K, A_V, A_SP = 0, 80, 144, 208
S_SRDK, S_SRDV, S_SRDQ, S_SRDO = 12, 16, 20, 24
S_OFF, S_WB, S_CNT, S_HI, S_W = 28, 29, 30, 31, 32
S_C, S_THR, S_MASK = 34, 36, 37
S_FLAG = (38, 90)
S_ENDV = 40
S_T0, S_T1, S_T2 = 41, 42, 43
S_HEAD = 44
S_QW, S_SW, S_OW, S_SO = 98, 99, 100, 101
S_SRDO2 = 92


def f32bits(x):
    return struct.unpack('<I', struct.pack('<f', x))[0]


def vr(b, n=1):
    return 'v%d' % b if n == 1 else 'v[%d:%d]' % (b, b + n - 1)


def ar(b, n=1):
    return 'a%d' % b if n == 1 else 'a[%d:%d]' % (b, b + n - 1)


def sr(b, n=1):
    return 's%d' % b if n == 1 else 's[%d:%d]' % (b, b + n - 1)


MF = 'v_mfma_f32_16x16x32_bf16'
ALAG = 0


def qk(j, sb):
    out = []
    for kt in range(4):
        d = vr(SB[sb] + 4 * kt, 4)
        for js in range(4):
            c = vr(NM + 4 * j, 4) if js == 0 else d
            out.append('%s %s, %s, %s, %s' % (MF, d, ar(A_K + 16 * kt + 4 * js, 4), ar(A_Q + 16 * j + 4 * js, 4), c))
    return out


def pv(j, sb, czero=False):
    out = []
    for db in range(8):
        o = vr(OB + 32 * j + 4 * db, 4)
        for ks in range(2):
            c = '0' if (czero and ks == 0) else o
            out.append('%s %s, %s, %s, %s' % (MF, o, ar(A_V + 32 * ks + 4 * db, 4), vr(SB[sb] + 4 * ks, 4), c))
    return out


def kread(i, slot):
    kt, js = i >> 2, i & 3
    return 'ds_read_b128 %s, %s offset:%d' % (ar(A_K + 4 * i, 4), vr(V_KA[js]), slot * SLOT + kt * 4096)


def vread(i, t, slot):
    db, ks = i >> 1, i & 1
    return 'ds_read_b64_tr_b16 %s, %s offset:%d' % (ar(A_V + 32 * ks + 4 * db + 2 * t, 2), vr(V_VA[db]), slot * SLOT + ks * 8192 + t * 4096)


def softmax_ops(j, sb, first=False):
    s = SB[sb]
    l = V_L[j]
    ops = []
    for r in range(16):
        ops.append((2 * r - ALAG, 'v_exp_f32 %s, %s' % (vr(s + r), vr(s + r))))
        if first and r == 0:
            ops.append((2 * r + 1, 'v_mov_b32 %s, %s' % (vr(l), vr(s + r))))
        else:
            ops.append((2 * r + 1, 'v_add_f32 %s, %s, %s' % (vr(l), vr(l), vr(s + r))))
        if r & 1:
            k = r >> 1
            ops.append((2 * r + 1, 'v_cvt_pk_bf16_f32 %s, %s, %s' % (vr(s + k), vr(s + 2 * k), vr(s + 2 * k + 1))))
    ops.sort(key=lambda x: x[0])
    return ops


def dma_ops(opt, slot, tag):
    fl = opt.get('dmaflags', ' nt')
    o = ['s_add_u32 m0, %s, %d' % (sr(S_WB), slot * SLOT)]
    for p in range(4):
        o.append('buffer_load_dwordx4 %s, %s, %s offen offset:%d%s lds ; @%s' % (vr(V_DK[p]), sr(S_SRDK, 4), sr(S_OFF), p * 1024, fl, tag + 'k'))
    o.append('s_add_u32 m0, %s, %d' % (sr(S_WB), VRING + slot * SLOT))
    for p in range(4):
        o.append('buffer_load_dwordx4 %s, %s, %s offen offset:%d%s lds ; @%s' % (vr(V_DV[p & 1]), sr(S_SRDV, 4), sr(S_OFF), p * 1024, fl, tag))
    o.append('s_add_u32 %s, %s, %d' % (sr(S_OFF), sr(S_OFF), SLOT))
    return o


def qdma(opt, j, m0base, m0off, tag, qw=None):
    fl = opt.get('qflags', ' nt')
    o = ['s_add_u32 m0, %s, %d' % (sr(m0base), m0off),
         's_add_u32 %s, %s, %d' % (sr(S_T1), sr(S_QW if qw is None else qw), j * 4096)]
    for p in range(4):
        o.append('buffer_load_dwordx4 %s, %s, %s offen offset:%d%s lds ; @%s' % (vr(V_DK[p]), sr(S_SRDQ, 4), sr(S_T1), p * 1024, fl, tag))
    return o


def qaddr(base, sg):
    return ['v_add_u32 %s, %s, %s' % (vr(base + js), sr(sg), vr(V_KA[js])) for js in range(4)]


def qread(dst, base, off):
    return ['ds_read_b128 %s, %s offset:%d' % (dst(js), vr(base + js), off) for js in range(4)]


def prescale(j, src, from_acc):
    o = []
    for g in range(4):
        T = [T0 + 2 * x for x in range(4)]
        for x in range(4):
            if from_acc:
                o.append('v_accvgpr_read_b32 %s, %s' % (vr(T[x] + 1), ar(src + 4 * g + x)))
        for x in range(4):
            s = vr(T[x] + 1) if from_acc else vr(src + 4 * g + x)
            o.append('v_lshlrev_b32 %s, 16, %s' % (vr(T[x]), s))
        for x in range(4):
            s = vr(T[x] + 1) if from_acc else vr(src + 4 * g + x)
            o.append('v_and_b32 %s, %s, %s' % (vr(T[x] + 1), sr(S_MASK), s))
        for x in range(4):
            o.append('v_pk_mul_f32 %s, %s, %s' % (vr(T[x], 2), vr(T[x], 2), sr(S_C, 2)))
        for x in range(4):
            o.append('v_cvt_pk_bf16_f32 %s, %s, %s' % (vr(T[x]), vr(T[x]), vr(T[x] + 1)))
        for x in range(4):
            o.append('v_accvgpr_write_b32 %s, %s' % (ar(A_Q + 16 * j + 4 * g + x), vr(T[x])))
    return o


STAGE = 131072


def epi_head(j, h):
    l, u = vr(V_L[j]), vr(V_U)
    return ['v_mov_b32 %s, %s' % (u, l),
            'v_permlane16_swap_b32 %s, %s' % (l, u),
            'v_add_f32 %s, %s, %s' % (l, l, u),
            'v_mov_b32 %s, %s' % (u, l),
            'v_permlane32_swap_b32 %s, %s' % (l, u),
            'v_add_f32 %s, %s, %s' % (l, l, u),
            'v_rcp_f32 %s, %s' % (vr(V_R), l),
            'v_cmp_nge_f32 %s, %s, %s' % (sr(96, 2), sr(S_THR), l),
            's_or_b64 %s, %s, %s' % (sr(S_FLAG[h], 2), sr(S_FLAG[h], 2), sr(96, 2))]


def epi_pack(j, pk=True):
    o = []
    b0 = OB + 32 * j
    for h in range(2):
        if pk:
            for x in range(8):
                b = b0 + 16 * h + 2 * x
                o.append('v_pk_mul_f32 %s, %s, %s op_sel_hi:[1,0]' % (vr(b, 2), vr(b, 2), vr(V_R, 2)))
        else:
            for x in range(16):
                b = b0 + 16 * h + x
                o.append('v_mul_f32 %s, %s, %s' % (vr(b), vr(V_R), vr(b)))
        for db in range(4 * h, 4 * h + 4):
            b = b0 + 4 * db
            o.append('v_cvt_pk_bf16_f32 %s, %s, %s' % (vr(b), vr(b), vr(b + 1)))
            o.append('v_cvt_pk_bf16_f32 %s, %s, %s' % (vr(b + 1), vr(b + 2), vr(b + 3)))
    return o


def epi_write(j):
    return ['ds_write_b64 %s, %s offset:%d' % (vr(V_PW), vr(OB + 32 * j + 4 * db, 2), db * 32) for db in range(8)]


def epi_direct(j, srd, fl):
    o = ['s_add_u32 %s, %s, %d' % (sr(S_SO), sr(S_OW), j * 4096)]
    for mm in range(2):
        for m in (2 * mm, 2 * mm + 1):
            b = OB + 32 * j + 8 * m
            for x in range(4):
                o.append('v_pk_mul_f32 %s, %s, %s op_sel_hi:[1,0]' % (vr(b + 2 * x, 2), vr(b + 2 * x, 2), vr(V_R, 2)))
        for m in (2 * mm, 2 * mm + 1):
            b = OB + 32 * j + 8 * m
            for x in range(4):
                o.append('v_cvt_pk_bf16_f32 %s, %s, %s' % (vr(b + x), vr(b + 2 * x), vr(b + 2 * x + 1)))
        for m in (2 * mm, 2 * mm + 1):
            b = OB + 32 * j + 8 * m
            o.append('v_permlane16_swap_b32 %s, %s' % (vr(b), vr(b + 2)))
            o.append('v_permlane16_swap_b32 %s, %s' % (vr(b + 1), vr(b + 3)))
        for m in (2 * mm, 2 * mm + 1):
            b = OB + 32 * j + 8 * m
            o.append('buffer_store_dwordx4 %s, %s, %s, %s offen offset:%d%s ; @st' % (vr(b, 4), vr(V_OS), sr(srd, 4), sr(S_SO), m * 64, fl))
    return o


def epi_spread(gaps, j, k, srd, fl, parked, tight=False):
    place(gaps, epi_write(j), [k + 1 + 2 * x for x in range(8)])
    place(gaps, epi_fetch(j, parked), [k + 17, k + 18, k + 19, k + 20])
    if not parked:
        place(gaps, epi_store(j, srd, fl), [k + 22, k + 26, k + 27, k + 28, k + 30] if tight else [k + 22, k + 26, k + 30, k + 34, k + 38])


def odst(j, parked):
    return (lambda p: ar(A_SP + 16 * (j - 2) + 4 * p, 4)) if parked else (lambda p: vr(OB + 32 * j + 4 * p, 4))


def epi_fetch(j, parked=False):
    return ['ds_read_b128 %s, %s offset:%d' % (odst(j, parked)(p), vr(V_PR), p * 1088) for p in range(4)]


def epi_store(j, srd, fl, parked=False):
    o = ['s_add_u32 %s, %s, %d' % (sr(S_SO), sr(S_OW), j * 4096)]
    for p in range(4):
        o.append('buffer_store_dwordx4 %s, %s, %s, %s offen offset:%d%s ; @st' % (odst(j, parked)(p), vr(V_LIN), sr(srd, 4), sr(S_SO), p * 1024, fl))
    return o


def is_mem(t):
    return t.startswith(('ds_', 'buffer_', 'global_'))


def cost(t):
    if t.startswith(('v_exp', 'v_rcp')):
        return 8
    if t.endswith(':'):
        return 0
    return 4


def merge(a, mfmas, fillers, budget=8):
    fi = 0
    for mi, (text, need) in enumerate(mfmas):
        while fi < need:
            assert fillers[fi][1] <= mi, (fillers[fi], mi, text)
            a.e(fillers[fi][0])
            fi += 1
        a.e(text)
        b = budget
        valu = False
        while fi < len(fillers) and fillers[fi][1] <= mi + 1 and b > 0:
            t = fillers[fi][0]
            if is_mem(t) and valu:
                break
            if cost(t) > b and b < budget:
                break
            valu = valu or t.startswith('v_')
            b -= cost(t)
            a.e(t)
            fi += 1
    while fi < len(fillers):
        a.e(fillers[fi][0])
        fi += 1


def set_srd(a, srd, ptr, off, size):
    a.e('s_add_u32 %s, %s, %s' % (sr(srd), sr(ptr), sr(off)))
    a.e('s_addc_u32 %s, %s, 0' % (sr(srd + 1), sr(ptr + 1)))
    a.e('s_and_b32 %s, %s, 0xffff' % (sr(srd + 1), sr(srd + 1)))
    a.e('s_mov_b32 %s, %s' % (sr(srd + 2), size))


W0 = 14
DG = [51, 55, 63, 67, 71, 75, 79, 83, 87, 91, 95]


def body_tables(opt, slot, cold=False, fresh=False, dma=True, kpre=True):
    sbuf = lambda u: (slot + u) & 1
    groups = [qk(0, sbuf(0)), pv(4, sbuf(-1)), qk(1, sbuf(1)), pv(0, sbuf(0), fresh), qk(2, sbuf(2)), pv(1, sbuf(1), fresh),
              qk(3, sbuf(3)), pv(2, sbuf(2), fresh), qk(4, sbuf(4)), pv(3, sbuf(3), fresh)]
    mf = [t for g in groups for t in g]
    gaps = [[] for _ in range(160)]
    if cold:
        for k in range(16, 32):
            mf[k] = None
    else:
        for g, t in softmax_ops(4, sbuf(-1)):
            k = 128 + W0 + g - 160
            if k >= 0:
                gaps[k].append((5, t))
    for u in range(5):
        for g, t in softmax_ops(u, sbuf(u), fresh):
            k = 32 * u + W0 + g
            if cold and u == 0 and k < 32:
                k = min(7 + g, 15)
            if k < 160:
                gaps[k].append((5, t))
    for i in range(16):
        for t in range(2):
            gaps[(i if i < 7 else 33 + (i - 7)) if cold else 17 + 2 * i].append((0, vread(i, t, slot)))
        if kpre:
            gaps[129 + 2 * i].append((0, kread(i, (slot + 1) & 3)))
    if dma and not opt.get('nodma'):
        dg = opt.get('dgaps', DG)
        if cold:
            place(gaps, dma_ops(opt, 2, 's2'), [7, 8, 10, 12, 14, 43, 47, 51, 55, 59, 63])
            dg = [79, 83, 87, 91, 95, 99, 103, 107, 111, 115, 119]
        place(gaps, dma_ops(opt, (slot + 3) & 3, 'kv'), dg)
    return mf, gaps


def place(gaps, ops, where):
    assert len(ops) == len(where), (len(ops), len(where))
    for k, t in zip(where, ops):
        gaps[k].append((0 if is_mem(t) else (1 if t.startswith('s_') else 6), t))


def block(gaps, k, ops):
    for t in ops:
        gaps[k].append((7, t))


def emit_body(a, opt, mf, gaps, barwait, auto=False, lo=0, hi=160):
    a.auto_nop = auto
    for k in range(lo, hi):
        if mf[k] is not None:
            a.e(mf[k])
        for _, t in sorted(gaps[k], key=lambda x: x[0]):
            a.e(t)
        if k == 127:
            for t in (barwait if isinstance(barwait, list) else [barwait]):
                a.e(t)
            if opt.get('trace'):
                a.e('s_memrealtime s[86:87]')
                a.e('s_waitcnt lgkmcnt(0)')
                a.e('s_mov_b32 m0, s88')
                a.e('v_writelane_b32 v29, s86, m0')
                a.e('s_add_u32 s88, s88, 1')
            a.e('s_barrier')
    a.auto_nop = True


def max_phase(a, extra, tag):
    M, F = [], []
    extra = list(extra)
    take = lambda n: [extra.pop(0) for _ in range(min(n, len(extra)))]
    for j in range(5):
        d = vr(NM + 4 * j, 4)
        for js in range(4):
            M.append(('%s %s, %s, %s, %s' % (MF, d, ar(A_K + 4 * js, 4), ar(A_Q + 16 * j + 4 * js, 4), '0' if js == 0 else d), 0))
    for t in take(12):
        F.append((t, 0))
    for j in range(5):
        n = NM + 4 * j
        t, u = vr(T0 + 2 * j), vr(T0 + 2 * j + 1)
        ops = ['v_max3_f32 %s, %s, %s, %s' % (t, vr(n), vr(n + 1), vr(n + 2)),
               'v_max_f32 %s, %s, %s' % (t, t, vr(n + 3)),
               'v_mov_b32 %s, %s' % (u, t)] + take(2) + [
               'v_permlane16_swap_b32 %s, %s' % (t, u),
               'v_max_f32 %s, %s, %s' % (t, t, u),
               'v_mov_b32 %s, %s' % (u, t)] + take(2) + [
               'v_permlane32_swap_b32 %s, %s' % (t, u)]
        ops += ['v_min_f32 %s, -%s, -%s' % (vr(n + x), t, u) for x in range(4)]
        for o in ops:
            F.append((o, min(4 * j + 7, 20)))
    merge(a, M, F)
    for t in extra:
        a.e(t)
    a.e('s_cmp_lg_u32 %s, 3' % sr(S_W))
    a.e('s_cbranch_scc1 L_nd%s' % tag)
    for x in range(4):
        a.e('v_mov_b32 %s, 0x%08x' % (vr(NM + 16 + x), f32bits(-1e30)))
    a.label('L_nd%s' % tag)
    a.e('s_nop 1')


ZERO4 = ['v_mov_b32 %s, 0' % vr(OB + 128 + x) for x in range(32)]
ZERO4P = ['v_mov_b64 %s, 0' % vr(OB + 128 + 2 * x, 2) for x in range(16)]


def slow_path(a, opt):
    e = a.e
    a.pend = []
    a.vmq = []
    e('s_or_b64 %s, %s, %s' % (sr(96, 2), sr(S_FLAG[0], 2), sr(S_FLAG[1], 2)))
    e('s_cbranch_scc0 L_fin')
    e('s_waitcnt vmcnt(0) lgkmcnt(0)')
    e('s_lshl_b32 %s, %s, 2' % (sr(S_T0), sr(S_WB)))
    for x in V_KA + V_VA:
        e('v_add_u32 %s, %s, %s' % (vr(x), sr(S_T0), vr(x)))
    for x in V_DK + V_DV:
        e('v_subrev_u32 %s, %s, %s' % (vr(x), sr(S_WB), vr(x)))
    e('s_mov_b32 %s, %s' % (sr(S_WB), sr(S_T0)))
    e('s_mov_b32 %s, 0' % sr(S_HI))
    a.label('L_sp_head')
    e('s_cmp_eq_u32 %s, 0' % sr(S_HI))
    e('s_cselect_b64 %s, %s, %s' % (sr(96, 2), sr(S_FLAG[0], 2), sr(S_FLAG[1], 2)))
    e('s_cmp_eq_u64 %s, 0' % sr(96, 2))
    e('s_cbranch_scc1 L_sp_next')
    e('s_lshl_b32 %s, s2, 1' % sr(S_T1))
    e('s_add_u32 %s, %s, %s' % (sr(S_T1), sr(S_T1), sr(S_HI)))
    e('s_mul_i32 %s, %s, %d' % (sr(S_T1), sr(S_T1), QH))
    set_srd(a, S_SRDQ, 4, S_T1, QH)
    set_srd(a, S_SRDO, 10, S_T1, QH)
    for j in range(5):
        for t in qdma(opt, j, S_WB, 0, 'q', qw=S_OW):
            e(t)
        e('s_waitcnt vmcnt(0)')
        for t in qread(lambda js: vr(OB + 4 * js, 4), V_KA[0], 0) + prescale(j, OB, False):
            e(t)

    def tile_dma(kv):
        for q in range(4):
            e('s_add_u32 m0, %s, %d' % (sr(S_WB), (VRING if kv else 0) + q * 4096))
            e('s_add_u32 %s, %s, %d' % (sr(S_T1), sr(S_OFF), q * 4096))
            for p in range(4):
                e('buffer_load_dwordx4 %s, %s, %s offen offset:%d lds' % (vr(V_DV[p & 1] if kv else V_DK[p]), sr(S_SRDV if kv else S_SRDK, 4), sr(S_T1), p * 1024))

    for j in range(5):
        e('v_mov_b32 %s, 0xff800000' % vr(V_L[j]))
        for x in range(4):
            e('v_mov_b32 %s, 0' % vr(NM + 4 * j + x))
    e('s_lshl_b32 %s, %s, 18' % (sr(S_OFF), sr(S_HI)))
    e('s_mov_b32 %s, 16' % sr(S_CNT))
    a.label('L_sp1')
    tile_dma(0)
    e('s_waitcnt vmcnt(0)')
    for i in range(16):
        e(kread(i, 0))
    for j in range(5):
        for t in qk(j, 0):
            e(t)
        for x in range(8):
            e('v_max3_f32 %s, %s, %s, %s' % (vr(V_L[j]), vr(V_L[j]), vr(SB[0] + 2 * x), vr(SB[0] + 2 * x + 1)))
    e('s_add_u32 %s, %s, %d' % (sr(S_OFF), sr(S_OFF), SLOT))
    e('s_sub_u32 %s, %s, 1' % (sr(S_CNT), sr(S_CNT)))
    e('s_cmp_lg_u32 %s, 0' % sr(S_CNT))
    e('s_cbranch_scc1 L_sp1')
    for j in range(5):
        t, u = vr(V_L[j]), vr(V_U)
        e('v_mov_b32 %s, %s' % (u, t))
        e('v_permlane16_swap_b32 %s, %s' % (t, u))
        e('v_max_f32 %s, %s, %s' % (t, t, u))
        e('v_mov_b32 %s, %s' % (u, t))
        e('v_permlane32_swap_b32 %s, %s' % (t, u))
        for x in range(4):
            e('v_min_f32 %s, -%s, -%s' % (vr(NM + 4 * j + x), t, u))
        e('v_mov_b32 %s, 0' % t)
    for x in range(80):
        e('v_mov_b64 %s, 0' % vr(OB + 2 * x, 2))
    e('s_lshl_b32 %s, %s, 18' % (sr(S_OFF), sr(S_HI)))
    e('s_mov_b32 %s, 16' % sr(S_CNT))
    a.label('L_sp2')
    tile_dma(0)
    tile_dma(1)
    e('s_waitcnt vmcnt(0)')
    for i in range(16):
        e(kread(i, 0))
    for i in range(16):
        for t in range(2):
            e(vread(i, t, 0))
    for j in range(5):
        for t in qk(j, 0):
            e(t)
        for _, t in softmax_ops(j, 0):
            e(t)
        for t in pv(j, 0):
            e(t)
    e('s_add_u32 %s, %s, %d' % (sr(S_OFF), sr(S_OFF), SLOT))
    e('s_sub_u32 %s, %s, 1' % (sr(S_CNT), sr(S_CNT)))
    e('s_cmp_lg_u32 %s, 0' % sr(S_CNT))
    e('s_cbranch_scc1 L_sp2')
    for j in range(5):
        for t in epi_head(j, 0)[:7] + epi_pack(j) + epi_write(j) + epi_fetch(j) + epi_store(j, S_SRDO, ''):
            e(t)
    e('s_waitcnt vmcnt(0)')
    a.label('L_sp_next')
    e('s_add_u32 %s, %s, 1' % (sr(S_HI), sr(S_HI)))
    e('s_cmp_lt_u32 %s, 2' % sr(S_HI))
    e('s_cbranch_scc1 L_sp_head')
    e('s_branch L_fin')


def gen(opt):
    a = Asm()
    a.lag = opt.get('lag', 8)
    e = a.e
    diag = opt.get('diag', False)
    stA = opt.get('sta', '')
    stP = opt.get('stp', '')
    stB = opt.get('stb', ' sc1')
    park = opt.get('park', True)

    def stamp(i, h, real=False):
        if diag:
            b = (64 if h == 0 else 48) + 2 * i
            e('%s s[%d:%d]' % ('s_memrealtime' if real else 's_memtime', b, b + 1))
            e('s_waitcnt lgkmcnt(0)')

    def dump_stamps():
        if not diag:
            return
        e('s_lshl_b32 s80, s2, 2')
        e('s_add_u32 s80, s80, %s' % sr(S_W))
        e('s_lshl_b32 s80, s80, 7')
        e('v_mov_b32 v31, s80')
        for q in range(8):
            for x in range(4):
                e('v_mov_b32 v%d, s%d' % (252 + x, (64 if q < 4 else 32) + 4 * q + x))
            e('s_mov_b64 exec, 1')
            e('global_store_dwordx4 v31, v[252:255], s[84:85] offset:%d' % (16 * q))
            e('s_mov_b64 exec, -1')
            e('s_nop 1')

    e('s_cmp_ge_u32 s2, 256')
    e('s_cbranch_scc1 L_end')
    e('s_load_dwordx8 s[4:11], s[0:1], 0')
    if diag:
        e('s_load_dwordx2 s[84:85], s[0:1], 40')
        stamp(0, 0)
        stamp(6, 0, True)
    e('v_lshrrev_b32 v244, 6, v0')
    e('v_and_b32 v0, 63, v0')
    e('v_readfirstlane_b32 %s, v244' % sr(S_W))
    cpf = opt.get('cpf', 64)
    if cpf:
        e('s_getpc_b64 s[46:47]')
        a.label('L_pc')
        e('s_lshr_b32 %s, s2, 3' % sr(S_T0))
        e('s_lshl_b32 %s, %s, 2' % (sr(S_T0), sr(S_T0)))
        e('s_add_u32 %s, %s, %s' % (sr(S_T0), sr(S_T0), sr(S_W)))
        e('s_and_b32 %s, %s, %d' % (sr(S_T0), sr(S_T0), cpf - 1))
        e('s_lshl_b32 %s, %s, 10' % (sr(S_T0), sr(S_T0)))
        e('s_min_u32 %s, %s, L_slow-L_pc-512' % (sr(S_T0), sr(S_T0)))
        e('v_lshl_add_u32 v245, v0, 4, %s' % sr(S_T0))
        e('global_load_dwordx4 %s, v245, s[46:47] ; @cpf' % ar(A_SP, 4))
    e('v_and_b32 v244, 15, v0')
    e('v_lshrrev_b32 v245, 4, v0')
    e('s_lshl_b32 %s, %s, 12' % (sr(S_WB), sr(S_W)))
    e('s_lshl_b32 %s, %s, 14' % (sr(S_QW), sr(S_W)))
    e('s_lshl_b32 %s, %s, 13' % (sr(S_SW), sr(S_W)))
    e('s_add_u32 %s, %s, %d' % (sr(S_SW), sr(S_SW), STAGE))
    e('s_lshl_b32 %s, s2, 1' % sr(S_HEAD))
    e('s_mul_i32 %s, %s, %d' % (sr(S_T0), sr(S_HEAD), QH))
    e('s_lshl_b32 %s, %s, 18' % (sr(S_T2), sr(S_HEAD)))
    for srd in (S_SRDK, S_SRDV, S_SRDQ, S_SRDO, S_SRDO2):
        e('s_mov_b32 %s, 0x00020000' % sr(srd + 3))
    e('v_lshlrev_b32 v246, 8, v245')
    e('v_add_u32 v246, %s, v246' % sr(S_WB))
    for p in range(4):
        e('v_add_u32 v247, %d, v245' % (4 * p))
        e('v_xor_b32 v247, v247, v244')
        e('v_lshl_add_u32 %s, v247, 4, v246' % vr(V_DK[p]))
    e('s_waitcnt lgkmcnt(0)')
    set_srd(a, S_SRDQ, 4, S_T0, QH)
    QAREA = [(S_WB, 2 * SLOT), (S_WB, 3 * SLOT), (S_WB, VRING + 2 * SLOT), (S_WB, VRING + 3 * SLOT), (S_SW, 0)]
    qd = [qdma(opt, j, QAREA[j][0], QAREA[j][1], 'q%d' % j) for j in range(5)]
    for t in qd[0] + qd[1]:
        e(t)
    for p in range(2):
        e('v_add_u32 v247, %d, v245' % (4 * p))
        e('v_lshlrev_b32 v247, 1, v247')
        e('v_xor_b32 v247, v247, v244')
        e('v_lshl_add_u32 %s, v247, 4, v246' % vr(V_DV[p]))
    c = f32bits(128 ** -0.5 * math.log2(math.e))
    e('s_mov_b32 %s, 0x%08x' % (sr(S_C), c))
    e('s_mov_b32 %s, 0x%08x' % (sr(S_C + 1), c))
    e('s_mov_b32 %s, 0x%08x' % (sr(S_THR), f32bits(opt.get('thr', 2.0 ** 24))))
    e('s_mov_b32 %s, 0xffff0000' % sr(S_MASK))
    e('s_mov_b32 %s, 0' % sr(S_OFF))
    e('s_mul_i32 %s, %s, %d' % (sr(S_OW), sr(S_W), 80 * 256))
    if opt.get('trace'):
        e('s_mov_b32 s88, 0')
        e('v_mov_b32 v29, 0')
    set_srd(a, S_SRDK, 6, S_T2, 2 * KH)
    set_srd(a, S_SRDV, 8, S_T2, 2 * KH)
    for js in range(4):
        e('v_add_u32 v247, %d, v245' % (4 * js))
        e('v_xor_b32 v247, v247, v244')
        e('v_lshlrev_b32 v247, 4, v247')
        e('v_lshl_add_u32 %s, v244, 8, v247' % vr(V_KA[js]))
    e('v_mul_u32_u24 v247, 272, v244')
    e('v_lshl_add_u32 v247, v245, 3, v247')
    e('v_add_u32 %s, %s, v247' % (vr(V_PW), sr(S_SW)))
    e('v_mul_u32_u24 v247, 272, v245')
    e('v_lshl_add_u32 v247, v244, 4, v247')
    e('v_add_u32 %s, %s, v247' % (vr(V_PR), sr(S_SW)))
    e('v_lshlrev_b32 %s, 4, v0' % vr(V_LIN))
    e('v_and_b32 v247, 1, v245')
    e('v_lshlrev_b32 v247, 5, v247')
    e('v_lshl_add_u32 v247, v244, 8, v247')
    e('v_lshrrev_b32 v248, 1, v245')
    e('v_lshl_add_u32 %s, v248, 4, v247' % vr(V_OS))
    e('v_bfe_u32 v246, v0, 2, 2')
    e('v_lshl_add_u32 v247, v245, 2, v246')
    e('v_and_b32 v248, 7, v247')
    e('v_lshlrev_b32 v247, 8, v247')
    e('v_and_b32 v249, 3, v0')
    e('v_lshl_add_u32 v247, v249, 3, v247')
    e('v_add_u32 v247, %d, v247' % VRING)
    for db in range(8):
        e('v_xor_b32 v249, %d, v248' % db)
        e('v_lshl_add_u32 %s, v249, 5, v247' % vr(V_VA[db]))
    set_srd(a, S_SRDO, 10, S_T0, QH)
    e('s_add_u32 %s, %s, %d' % (sr(S_T0), sr(S_T0), QH))
    set_srd(a, S_SRDO2, 10, S_T0, QH)
    e('s_mov_b64 %s, 0' % sr(S_FLAG[0], 2))
    e('s_mov_b64 %s, 0' % sr(S_FLAG[1], 2))
    e('s_mov_b32 %s, 4' % sr(S_CNT))
    e('s_mov_b32 %s, 0' % sr(S_ENDV))
    e('s_mov_b64 vcc, 0')
    QA = 252
    e('s_add_u32 %s, %s, %d' % (sr(S_T2), sr(S_WB), VRING))
    for t in qaddr(NM, S_WB) + qaddr(NM + 4, S_T2) + qaddr(NM + 8, S_SW):
        e(t)
    QRD = [(NM, 2 * SLOT), (NM, 3 * SLOT), (NM + 4, 2 * SLOT), (NM + 4, 3 * SLOT), (NM + 8, 0)]
    for t in qd[2]:
        e(t)
    s0, s1 = dma_ops(opt, 0, 's0'), dma_ops(opt, 1, 's1')
    later = {0: qd[3], 1: qd[4], 2: s0[:5], 3: s0[5:], 4: s1[:5]}
    for j in range(5):
        e('WAITVM q%d' % j)
        if j == 0:
            stamp(1, 0)
        for t in qread(lambda js: vr(OB + 16 * j + 4 * js, 4), QRD[j][0], QRD[j][1]):
            e(t)
        for t in later[j]:
            e(t)
        for t in prescale(j, OB + 16 * j, False):
            e(t)
    set_srd(a, S_SRDQ, 4, S_T0, QH)
    e('WAITVM s0k')
    e('s_barrier')
    for i in range(16):
        e(kread(i, 0))
    for t in s1[5:]:
        e(t)
    m_head = a.mark()
    stamp(2, 0)
    max_phase(a, ZERO4, 'a')
    e('WAITVM s0')
    e('s_barrier')
    stamp(3, 0)
    mf, gaps = body_tables(opt, 0, cold=True, fresh=True)
    emit_body(a, opt, mf, gaps, 's_waitcnt vmcnt(16)', auto=True)
    e('s_branch L_b1')
    m_first_end = a.mark()

    marks = {}

    def seed_pend(slot):
        a.pend = [(Ins(kread(i, slot)).wr, a.nmfma - (31 - 2 * i)) for i in range(16)]

    cg = 155 if opt.get('trace') else 103
    FREE0 = [1, 3, 7, 11, 15]
    variants = []
    a.raw('.p2align 6')
    def qvariant(gaps, rd, dm):
        if rd is not None:
            place(gaps, qaddr(T0, S_SW), [0, 0, 1, 1])
            place(gaps, qread(lambda js: ar(A_SP + 16 * rd[1] + 4 * js, 4), T0, rd[0] * 4096), [5, 5, 9, 13])
        place(gaps, qdma(opt, dm[0], S_SW, dm[1] * 4096, 'q'), [1, 2, 3, 7, 11, 15])

    for name, rd, dm, j in (('qa3', None, (2, 0), 0), ('qa2', (1, 1), (4, 0), 0), ('qb3', 0, 0, 2), ('qb2', 0, 0, 3), ('qb1', 0, 0, 4), ('qa1', None, (0, 0), 0)):
        a.label('L_' + name)
        m0_ = a.mark()
        seed_pend(0)
        mf, gaps = body_tables(opt, 0)
        if name[1] == 'a':
            qvariant(gaps, rd, dm)
        elif park:
            place(gaps, epi_store(j, S_SRDO, stP, parked=True), FREE0)
        emit_body(a, opt, mf, gaps, None, lo=0, hi=16)
        if name != 'qa1':
            e('s_branch L_b0g1')
        variants.append((m0_, a.mark()))
    for slot in range(4):
        mf, gaps = body_tables(opt, slot)
        bw = 's_waitcnt vmcnt(16)'
        if slot == 0 and park and opt.get('exactw', True):
            bw = 's_waitcnt vmcnt(20)'
        if slot == 1:
            gaps[99].append((1, 's_sub_u32 %s, %s, 2' % (sr(S_T2), sr(S_CNT))))
            gaps[cg].append((1, 's_cmp_le_u32 %s, 1' % sr(S_T2)))
        if slot == 2:
            gaps[99].append((1, 's_sub_u32 %s, %s, 1' % (sr(S_CNT), sr(S_CNT))))
            if opt.get('exactw', True):
                gaps[103].append((1, 's_cmp_le_u32 %s, 1' % sr(S_T2)))
                bw = ['s_waitcnt vmcnt(20)', 's_cbranch_scc1 L_w2', 's_waitcnt vmcnt(16)', 'L_w2:']
            gaps[155].append((1, 's_cmp_eq_u32 %s, %s' % (sr(S_CNT), sr(S_ENDV))))
        if slot == 3:
            gaps[99].append((1, 's_sub_u32 %s, %s, %s' % (sr(S_T2), sr(S_CNT), sr(S_ENDV))))
            gaps[cg].append((1, 's_cmp_eq_u32 %s, 3' % sr(S_T2)))
        marks[slot] = a.mark()
        if slot != 0:
            a.label('L_b%d' % slot)
            seed_pend(slot)
            emit_body(a, opt, mf, gaps, None, lo=0, hi=16)
        a.label('L_b%dg1' % slot)
        a.pend = []
        emit_body(a, opt, mf, gaps, bw, lo=16)
        if slot == 1:
            e('s_cbranch_scc1 L_qlds')
        if slot == 2:
            e('s_cbranch_scc1 L_exit')
    marks[4] = a.mark()
    e('s_cbranch_vccnz L_backb')
    e('s_cbranch_scc1 L_qa3')
    e('s_cmp_eq_u32 %s, 2' % sr(S_T2))
    e('s_cbranch_scc1 L_qa2')
    e('s_branch L_qa1')
    a.label('L_backb')
    e('s_cbranch_scc1 L_qb3')
    e('s_cmp_eq_u32 %s, 2' % sr(S_T2))
    e('s_cbranch_scc1 L_qb2')
    e('s_branch L_qb1')
    a.label('L_qlds')
    e('s_cmp_eq_u32 %s, 2' % sr(S_CNT))
    e('s_cbranch_scc1 L_qm2')
    v2 = []
    for name, rd, dm in (('qm3', (0, 0), (3, 1)), ('qm2', (0, 2), (1, 1))):
        a.label('L_' + name)
        m0_ = a.mark()
        seed_pend(2)
        mf, gaps = body_tables(opt, 2)
        qvariant(gaps, rd, dm)
        emit_body(a, opt, mf, gaps, None, lo=0, hi=16)
        e('s_branch L_b2g1')
        v2.append((m0_, a.mark()))
    a.label('L_exit')
    e('s_cbranch_vccnz L_lastb')
    m_last = a.mark()
    stamp(4, 0)
    seed_pend(3)
    a.vmq = ['n1'] * 8 + ['n2'] * 8
    mf, gaps = body_tables(opt, 3)
    place(gaps, qaddr(QA, S_SW), [3, 7, 11, 15])
    for j in range(2):
        place(gaps, qread(lambda js: ar(A_Q + 16 * j + 4 * js, 4), QA, j * 4096), [32 * j + 16] * 4)
        block(gaps, 32 * j + 29, prescale(j, A_Q + 16 * j, True))
    for j in (2, 3, 4):
        block(gaps, 32 * j + 17, prescale(j, A_SP + 16 * (j - 2), True))
    for j in range(3):
        k = 48 + 32 * j + 17
        pk_ = park and j >= 2
        block(gaps, k, epi_head(j, 0) + epi_pack(j))
        epi_spread(gaps, j, k, S_SRDO, stA, pk_, tight=(j == 2))
    emit_body(a, opt, mf, gaps, 'WAITVM n1', auto=True)
    stamp(5, 0)
    stamp(7, 0, True)
    for x in (0, 1, 2):
        stamp(x, 1)
    stamp(6, 1, True)
    e('s_mov_b32 %s, 14' % sr(S_CNT))
    e('s_mov_b32 %s, 10' % sr(S_ENDV))
    e('s_mov_b64 vcc, -1')
    max_phase(a, epi_head(3, 0) + epi_pack(3, False), 'b')
    stamp(3, 1)
    mf, gaps = body_tables(opt, 0, fresh=True)
    epi_spread(gaps, 3, -1, S_SRDO, stA, park)
    block(gaps, 47, epi_head(4, 0) + epi_pack(4))
    epi_spread(gaps, 4, 47, S_SRDO, stA, park)
    block(gaps, 115, ZERO4P)
    emit_body(a, opt, mf, gaps, 'WAITVM n2', auto=True)
    e('s_branch L_b1')
    m_last_end = a.mark()
    a.label('L_lastb')
    m_lastb = a.mark()
    stamp(4, 1)
    seed_pend(3)
    a.vmq = ['n2'] * 8
    a.drop = opt.get('droplast', ())
    mf, gaps = body_tables(opt, 3, dma=False, kpre=False)
    for j in range(3):
        k = 48 + 32 * j + 17
        block(gaps, k, epi_head(j, 1) + epi_pack(j))
        epi_spread(gaps, j, k, S_SRDO2, stB, False, tight=(j == 2))
    emit_body(a, opt, mf, gaps, 'WAITVM n2', auto=True)
    sb4 = (3 + 4) & 1
    F = [(t, 0) for g, t in softmax_ops(4, sb4) if 128 + W0 + g >= 160]
    n4 = len(F)
    F += [(t, 0) for t in epi_head(3, 1) + epi_pack(3)]
    n4 = len(F)
    h4 = epi_head(4, 1)
    for x, t in enumerate(epi_write(3)):
        F += [(t, 0), (h4[x], 0)]
    F += [(h4[8], 0)] + [(t, 0) for t in epi_fetch(3)]
    merge(a, [(t, n4) for t in pv(4, sb4)], F)
    d4 = epi_direct(4, S_SRDO2, stB)
    for t in epi_store(3, S_SRDO2, stB) + d4:
        e(t)
    stamp(5, 1)
    stamp(7, 1, True)
    a.drop = ()
    m_end = a.mark()
    a.label('L_slow')
    slow_path(a, opt)
    a.label('L_fin')
    dump_stamps()
    if opt.get('trace'):
        e('s_lshl_b32 s80, s80, 1')
        e('s_add_u32 s80, s80, 131072')
        e('v_lshl_add_u32 v31, v0, 2, s80')
        e('global_store_dword v31, v29, s[84:85]')
    a.label('L_end')
    e('s_endpgm')

    I = a.ins
    B = lambda s: I[marks[s]:marks[s + 1]]
    bad = []
    seq = I[m_head:m_first_end] + B(1) + B(2) + B(3)
    for lo, hi in variants:
        seq += I[lo:hi] + B(0) + B(1) + B(2) + B(3)
    bad += check_hazards(seq, 'loop')
    g1 = [k for k in range(marks[2], marks[3]) if I[k].text == 'L_b2g1:'][0]
    for lo, hi in v2:
        bad += check_hazards(B(1) + I[lo:hi] + I[g1:marks[3]], 'mid')
    bad += check_hazards(B(2) + I[m_last:m_last_end] + B(1) + B(2) + I[m_lastb:m_end], 'edges')
    sl = I[m_end:]
    bad += check_hazards(sl + sl, 'slow')
    for b in bad[:8]:
        print('HAZARD', b, file=sys.stderr)
    assert not bad or opt.get('nocheck')
    print('body instrs: %d, total %d' % (sum(1 for i in B(1) if i.kind != 'none'), len(I)), file=sys.stderr)

    hdr = open('cdna_kernels/%s.s.ref' % NAME).read().split('\n')
    out = '\n'.join(hdr[:9]) + '\n'
    out += '; @launch grid=(256,1,1) block=(256,1,1) lds=%d\n' % LDS_BYTES
    out += '.amdgcn_target "amdgcn-amd-amdhsa--gfx950"\n.text\n.globl %s_kernel\n.p2align 8\n.type %s_kernel,@function\n%s_kernel:\n' % (NAME, NAME, NAME)
    out += a.text()
    out += '''.section .rodata,"a"
.p2align 6
.amdhsa_kernel %s_kernel
  .amdhsa_next_free_vgpr 512
  .amdhsa_next_free_sgpr 102
  .amdhsa_accum_offset 256
  .amdhsa_group_segment_fixed_size 0
  .amdhsa_kernarg_size 48
  .amdhsa_user_sgpr_count 2
  .amdhsa_user_sgpr_kernarg_segment_ptr 1
  .amdhsa_system_sgpr_workgroup_id_x 1
.end_amdhsa_kernel
''' % NAME
    return out


if __name__ == '__main__':
    opt = {}
    outp = sys.argv[1]
    for kv in sys.argv[2:]:
        k, v = kv.split('=', 1)
        try:
            v = eval(v)
        except Exception:
            pass
        opt[k] = v
    open(outp, 'w').write(gen(opt))
```

```python
import sys, struct, math
from asmlib import Asm, Ins, check_hazards

NAME = 'standalone__mha_softmax__near_ridge'
LDS_BYTES = 163840
QH = 304 * 256
KH = 1024 * 256
VRING = 65536
SLOT = 16384

V_KA = [1, 2, 3, 4]
V_VA = [5, 6, 7, 8, 9, 10, 11, 12]
V_DK = [13, 14, 15, 16]
V_DV = [17, 18]
V_L = [19, 20, 21, 22, 23]
V_OS = 27
V_PW, V_PR, V_LIN = 24, 25, 26
V_R, V_U = 28, 30
OB = 32
NM = 192
SB = (212, 228)
T0 = 244
A_Q, A_K, A_V, A_SP = 0, 80, 144, 208
S_SRDK, S_SRDV, S_SRDQ, S_SRDO = 12, 16, 20, 24
S_OFF, S_WB, S_CNT, S_HI, S_W = 28, 29, 30, 31, 32
S_C, S_THR, S_MASK = 34, 36, 37
S_FLAG = (38, 90)
S_ENDV = 40
S_T0, S_T1, S_T2 = 41, 42, 43
S_HEAD = 44
S_QW, S_SW, S_OW, S_SO = 98, 99, 100, 101
S_SRDO2 = 92


def f32bits(x):
    return struct.unpack('<I', struct.pack('<f', x))[0]


def vr(b, n=1):
    return 'v%d' % b if n == 1 else 'v[%d:%d]' % (b, b + n - 1)


def ar(b, n=1):
    return 'a%d' % b if n == 1 else 'a[%d:%d]' % (b, b + n - 1)


def sr(b, n=1):
    return 's%d' % b if n == 1 else 's[%d:%d]' % (b, b + n - 1)


MF = 'v_mfma_f32_16x16x32_bf16'
ALAG = 0


def qk(j, sb):
    out = []
    for kt in range(4):
        d = vr(SB[sb] + 4 * kt, 4)
        for js in range(4):
            c = vr(NM + 4 * j, 4) if js == 0 else d
            out.append('%s %s, %s, %s, %s' % (MF, d, ar(A_K + 16 * kt + 4 * js, 4), ar(A_Q + 16 * j + 4 * js, 4), c))
    return out


def pv(j, sb, czero=False):
    out = []
    for db in range(8):
        o = vr(OB + 32 * j + 4 * db, 4)
        for ks in range(2):
            c = '0' if (czero and ks == 0) else o
            out.append('%s %s, %s, %s, %s' % (MF, o, ar(A_V + 32 * ks + 4 * db, 4), vr(SB[sb] + 4 * ks, 4), c))
    return out


def kread(i, slot):
    kt, js = i >> 2, i & 3
    return 'ds_read_b128 %s, %s offset:%d' % (ar(A_K + 4 * i, 4), vr(V_KA[js]), slot * SLOT + kt * 4096)


def vread(i, t, slot):
    db, ks = i >> 1, i & 1
    return 'ds_read_b64_tr_b16 %s, %s offset:%d' % (ar(A_V + 32 * ks + 4 * db + 2 * t, 2), vr(V_VA[db]), slot * SLOT + ks * 8192 + t * 4096)


def softmax_ops(j, sb, first=False):
    s = SB[sb]
    l = V_L[j]
    ops = []
    for r in range(16):
        ops.append((2 * r - ALAG, 'v_exp_f32 %s, %s' % (vr(s + r), vr(s + r))))
        if first and r == 0:
            ops.append((2 * r + 1, 'v_mov_b32 %s, %s' % (vr(l), vr(s + r))))
        else:
            ops.append((2 * r + 1, 'v_add_f32 %s, %s, %s' % (vr(l), vr(l), vr(s + r))))
        if r & 1:
            k = r >> 1
            ops.append((2 * r + 1, 'v_cvt_pk_bf16_f32 %s, %s, %s' % (vr(s + k), vr(s + 2 * k), vr(s + 2 * k + 1))))
    ops.sort(key=lambda x: x[0])
    return ops


def dma_ops(opt, slot, tag):
    fl = opt.get('dmaflags', ' nt')
    o = ['s_add_u32 m0, %s, %d' % (sr(S_WB), slot * SLOT)]
    for p in range(4):
        o.append('buffer_load_dwordx4 %s, %s, %s offen offset:%d%s lds ; @%s' % (vr(V_DK[p]), sr(S_SRDK, 4), sr(S_OFF), p * 1024, fl, tag + 'k'))
    o.append('s_add_u32 m0, %s, %d' % (sr(S_WB), VRING + slot * SLOT))
    for p in range(4):
        o.append('buffer_load_dwordx4 %s, %s, %s offen offset:%d%s lds ; @%s' % (vr(V_DV[p & 1]), sr(S_SRDV, 4), sr(S_OFF), p * 1024, fl, tag))
    o.append('s_add_u32 %s, %s, %d' % (sr(S_OFF), sr(S_OFF), SLOT))
    return o


def qdma(opt, j, m0base, m0off, tag, qw=None):
    fl = opt.get('qflags', ' nt')
    o = ['s_add_u32 m0, %s, %d' % (sr(m0base), m0off),
         's_add_u32 %s, %s, %d' % (sr(S_T1), sr(S_QW if qw is None else qw), j * 4096)]
    for p in range(4):
        o.append('buffer_load_dwordx4 %s, %s, %s offen offset:%d%s lds ; @%s' % (vr(V_DK[p]), sr(S_SRDQ, 4), sr(S_T1), p * 1024, fl, tag))
    return o


def qaddr(base, sg):
    return ['v_add_u32 %s, %s, %s' % (vr(base + js), sr(sg), vr(V_KA[js])) for js in range(4)]


def qread(dst, base, off):
    return ['ds_read_b128 %s, %s offset:%d' % (dst(js), vr(base + js), off) for js in range(4)]


def prescale(j, src, from_acc):
    o = []
    for g in range(4):
        T = [T0 + 2 * x for x in range(4)]
        for x in range(4):
            if from_acc:
                o.append('v_accvgpr_read_b32 %s, %s' % (vr(T[x] + 1), ar(src + 4 * g + x)))
        for x in range(4):
            s = vr(T[x] + 1) if from_acc else vr(src + 4 * g + x)
            o.append('v_lshlrev_b32 %s, 16, %s' % (vr(T[x]), s))
        for x in range(4):
            s = vr(T[x] + 1) if from_acc else vr(src + 4 * g + x)
            o.append('v_and_b32 %s, %s, %s' % (vr(T[x] + 1), sr(S_MASK), s))
        for x in range(4):
            o.append('v_pk_mul_f32 %s, %s, %s' % (vr(T[x], 2), vr(T[x], 2), sr(S_C, 2)))
        for x in range(4):
            o.append('v_cvt_pk_bf16_f32 %s, %s, %s' % (vr(T[x]), vr(T[x]), vr(T[x] + 1)))
        for x in range(4):
            o.append('v_accvgpr_write_b32 %s, %s' % (ar(A_Q + 16 * j + 4 * g + x), vr(T[x])))
    return o


STAGE = 131072


def epi_head(j, h):
    l, u = vr(V_L[j]), vr(V_U)
    return ['v_mov_b32 %s, %s' % (u, l),
            'v_permlane16_swap_b32 %s, %s' % (l, u),
            'v_add_f32 %s, %s, %s' % (l, l, u),
            'v_mov_b32 %s, %s' % (u, l),
            'v_permlane32_swap_b32 %s, %s' % (l, u),
            'v_add_f32 %s, %s, %s' % (l, l, u),
            'v_rcp_f32 %s, %s' % (vr(V_R), l),
            'v_cmp_nge_f32 %s, %s, %s' % (sr(96, 2), sr(S_THR), l),
            's_or_b64 %s, %s, %s' % (sr(S_FLAG[h], 2), sr(S_FLAG[h], 2), sr(96, 2))]


def epi_pack(j, pk=True):
    o = []
    b0 = OB + 32 * j
    for h in range(2):
        if pk:
            for x in range(8):
                b = b0 + 16 * h + 2 * x
                o.append('v_pk_mul_f32 %s, %s, %s op_sel_hi:[1,0]' % (vr(b, 2), vr(b, 2), vr(V_R, 2)))
        else:
            for x in range(16):
                b = b0 + 16 * h + x
                o.append('v_mul_f32 %s, %s, %s' % (vr(b), vr(V_R), vr(b)))
        for db in range(4 * h, 4 * h + 4):
            b = b0 + 4 * db
            o.append('v_cvt_pk_bf16_f32 %s, %s, %s' % (vr(b), vr(b), vr(b + 1)))
            o.append('v_cvt_pk_bf16_f32 %s, %s, %s' % (vr(b + 1), vr(b + 2), vr(b + 3)))
    return o


def epi_write(j):
    return ['ds_write_b64 %s, %s offset:%d' % (vr(V_PW), vr(OB + 32 * j + 4 * db, 2), db * 32) for db in range(8)]


def epi_direct(j, srd, fl):
    o = ['s_add_u32 %s, %s, %d' % (sr(S_SO), sr(S_OW), j * 4096)]
    for mm in range(2):
        for m in (2 * mm, 2 * mm + 1):
            b = OB + 32 * j + 8 * m
            for x in range(4):
                o.append('v_pk_mul_f32 %s, %s, %s op_sel_hi:[1,0]' % (vr(b + 2 * x, 2), vr(b + 2 * x, 2), vr(V_R, 2)))
        for m in (2 * mm, 2 * mm + 1):
            b = OB + 32 * j + 8 * m
            for x in range(4):
                o.append('v_cvt_pk_bf16_f32 %s, %s, %s' % (vr(b + x), vr(b + 2 * x), vr(b + 2 * x + 1)))
        for m in (2 * mm, 2 * mm + 1):
            b = OB + 32 * j + 8 * m
            o.append('v_permlane16_swap_b32 %s, %s' % (vr(b), vr(b + 2)))
            o.append('v_permlane16_swap_b32 %s, %s' % (vr(b + 1), vr(b + 3)))
        for m in (2 * mm, 2 * mm + 1):
            b = OB + 32 * j + 8 * m
            o.append('buffer_store_dwordx4 %s, %s, %s, %s offen offset:%d%s ; @st' % (vr(b, 4), vr(V_OS), sr(srd, 4), sr(S_SO), m * 64, fl))
    return o


def epi_spread(gaps, j, k, srd, fl, parked, tight=False):
    place(gaps, epi_write(j), [k + 1 + 2 * x for x in range(8)])
    place(gaps, epi_fetch(j, parked), [k + 17, k + 18, k + 19, k + 20])
    if not parked:
        place(gaps, epi_store(j, srd, fl), [k + 22, k + 26, k + 27, k + 28, k + 30] if tight else [k + 22, k + 26, k + 30, k + 34, k + 38])


def odst(j, parked):
    return (lambda p: ar(A_SP + 16 * (j - 2) + 4 * p, 4)) if parked else (lambda p: vr(OB + 32 * j + 4 * p, 4))


def epi_fetch(j, parked=False):
    return ['ds_read_b128 %s, %s offset:%d' % (odst(j, parked)(p), vr(V_PR), p * 1088) for p in range(4)]


def epi_store(j, srd, fl, parked=False):
    o = ['s_add_u32 %s, %s, %d' % (sr(S_SO), sr(S_OW), j * 4096)]
    for p in range(4):
        o.append('buffer_store_dwordx4 %s, %s, %s, %s offen offset:%d%s ; @st' % (odst(j, parked)(p), vr(V_LIN), sr(srd, 4), sr(S_SO), p * 1024, fl))
    return o


def is_mem(t):
    return t.startswith(('ds_', 'buffer_', 'global_'))


def cost(t):
    if t.startswith(('v_exp', 'v_rcp')):
        return 8
    if t.endswith(':'):
        return 0
    return 4


def merge(a, mfmas, fillers, budget=8):
    fi = 0
    for mi, (text, need) in enumerate(mfmas):
        while fi < need:
            assert fillers[fi][1] <= mi, (fillers[fi], mi, text)
            a.e(fillers[fi][0])
            fi += 1
        a.e(text)
        b = budget
        valu = False
        while fi < len(fillers) and fillers[fi][1] <= mi + 1 and b > 0:
            t = fillers[fi][0]
            if is_mem(t) and valu:
                break
            if cost(t) > b and b < budget:
                break
            valu = valu or t.startswith('v_')
            b -= cost(t)
            a.e(t)
            fi += 1
    while fi < len(fillers):
        a.e(fillers[fi][0])
        fi += 1


def set_srd(a, srd, ptr, off, size):
    a.e('s_add_u32 %s, %s, %s' % (sr(srd), sr(ptr), sr(off)))
    a.e('s_addc_u32 %s, %s, 0' % (sr(srd + 1), sr(ptr + 1)))
    a.e('s_and_b32 %s, %s, 0xffff' % (sr(srd + 1), sr(srd + 1)))
    a.e('s_mov_b32 %s, %s' % (sr(srd + 2), size))


W0 = 14
DG = [51, 55, 63, 67, 71, 75, 79, 83, 87, 91, 95]


def body_tables(opt, slot, cold=False, fresh=False, dma=True, kpre=True):
    sbuf = lambda u: (slot + u) & 1
    groups = [qk(0, sbuf(0)), pv(4, sbuf(-1)), qk(1, sbuf(1)), pv(0, sbuf(0), fresh), qk(2, sbuf(2)), pv(1, sbuf(1), fresh),
              qk(3, sbuf(3)), pv(2, sbuf(2), fresh), qk(4, sbuf(4)), pv(3, sbuf(3), fresh)]
    mf = [t for g in groups for t in g]
    gaps = [[] for _ in range(160)]
    if cold:
        for k in range(16, 32):
            mf[k] = None
    else:
        for g, t in softmax_ops(4, sbuf(-1)):
            k = 128 + W0 + g - 160
            if k >= 0:
                gaps[k].append((5, t))
    for u in range(5):
        for g, t in softmax_ops(u, sbuf(u), fresh):
            k = 32 * u + W0 + g
            if cold and u == 0 and k < 32:
                k = min(7 + g, 15)
            if k < 160:
                gaps[k].append((5, t))
    for i in range(16):
        for t in range(2):
            gaps[(i if i < 7 else 33 + (i - 7)) if cold else 17 + 2 * i].append((0, vread(i, t, slot)))
        if kpre:
            gaps[129 + 2 * i].append((0, kread(i, (slot + 1) & 3)))
    if dma and not opt.get('nodma'):
        dg = opt.get('dgaps', DG)
        if cold:
            place(gaps, dma_ops(opt, 2, 's2'), [7, 8, 10, 12, 14, 43, 47, 51, 55, 59, 63])
            dg = [79, 83, 87, 91, 95, 99, 103, 107, 111, 115, 119]
        place(gaps, dma_ops(opt, (slot + 3) & 3, 'kv'), dg)
    return mf, gaps


def place(gaps, ops, where):
    assert len(ops) == len(where), (len(ops), len(where))
    for k, t in zip(where, ops):
        gaps[k].append((0 if is_mem(t) else (1 if t.startswith('s_') else 6), t))


def block(gaps, k, ops):
    for t in ops:
        gaps[k].append((7, t))


def emit_body(a, opt, mf, gaps, barwait, auto=False, lo=0, hi=160):
    a.auto_nop = auto
    for k in range(lo, hi):
        if mf[k] is not None:
            a.e(mf[k])
        for _, t in sorted(gaps[k], key=lambda x: x[0]):
            a.e(t)
        if k == 127:
            for t in (barwait if isinstance(barwait, list) else [barwait]):
                a.e(t)
            if opt.get('trace'):
                a.e('s_memrealtime s[86:87]')
                a.e('s_waitcnt lgkmcnt(0)')
                a.e('s_mov_b32 m0, s88')
                a.e('v_writelane_b32 v29, s86, m0')
                a.e('s_add_u32 s88, s88, 1')
            a.e('s_barrier')
    a.auto_nop = True


def max_phase(a, extra, tag):
    M, F = [], []
    extra = list(extra)
    take = lambda n: [extra.pop(0) for _ in range(min(n, len(extra)))]
    for j in range(5):
        d = vr(NM + 4 * j, 4)
        for js in range(4):
            M.append(('%s %s, %s, %s, %s' % (MF, d, ar(A_K + 4 * js, 4), ar(A_Q + 16 * j + 4 * js, 4), '0' if js == 0 else d), 0))
    for t in take(12):
        F.append((t, 0))
    for j in range(5):
        n = NM + 4 * j
        t, u = vr(T0 + 2 * j), vr(T0 + 2 * j + 1)
        ops = ['v_max3_f32 %s, %s, %s, %s' % (t, vr(n), vr(n + 1), vr(n + 2)),
               'v_max_f32 %s, %s, %s' % (t, t, vr(n + 3)),
               'v_mov_b32 %s, %s' % (u, t)] + take(2) + [
               'v_permlane16_swap_b32 %s, %s' % (t, u),
               'v_max_f32 %s, %s, %s' % (t, t, u),
               'v_mov_b32 %s, %s' % (u, t)] + take(2) + [
               'v_permlane32_swap_b32 %s, %s' % (t, u)]
        ops += ['v_min_f32 %s, -%s, -%s' % (vr(n + x), t, u) for x in range(4)]
        for o in ops:
            F.append((o, min(4 * j + 7, 20)))
    merge(a, M, F)
    for t in extra:
        a.e(t)
    a.e('s_cmp_lg_u32 %s, 3' % sr(S_W))
    a.e('s_cbranch_scc1 L_nd%s' % tag)
    for x in range(4):
        a.e('v_mov_b32 %s, 0x%08x' % (vr(NM + 16 + x), f32bits(-1e30)))
    a.label('L_nd%s' % tag)
    a.e('s_nop 1')


ZERO4 = ['v_mov_b32 %s, 0' % vr(OB + 128 + x) for x in range(32)]
ZERO4P = ['v_mov_b64 %s, 0' % vr(OB + 128 + 2 * x, 2) for x in range(16)]


def slow_path(a, opt):
    e = a.e
    a.pend = []
    a.vmq = []
    e('s_or_b64 %s, %s, %s' % (sr(96, 2), sr(S_FLAG[0], 2), sr(S_FLAG[1], 2)))
    e('s_cbranch_scc0 L_fin')
    e('s_waitcnt vmcnt(0) lgkmcnt(0)')
    e('s_lshl_b32 %s, %s, 2' % (sr(S_T0), sr(S_WB)))
    for x in V_KA + V_VA:
        e('v_add_u32 %s, %s, %s' % (vr(x), sr(S_T0), vr(x)))
    for x in V_DK + V_DV:
        e('v_subrev_u32 %s, %s, %s' % (vr(x), sr(S_WB), vr(x)))
    e('s_mov_b32 %s, %s' % (sr(S_WB), sr(S_T0)))
    e('s_mov_b32 %s, 0' % sr(S_HI))
    a.label('L_sp_head')
    e('s_cmp_eq_u32 %s, 0' % sr(S_HI))
    e('s_cselect_b64 %s, %s, %s' % (sr(96, 2), sr(S_FLAG[0], 2), sr(S_FLAG[1], 2)))
    e('s_cmp_eq_u64 %s, 0' % sr(96, 2))
    e('s_cbranch_scc1 L_sp_next')
    e('s_lshl_b32 %s, s2, 1' % sr(S_T1))
    e('s_add_u32 %s, %s, %s' % (sr(S_T1), sr(S_T1), sr(S_HI)))
    e('s_mul_i32 %s, %s, %d' % (sr(S_T1), sr(S_T1), QH))
    set_srd(a, S_SRDQ, 4, S_T1, QH)
    set_srd(a, S_SRDO, 10, S_T1, QH)
    for j in range(5):
        for t in qdma(opt, j, S_WB, 0, 'q', qw=S_OW):
            e(t)
        e('s_waitcnt vmcnt(0)')
        for t in qread(lambda js: vr(OB + 4 * js, 4), V_KA[0], 0) + prescale(j, OB, False):
            e(t)

    def tile_dma(kv):
        for q in range(4):
            e('s_add_u32 m0, %s, %d' % (sr(S_WB), (VRING if kv else 0) + q * 4096))
            e('s_add_u32 %s, %s, %d' % (sr(S_T1), sr(S_OFF), q * 4096))
            for p in range(4):
                e('buffer_load_dwordx4 %s, %s, %s offen offset:%d lds' % (vr(V_DV[p & 1] if kv else V_DK[p]), sr(S_SRDV if kv else S_SRDK, 4), sr(S_T1), p * 1024))

    for j in range(5):
        e('v_mov_b32 %s, 0xff800000' % vr(V_L[j]))
        for x in range(4):
            e('v_mov_b32 %s, 0' % vr(NM + 4 * j + x))
    e('s_lshl_b32 %s, %s, 18' % (sr(S_OFF), sr(S_HI)))
    e('s_mov_b32 %s, 16' % sr(S_CNT))
    a.label('L_sp1')
    tile_dma(0)
    e('s_waitcnt vmcnt(0)')
    for i in range(16):
        e(kread(i, 0))
    for j in range(5):
        for t in qk(j, 0):
            e(t)
        for x in range(8):
            e('v_max3_f32 %s, %s, %s, %s' % (vr(V_L[j]), vr(V_L[j]), vr(SB[0] + 2 * x), vr(SB[0] + 2 * x + 1)))
    e('s_add_u32 %s, %s, %d' % (sr(S_OFF), sr(S_OFF), SLOT))
    e('s_sub_u32 %s, %s, 1' % (sr(S_CNT), sr(S_CNT)))
    e('s_cmp_lg_u32 %s, 0' % sr(S_CNT))
    e('s_cbranch_scc1 L_sp1')
    for j in range(5):
        t, u = vr(V_L[j]), vr(V_U)
        e('v_mov_b32 %s, %s' % (u, t))
        e('v_permlane16_swap_b32 %s, %s' % (t, u))
        e('v_max_f32 %s, %s, %s' % (t, t, u))
        e('v_mov_b32 %s, %s' % (u, t))
        e('v_permlane32_swap_b32 %s, %s' % (t, u))
        for x in range(4):
            e('v_min_f32 %s, -%s, -%s' % (vr(NM + 4 * j + x), t, u))
        e('v_mov_b32 %s, 0' % t)
    for x in range(80):
        e('v_mov_b64 %s, 0' % vr(OB + 2 * x, 2))
    e('s_lshl_b32 %s, %s, 18' % (sr(S_OFF), sr(S_HI)))
    e('s_mov_b32 %s, 16' % sr(S_CNT))
    a.label('L_sp2')
    tile_dma(0)
    tile_dma(1)
    e('s_waitcnt vmcnt(0)')
    for i in range(16):
        e(kread(i, 0))
    for i in range(16):
        for t in range(2):
            e(vread(i, t, 0))
    for j in range(5):
        for t in qk(j, 0):
            e(t)
        for _, t in softmax_ops(j, 0):
            e(t)
        for t in pv(j, 0):
            e(t)
    e('s_add_u32 %s, %s, %d' % (sr(S_OFF), sr(S_OFF), SLOT))
    e('s_sub_u32 %s, %s, 1' % (sr(S_CNT), sr(S_CNT)))
    e('s_cmp_lg_u32 %s, 0' % sr(S_CNT))
    e('s_cbranch_scc1 L_sp2')
    for j in range(5):
        for t in epi_head(j, 0)[:7] + epi_pack(j) + epi_write(j) + epi_fetch(j) + epi_store(j, S_SRDO, ''):
            e(t)
    e('s_waitcnt vmcnt(0)')
    a.label('L_sp_next')
    e('s_add_u32 %s, %s, 1' % (sr(S_HI), sr(S_HI)))
    e('s_cmp_lt_u32 %s, 2' % sr(S_HI))
    e('s_cbranch_scc1 L_sp_head')
    e('s_branch L_fin')


def gen(opt):
    a = Asm()
    a.lag = opt.get('lag', 8)
    e = a.e
    diag = opt.get('diag', False)
    stA = opt.get('sta', '')
    stP = opt.get('stp', '')
    stB = opt.get('stb', ' sc1')
    park = opt.get('park', True)

    def stamp(i, h, real=False):
        if diag:
            b = (64 if h == 0 else 48) + 2 * i
            e('%s s[%d:%d]' % ('s_memrealtime' if real else 's_memtime', b, b + 1))
            e('s_waitcnt lgkmcnt(0)')

    def dump_stamps():
        if not diag:
            return
        e('s_lshl_b32 s80, s2, 2')
        e('s_add_u32 s80, s80, %s' % sr(S_W))
        e('s_lshl_b32 s80, s80, 7')
        e('v_mov_b32 v31, s80')
        for q in range(8):
            for x in range(4):
                e('v_mov_b32 v%d, s%d' % (252 + x, (64 if q < 4 else 32) + 4 * q + x))
            e('s_mov_b64 exec, 1')
            e('global_store_dwordx4 v31, v[252:255], s[84:85] offset:%d' % (16 * q))
            e('s_mov_b64 exec, -1')
            e('s_nop 1')

    e('s_cmp_ge_u32 s2, 256')
    e('s_cbranch_scc1 L_end')
    e('s_load_dwordx8 s[4:11], s[0:1], 0')
    if diag:
        e('s_load_dwordx2 s[84:85], s[0:1], 40')
        stamp(0, 0)
        stamp(6, 0, True)
    e('v_lshrrev_b32 v244, 6, v0')
    e('v_and_b32 v0, 63, v0')
    e('v_readfirstlane_b32 %s, v244' % sr(S_W))
    cpf = opt.get('cpf', 64)
    if cpf:
        e('s_getpc_b64 s[46:47]')
        a.label('L_pc')
        e('s_lshr_b32 %s, s2, 3' % sr(S_T0))
        e('s_lshl_b32 %s, %s, 2' % (sr(S_T0), sr(S_T0)))
        e('s_add_u32 %s, %s, %s' % (sr(S_T0), sr(S_T0), sr(S_W)))
        e('s_and_b32 %s, %s, %d' % (sr(S_T0), sr(S_T0), cpf - 1))
        e('s_lshl_b32 %s, %s, 10' % (sr(S_T0), sr(S_T0)))
        e('s_min_u32 %s, %s, L_slow-L_pc-512' % (sr(S_T0), sr(S_T0)))
        e('v_lshl_add_u32 v245, v0, 4, %s' % sr(S_T0))
        e('global_load_dwordx4 %s, v245, s[46:47] ; @cpf' % ar(A_SP, 4))
    e('v_and_b32 v244, 15, v0')
    e('v_lshrrev_b32 v245, 4, v0')
    e('s_lshl_b32 %s, %s, 12' % (sr(S_WB), sr(S_W)))
    e('s_lshl_b32 %s, %s, 14' % (sr(S_QW), sr(S_W)))
    e('s_lshl_b32 %s, %s, 13' % (sr(S_SW), sr(S_W)))
    e('s_add_u32 %s, %s, %d' % (sr(S_SW), sr(S_SW), STAGE))
    e('s_lshl_b32 %s, s2, 1' % sr(S_HEAD))
    e('s_mul_i32 %s, %s, %d' % (sr(S_T0), sr(S_HEAD), QH))
    e('s_lshl_b32 %s, %s, 18' % (sr(S_T2), sr(S_HEAD)))
    for srd in (S_SRDK, S_SRDV, S_SRDQ, S_SRDO, S_SRDO2):
        e('s_mov_b32 %s, 0x00020000' % sr(srd + 3))
    e('v_lshlrev_b32 v246, 8, v245')
    e('v_add_u32 v246, %s, v246' % sr(S_WB))
    for p in range(4):
        e('v_add_u32 v247, %d, v245' % (4 * p))
        e('v_xor_b32 v247, v247, v244')
        e('v_lshl_add_u32 %s, v247, 4, v246' % vr(V_DK[p]))
    e('s_waitcnt lgkmcnt(0)')
    set_srd(a, S_SRDQ, 4, S_T0, QH)
    QAREA = [(S_WB, 2 * SLOT), (S_WB, 3 * SLOT), (S_WB, VRING + 2 * SLOT), (S_WB, VRING + 3 * SLOT), (S_SW, 0)]
    qd = [qdma(opt, j, QAREA[j][0], QAREA[j][1], 'q%d' % j) for j in range(5)]
    for t in qd[0] + qd[1]:
        e(t)
    for p in range(2):
        e('v_add_u32 v247, %d, v245' % (4 * p))
        e('v_lshlrev_b32 v247, 1, v247')
        e('v_xor_b32 v247, v247, v244')
        e('v_lshl_add_u32 %s, v247, 4, v246' % vr(V_DV[p]))
    c = f32bits(128 ** -0.5 * math.log2(math.e))
    e('s_mov_b32 %s, 0x%08x' % (sr(S_C), c))
    e('s_mov_b32 %s, 0x%08x' % (sr(S_C + 1), c))
    e('s_mov_b32 %s, 0x%08x' % (sr(S_THR), f32bits(opt.get('thr', 2.0 ** 24))))
    e('s_mov_b32 %s, 0xffff0000' % sr(S_MASK))
    e('s_mov_b32 %s, 0' % sr(S_OFF))
    e('s_mul_i32 %s, %s, %d' % (sr(S_OW), sr(S_W), 80 * 256))
    if opt.get('trace'):
        e('s_mov_b32 s88, 0')
        e('v_mov_b32 v29, 0')
    set_srd(a, S_SRDK, 6, S_T2, 2 * KH)
    set_srd(a, S_SRDV, 8, S_T2, 2 * KH)
    for js in range(4):
        e('v_add_u32 v247, %d, v245' % (4 * js))
        e('v_xor_b32 v247, v247, v244')
        e('v_lshlrev_b32 v247, 4, v247')
        e('v_lshl_add_u32 %s, v244, 8, v247' % vr(V_KA[js]))
    e('v_mul_u32_u24 v247, 272, v244')
    e('v_lshl_add_u32 v247, v245, 3, v247')
    e('v_add_u32 %s, %s, v247' % (vr(V_PW), sr(S_SW)))
    e('v_mul_u32_u24 v247, 272, v245')
    e('v_lshl_add_u32 v247, v244, 4, v247')
    e('v_add_u32 %s, %s, v247' % (vr(V_PR), sr(S_SW)))
    e('v_lshlrev_b32 %s, 4, v0' % vr(V_LIN))
    e('v_and_b32 v247, 1, v245')
    e('v_lshlrev_b32 v247, 5, v247')
    e('v_lshl_add_u32 v247, v244, 8, v247')
    e('v_lshrrev_b32 v248, 1, v245')
    e('v_lshl_add_u32 %s, v248, 4, v247' % vr(V_OS))
    e('v_bfe_u32 v246, v0, 2, 2')
    e('v_lshl_add_u32 v247, v245, 2, v246')
    e('v_and_b32 v248, 7, v247')
    e('v_lshlrev_b32 v247, 8, v247')
    e('v_and_b32 v249, 3, v0')
    e('v_lshl_add_u32 v247, v249, 3, v247')
    e('v_add_u32 v247, %d, v247' % VRING)
    for db in range(8):
        e('v_xor_b32 v249, %d, v248' % db)
        e('v_lshl_add_u32 %s, v249, 5, v247' % vr(V_VA[db]))
    set_srd(a, S_SRDO, 10, S_T0, QH)
    e('s_add_u32 %s, %s, %d' % (sr(S_T0), sr(S_T0), QH))
    set_srd(a, S_SRDO2, 10, S_T0, QH)
    e('s_mov_b64 %s, 0' % sr(S_FLAG[0], 2))
    e('s_mov_b64 %s, 0' % sr(S_FLAG[1], 2))
    e('s_mov_b32 %s, 4' % sr(S_CNT))
    e('s_mov_b32 %s, 0' % sr(S_ENDV))
    e('s_mov_b64 vcc, 0')
    QA = 252
    e('s_add_u32 %s, %s, %d' % (sr(S_T2), sr(S_WB), VRING))
    for t in qaddr(NM, S_WB) + qaddr(NM + 4, S_T2) + qaddr(NM + 8, S_SW):
        e(t)
    QRD = [(NM, 2 * SLOT), (NM, 3 * SLOT), (NM + 4, 2 * SLOT), (NM + 4, 3 * SLOT), (NM + 8, 0)]
    for t in qd[2]:
        e(t)
    s0, s1 = dma_ops(opt, 0, 's0'), dma_ops(opt, 1, 's1')
    later = {0: qd[3], 1: qd[4], 2: s0[:5], 3: s0[5:], 4: s1[:5]}
    for j in range(5):
        e('WAITVM q%d' % j)
        if j == 0:
            stamp(1, 0)
        for t in qread(lambda js: vr(OB + 16 * j + 4 * js, 4), QRD[j][0], QRD[j][1]):
            e(t)
        for t in later[j]:
            e(t)
        for t in prescale(j, OB + 16 * j, False):
            e(t)
    set_srd(a, S_SRDQ, 4, S_T0, QH)
    e('WAITVM s0k')
    e('s_barrier')
    for i in range(16):
        e(kread(i, 0))
    for t in s1[5:]:
        e(t)
    m_head = a.mark()
    stamp(2, 0)
    max_phase(a, ZERO4, 'a')
    e('WAITVM s0')
    e('s_barrier')
    stamp(3, 0)
    mf, gaps = body_tables(opt, 0, cold=True, fresh=True)
    emit_body(a, opt, mf, gaps, 's_waitcnt vmcnt(16)', auto=True)
    e('s_branch L_b1')
    m_first_end = a.mark()

    marks = {}

    def seed_pend(slot):
        a.pend = [(Ins(kread(i, slot)).wr, a.nmfma - (31 - 2 * i)) for i in range(16)]

    cg = 155 if opt.get('trace') else 103
    FREE0 = [1, 3, 7, 11, 15]
    variants = []
    a.raw('.p2align 6')
    def qvariant(gaps, rd, dm):
        if rd is not None:
            place(gaps, qaddr(T0, S_SW), [0, 0, 1, 1])
            place(gaps, qread(lambda js: ar(A_SP + 16 * rd[1] + 4 * js, 4), T0, rd[0] * 4096), [5, 5, 9, 13])
        place(gaps, qdma(opt, dm[0], S_SW, dm[1] * 4096, 'q'), [1, 2, 3, 7, 11, 15])

    for name, rd, dm, j in (('qa3', None, (2, 0), 0), ('qa2', (1, 1), (4, 0), 0), ('qb3', 0, 0, 2), ('qb2', 0, 0, 3), ('qb1', 0, 0, 4), ('qa1', None, (0, 0), 0)):
        a.label('L_' + name)
        m0_ = a.mark()
        seed_pend(0)
        mf, gaps = body_tables(opt, 0)
        if name[1] == 'a':
            qvariant(gaps, rd, dm)
        elif park:
            place(gaps, epi_store(j, S_SRDO, stP, parked=True), FREE0)
        emit_body(a, opt, mf, gaps, None, lo=0, hi=16)
        if name != 'qa1':
            e('s_branch L_b0g1')
        variants.append((m0_, a.mark()))
    for slot in range(4):
        mf, gaps = body_tables(opt, slot)
        bw = 's_waitcnt vmcnt(16)'
        if slot == 0 and park and opt.get('exactw', True):
            bw = 's_waitcnt vmcnt(20)'
        if slot == 1:
            gaps[99].append((1, 's_sub_u32 %s, %s, 2' % (sr(S_T2), sr(S_CNT))))
            gaps[cg].append((1, 's_cmp_le_u32 %s, 1' % sr(S_T2)))
        if slot == 2:
            gaps[99].append((1, 's_sub_u32 %s, %s, 1' % (sr(S_CNT), sr(S_CNT))))
            if opt.get('exactw', True):
                gaps[103].append((1, 's_cmp_le_u32 %s, 1' % sr(S_T2)))
                bw = ['s_waitcnt vmcnt(20)', 's_cbranch_scc1 L_w2', 's_waitcnt vmcnt(16)', 'L_w2:']
            gaps[155].append((1, 's_cmp_eq_u32 %s, %s' % (sr(S_CNT), sr(S_ENDV))))
        if slot == 3:
            gaps[99].append((1, 's_sub_u32 %s, %s, %s' % (sr(S_T2), sr(S_CNT), sr(S_ENDV))))
            gaps[cg].append((1, 's_cmp_eq_u32 %s, 3' % sr(S_T2)))
        marks[slot] = a.mark()
        if slot != 0:
            a.label('L_b%d' % slot)
            seed_pend(slot)
            emit_body(a, opt, mf, gaps, None, lo=0, hi=16)
        a.label('L_b%dg1' % slot)
        a.pend = []
        emit_body(a, opt, mf, gaps, bw, lo=16)
        if slot == 1:
            e('s_cbranch_scc1 L_qlds')
        if slot == 2:
            e('s_cbranch_scc1 L_exit')
    marks[4] = a.mark()
    e('s_cbranch_vccnz L_backb')
    e('s_cbranch_scc1 L_qa3')
    e('s_cmp_eq_u32 %s, 2' % sr(S_T2))
    e('s_cbranch_scc1 L_qa2')
    e('s_branch L_qa1')
    a.label('L_backb')
    e('s_cbranch_scc1 L_qb3')
    e('s_cmp_eq_u32 %s, 2' % sr(S_T2))
    e('s_cbranch_scc1 L_qb2')
    e('s_branch L_qb1')
    a.label('L_qlds')
    e('s_cmp_eq_u32 %s, 2' % sr(S_CNT))
    e('s_cbranch_scc1 L_qm2')
    v2 = []
    for name, rd, dm in (('qm3', (0, 0), (3, 1)), ('qm2', (0, 2), (1, 1))):
        a.label('L_' + name)
        m0_ = a.mark()
        seed_pend(2)
        mf, gaps = body_tables(opt, 2)
        qvariant(gaps, rd, dm)
        emit_body(a, opt, mf, gaps, None, lo=0, hi=16)
        e('s_branch L_b2g1')
        v2.append((m0_, a.mark()))
    a.label('L_exit')
    e('s_cbranch_vccnz L_lastb')
    m_last = a.mark()
    stamp(4, 0)
    seed_pend(3)
    a.vmq = ['n1'] * 8 + ['n2'] * 8
    mf, gaps = body_tables(opt, 3)
    place(gaps, qaddr(QA, S_SW), [3, 7, 11, 15])
    for j in range(2):
        place(gaps, qread(lambda js: ar(A_Q + 16 * j + 4 * js, 4), QA, j * 4096), [32 * j + 16] * 4)
        block(gaps, 32 * j + 29, prescale(j, A_Q + 16 * j, True))
    for j in (2, 3, 4):
        block(gaps, 32 * j + 17, prescale(j, A_SP + 16 * (j - 2), True))
    for j in range(3):
        k = 48 + 32 * j + 17
        pk_ = park and j >= 2
        block(gaps, k, epi_head(j, 0) + epi_pack(j))
        epi_spread(gaps, j, k, S_SRDO, stA, pk_, tight=(j == 2))
    emit_body(a, opt, mf, gaps, 'WAITVM n1', auto=True)
    stamp(5, 0)
    stamp(7, 0, True)
    for x in (0, 1, 2):
        stamp(x, 1)
    stamp(6, 1, True)
    e('s_mov_b32 %s, 14' % sr(S_CNT))
    e('s_mov_b32 %s, 10' % sr(S_ENDV))
    e('s_mov_b64 vcc, -1')
    max_phase(a, epi_head(3, 0) + epi_pack(3, False), 'b')
    stamp(3, 1)
    mf, gaps = body_tables(opt, 0, fresh=True)
    epi_spread(gaps, 3, -1, S_SRDO, stA, park)
    block(gaps, 47, epi_head(4, 0) + epi_pack(4))
    epi_spread(gaps, 4, 47, S_SRDO, stA, park)
    block(gaps, 115, ZERO4P)
    emit_body(a, opt, mf, gaps, 'WAITVM n2', auto=True)
    e('s_branch L_b1')
    m_last_end = a.mark()
    a.label('L_lastb')
    m_lastb = a.mark()
    stamp(4, 1)
    seed_pend(3)
    a.vmq = ['n2'] * 8
    a.drop = opt.get('droplast', ())
    mf, gaps = body_tables(opt, 3, dma=False, kpre=False)
    for j in range(3):
        k = 48 + 32 * j + 17
        block(gaps, k, epi_head(j, 1) + epi_pack(j))
        epi_spread(gaps, j, k, S_SRDO2, stB, False, tight=(j == 2))
    emit_body(a, opt, mf, gaps, 'WAITVM n2', auto=True)
    sb4 = (3 + 4) & 1
    F = [(t, 0) for g, t in softmax_ops(4, sb4) if 128 + W0 + g >= 160]
    n4 = len(F)
    F += [(t, 0) for t in epi_head(3, 1) + epi_pack(3)]
    n4 = len(F)
    h4 = epi_head(4, 1)
    for x, t in enumerate(epi_write(3)):
        F += [(t, 0), (h4[x], 0)]
    F += [(h4[8], 0)] + [(t, 0) for t in epi_fetch(3)]
    merge(a, [(t, n4) for t in pv(4, sb4)], F)
    d4 = epi_direct(4, S_SRDO2, stB)
    for t in epi_store(3, S_SRDO2, stB) + d4:
        e(t)
    stamp(5, 1)
    stamp(7, 1, True)
    a.drop = ()
    m_end = a.mark()
    a.label('L_slow')
    slow_path(a, opt)
    a.label('L_fin')
    if opt.get('dbg'):
        e('s_load_dwordx2 s[82:83], s[0:1], 32')
        e('s_waitcnt lgkmcnt(0)')
        vals = ['s_not_b32 s80, s76', 's_mov_b32 s80, s62', 's_sub_u32 s80, s58, s64', 's_sub_u32 s80, s70, s64', 's_sub_u32 s80, s72, s70',
                's_sub_u32 s80, s74, s72', 's_sub_u32 s80, s56, s54', 's_sub_u32 s80, s58, s56', 's_sub_u32 s80, s62, s76', 's_sub_u32 s80, s78, s76']
        e('s_mov_b64 exec, 1')
        e('v_mov_b32 v31, 0')
        for n, t in enumerate(vals):
            e(t)
            e('v_mov_b32 v30, s80')
            e('global_atomic_umax v31, v30, s[82:83] offset:%d' % (4 * n))
            e('s_nop 1')
        for n, t in enumerate(vals[2:8]):
            e(t)
            e('s_not_b32 s80, s80')
            e('v_mov_b32 v30, s80')
            e('global_atomic_umax v31, v30, s[82:83] offset:%d' % (40 + 4 * n))
            e('s_nop 1')
        e('s_mov_b64 exec, -1')
    else:
        dump_stamps()
    if opt.get('trace'):
        e('s_lshl_b32 s80, s80, 1')
        e('s_add_u32 s80, s80, 131072')
        e('v_lshl_add_u32 v31, v0, 2, s80')
        e('global_store_dword v31, v29, s[84:85]')
    a.label('L_end')
    e('s_endpgm')

    I = a.ins
    B = lambda s: I[marks[s]:marks[s + 1]]
    bad = []
    seq = I[m_head:m_first_end] + B(1) + B(2) + B(3)
    for lo, hi in variants:
        seq += I[lo:hi] + B(0) + B(1) + B(2) + B(3)
    bad += check_hazards(seq, 'loop')
    g1 = [k for k in range(marks[2], marks[3]) if I[k].text == 'L_b2g1:'][0]
    for lo, hi in v2:
        bad += check_hazards(B(1) + I[lo:hi] + I[g1:marks[3]], 'mid')
    bad += check_hazards(B(2) + I[m_last:m_last_end] + B(1) + B(2) + I[m_lastb:m_end], 'edges')
    sl = I[m_end:]
    bad += check_hazards(sl + sl, 'slow')
    for b in bad[:8]:
        print('HAZARD', b, file=sys.stderr)
    assert not bad or opt.get('nocheck')
    print('body instrs: %d, total %d' % (sum(1 for i in B(1) if i.kind != 'none'), len(I)), file=sys.stderr)

    hdr = open('cdna_kernels/%s.s.ref' % NAME).read().split('\n')
    out = '\n'.join(hdr[:9]) + '\n'
    out += '; @launch grid=(256,1,1) block=(256,1,1) lds=%d\n' % LDS_BYTES
    out += '.amdgcn_target "amdgcn-amd-amdhsa--gfx950"\n.text\n.globl %s_kernel\n.p2align 8\n.type %s_kernel,@function\n%s_kernel:\n' % (NAME, NAME, NAME)
    out += a.text()
    out += '''.section .rodata,"a"
.p2align 6
.amdhsa_kernel %s_kernel
  .amdhsa_next_free_vgpr 512
  .amdhsa_next_free_sgpr 102
  .amdhsa_accum_offset 256
  .amdhsa_group_segment_fixed_size 0
  .amdhsa_kernarg_size 48
  .amdhsa_user_sgpr_count 2
  .amdhsa_user_sgpr_kernarg_segment_ptr 1
  .amdhsa_system_sgpr_workgroup_id_x 1
.end_amdhsa_kernel
''' % NAME
    return out


if __name__ == '__main__':
    opt = {}
    outp = sys.argv[1]
    for kv in sys.argv[2:]:
        k, v = kv.split('=', 1)
        try:
            v = eval(v)
        except Exception:
            pass
        opt[k] = v
    open(outp, 'w').write(gen(opt))
```

```python
import sys, struct, math
from asmlib import Asm, Ins, check_hazards

NAME = 'standalone__mha_softmax__near_ridge'
LDS_BYTES = 163840
QH = 304 * 256
KH = 1024 * 256
VRING = 65536
SLOT = 16384

V_KA = [1, 2, 3, 4]
V_VA = [5, 6, 7, 8, 9, 10, 11, 12]
V_DK = [13, 14, 15, 16]
V_DV = [17, 18]
V_L = [19, 20, 21, 22, 23]
V_OS = 27
V_PW, V_PR, V_LIN = 24, 25, 26
V_R, V_U = 28, 30
OB = 32
NM = 192
SB = (212, 228)
T0 = 244
A_Q, A_K, A_V, A_SP = 0, 80, 144, 208
S_SRDK, S_SRDV, S_SRDQ, S_SRDO = 12, 16, 20, 24
S_OFF, S_WB, S_CNT, S_HI, S_W = 28, 29, 30, 31, 32
S_C, S_THR, S_MASK = 34, 36, 37
S_FLAG = (38, 90)
S_ENDV = 40
S_T0, S_T1, S_T2 = 41, 42, 43
S_HEAD = 44
S_QW, S_SW, S_OW, S_SO = 98, 99, 100, 101
S_N, S_R = 33, 45
S_SRDO2 = 92


def f32bits(x):
    return struct.unpack('<I', struct.pack('<f', x))[0]


def vr(b, n=1):
    return 'v%d' % b if n == 1 else 'v[%d:%d]' % (b, b + n - 1)


def ar(b, n=1):
    return 'a%d' % b if n == 1 else 'a[%d:%d]' % (b, b + n - 1)


def sr(b, n=1):
    return 's%d' % b if n == 1 else 's[%d:%d]' % (b, b + n - 1)


MF = 'v_mfma_f32_16x16x32_bf16'
ALAG = 0


def qk(j, sb):
    out = []
    for kt in range(4):
        d = vr(SB[sb] + 4 * kt, 4)
        for js in range(4):
            c = vr(NM + 4 * j, 4) if js == 0 else d
            out.append('%s %s, %s, %s, %s' % (MF, d, ar(A_K + 16 * kt + 4 * js, 4), ar(A_Q + 16 * j + 4 * js, 4), c))
    return out


def pv(j, sb, czero=False):
    out = []
    for db in range(8):
        o = vr(OB + 32 * j + 4 * db, 4)
        for ks in range(2):
            c = '0' if (czero and ks == 0) else o
            out.append('%s %s, %s, %s, %s' % (MF, o, ar(A_V + 32 * ks + 4 * db, 4), vr(SB[sb] + 4 * ks, 4), c))
    return out


def kread(i, slot):
    kt, js = i >> 2, i & 3
    return 'ds_read_b128 %s, %s offset:%d' % (ar(A_K + 4 * i, 4), vr(V_KA[js]), slot * SLOT + kt * 4096)


def vread(i, t, slot):
    db, ks = i >> 1, i & 1
    return 'ds_read_b64_tr_b16 %s, %s offset:%d' % (ar(A_V + 32 * ks + 4 * db + 2 * t, 2), vr(V_VA[db]), slot * SLOT + ks * 8192 + t * 4096)


def softmax_ops(j, sb, first=False):
    s = SB[sb]
    l = V_L[j]
    ops = []
    for r in range(16):
        ops.append((2 * r - ALAG, 'v_exp_f32 %s, %s' % (vr(s + r), vr(s + r))))
        if first and r == 0:
            ops.append((2 * r + 1, 'v_mov_b32 %s, %s' % (vr(l), vr(s + r))))
        else:
            ops.append((2 * r + 1, 'v_add_f32 %s, %s, %s' % (vr(l), vr(l), vr(s + r))))
        if r & 1:
            k = r >> 1
            ops.append((2 * r + 1, 'v_cvt_pk_bf16_f32 %s, %s, %s' % (vr(s + k), vr(s + 2 * k), vr(s + 2 * k + 1))))
    ops.sort(key=lambda x: x[0])
    return ops


def dma_ops(opt, slot, tag):
    fl = opt.get('dmaflags', ' nt')
    o = ['s_add_u32 m0, %s, %d' % (sr(S_WB), slot * SLOT)]
    for p in range(4):
        o.append('buffer_load_dwordx4 %s, %s, %s offen offset:%d%s lds ; @%s' % (vr(V_DK[p]), sr(S_SRDK, 4), sr(S_OFF), p * 1024, fl, tag + 'k'))
    o.append('s_add_u32 m0, %s, %d' % (sr(S_WB), VRING + slot * SLOT))
    for p in range(4):
        o.append('buffer_load_dwordx4 %s, %s, %s offen offset:%d%s lds ; @%s' % (vr(V_DV[p & 1]), sr(S_SRDV, 4), sr(S_OFF), p * 1024, fl, tag))
    if opt.get('rot', 1):
        o.append('s_add_u32 %s, %s, %d\n    s_xor_b32 %s, %s, %s' % (sr(S_N), sr(S_N), SLOT, sr(S_OFF), sr(S_N), sr(S_R)))
    else:
        o.append('s_add_u32 %s, %s, %d' % (sr(S_OFF), sr(S_OFF), SLOT))
    return o


def qdma(opt, j, m0base, m0off, tag, qw=None):
    fl = opt.get('qflags', ' nt')
    o = ['s_add_u32 m0, %s, %d' % (sr(m0base), m0off),
         's_add_u32 %s, %s, %d' % (sr(S_T1), sr(S_QW if qw is None else qw), j * 4096)]
    for p in range(4):
        o.append('buffer_load_dwordx4 %s, %s, %s offen offset:%d%s lds ; @%s' % (vr(V_DK[p]), sr(S_SRDQ, 4), sr(S_T1), p * 1024, fl, tag))
    return o


def qaddr(base, sg):
    return ['v_add_u32 %s, %s, %s' % (vr(base + js), sr(sg), vr(V_KA[js])) for js in range(4)]


def qread(dst, base, off):
    return ['ds_read_b128 %s, %s offset:%d' % (dst(js), vr(base + js), off) for js in range(4)]


def prescale(j, src, from_acc):
    o = []
    for g in range(4):
        T = [T0 + 2 * x for x in range(4)]
        for x in range(4):
            if from_acc:
                o.append('v_accvgpr_read_b32 %s, %s' % (vr(T[x] + 1), ar(src + 4 * g + x)))
        for x in range(4):
            s = vr(T[x] + 1) if from_acc else vr(src + 4 * g + x)
            o.append('v_lshlrev_b32 %s, 16, %s' % (vr(T[x]), s))
        for x in range(4):
            s = vr(T[x] + 1) if from_acc else vr(src + 4 * g + x)
            o.append('v_and_b32 %s, %s, %s' % (vr(T[x] + 1), sr(S_MASK), s))
        for x in range(4):
            o.append('v_pk_mul_f32 %s, %s, %s' % (vr(T[x], 2), vr(T[x], 2), sr(S_C, 2)))
        for x in range(4):
            o.append('v_cvt_pk_bf16_f32 %s, %s, %s' % (vr(T[x]), vr(T[x]), vr(T[x] + 1)))
        for x in range(4):
            o.append('v_accvgpr_write_b32 %s, %s' % (ar(A_Q + 16 * j + 4 * g + x), vr(T[x])))
    return o


STAGE = 131072


def epi_head(j, h):
    l, u = vr(V_L[j]), vr(V_U)
    return ['v_mov_b32 %s, %s' % (u, l),
            'v_permlane16_swap_b32 %s, %s' % (l, u),
            'v_add_f32 %s, %s, %s' % (l, l, u),
            'v_mov_b32 %s, %s' % (u, l),
            'v_permlane32_swap_b32 %s, %s' % (l, u),
            'v_add_f32 %s, %s, %s' % (l, l, u),
            'v_rcp_f32 %s, %s' % (vr(V_R), l),
            'v_cmp_nge_f32 %s, %s, %s' % (sr(96, 2), sr(S_THR), l),
            's_or_b64 %s, %s, %s' % (sr(S_FLAG[h], 2), sr(S_FLAG[h], 2), sr(96, 2))]


def epi_pack(j, pk=True):
    o = []
    b0 = OB + 32 * j
    for h in range(2):
        if pk:
            for x in range(8):
                b = b0 + 16 * h + 2 * x
                o.append('v_pk_mul_f32 %s, %s, %s op_sel_hi:[1,0]' % (vr(b, 2), vr(b, 2), vr(V_R, 2)))
        else:
            for x in range(16):
                b = b0 + 16 * h + x
                o.append('v_mul_f32 %s, %s, %s' % (vr(b), vr(V_R), vr(b)))
        for db in range(4 * h, 4 * h + 4):
            b = b0 + 4 * db
            o.append('v_cvt_pk_bf16_f32 %s, %s, %s' % (vr(b), vr(b), vr(b + 1)))
            o.append('v_cvt_pk_bf16_f32 %s, %s, %s' % (vr(b + 1), vr(b + 2), vr(b + 3)))
    return o


def epi_write(j):
    return ['ds_write_b64 %s, %s offset:%d' % (vr(V_PW), vr(OB + 32 * j + 4 * db, 2), db * 32) for db in range(8)]


def epi_direct(j, srd, fl):
    o = ['s_add_u32 %s, %s, %d' % (sr(S_SO), sr(S_OW), j * 4096)]
    for mm in range(2):
        for m in (2 * mm, 2 * mm + 1):
            b = OB + 32 * j + 8 * m
            for x in range(4):
                o.append('v_pk_mul_f32 %s, %s, %s op_sel_hi:[1,0]' % (vr(b + 2 * x, 2), vr(b + 2 * x, 2), vr(V_R, 2)))
        for m in (2 * mm, 2 * mm + 1):
            b = OB + 32 * j + 8 * m
            for x in range(4):
                o.append('v_cvt_pk_bf16_f32 %s, %s, %s' % (vr(b + x), vr(b + 2 * x), vr(b + 2 * x + 1)))
        for m in (2 * mm, 2 * mm + 1):
            b = OB + 32 * j + 8 * m
            o.append('v_permlane16_swap_b32 %s, %s' % (vr(b), vr(b + 2)))
            o.append('v_permlane16_swap_b32 %s, %s' % (vr(b + 1), vr(b + 3)))
        for m in (2 * mm, 2 * mm + 1):
            b = OB + 32 * j + 8 * m
            o.append('buffer_store_dwordx4 %s, %s, %s, %s offen offset:%d%s ; @st' % (vr(b, 4), vr(V_OS), sr(srd, 4), sr(S_SO), m * 64, fl))
    return o


def epi_spread(gaps, j, k, srd, fl, parked, tight=False):
    place(gaps, epi_write(j), [k + 1 + 2 * x for x in range(8)])
    place(gaps, epi_fetch(j, parked), [k + 17, k + 18, k + 19, k + 20])
    if not parked:
        place(gaps, epi_store(j, srd, fl), [k + 22, k + 26, k + 27, k + 28, k + 30] if tight else [k + 22, k + 26, k + 30, k + 34, k + 38])


def odst(j, parked):
    return (lambda p: ar(A_SP + 16 * (j - 2) + 4 * p, 4)) if parked else (lambda p: vr(OB + 32 * j + 4 * p, 4))


def epi_fetch(j, parked=False):
    return ['ds_read_b128 %s, %s offset:%d' % (odst(j, parked)(p), vr(V_PR), p * 1088) for p in range(4)]


def epi_store(j, srd, fl, parked=False):
    o = ['s_add_u32 %s, %s, %d' % (sr(S_SO), sr(S_OW), j * 4096)]
    for p in range(4):
        o.append('buffer_store_dwordx4 %s, %s, %s, %s offen offset:%d%s ; @st' % (odst(j, parked)(p), vr(V_LIN), sr(srd, 4), sr(S_SO), p * 1024, fl))
    return o


def is_mem(t):
    return t.startswith(('ds_', 'buffer_', 'global_'))


def cost(t):
    if t.startswith(('v_exp', 'v_rcp')):
        return 8
    if t.endswith(':'):
        return 0
    return 4


def merge(a, mfmas, fillers, budget=8):
    fi = 0
    for mi, (text, need) in enumerate(mfmas):
        while fi < need:
            assert fillers[fi][1] <= mi, (fillers[fi], mi, text)
            a.e(fillers[fi][0])
            fi += 1
        a.e(text)
        b = budget
        valu = False
        while fi < len(fillers) and fillers[fi][1] <= mi + 1 and b > 0:
            t = fillers[fi][0]
            if is_mem(t) and valu:
                break
            if cost(t) > b and b < budget:
                break
            valu = valu or t.startswith('v_')
            b -= cost(t)
            a.e(t)
            fi += 1
    while fi < len(fillers):
        a.e(fillers[fi][0])
        fi += 1


def set_srd(a, srd, ptr, off, size):
    a.e('s_add_u32 %s, %s, %s' % (sr(srd), sr(ptr), sr(off)))
    a.e('s_addc_u32 %s, %s, 0' % (sr(srd + 1), sr(ptr + 1)))
    a.e('s_and_b32 %s, %s, 0xffff' % (sr(srd + 1), sr(srd + 1)))
    a.e('s_mov_b32 %s, %s' % (sr(srd + 2), size))


W0 = 14
DG = [51, 55, 63, 67, 71, 75, 79, 83, 87, 91, 95]


def body_tables(opt, slot, cold=False, fresh=False, dma=True, kpre=True):
    sbuf = lambda u: (slot + u) & 1
    groups = [qk(0, sbuf(0)), pv(4, sbuf(-1)), qk(1, sbuf(1)), pv(0, sbuf(0), fresh), qk(2, sbuf(2)), pv(1, sbuf(1), fresh),
              qk(3, sbuf(3)), pv(2, sbuf(2), fresh), qk(4, sbuf(4)), pv(3, sbuf(3), fresh)]
    mf = [t for g in groups for t in g]
    gaps = [[] for _ in range(160)]
    if cold:
        for k in range(16, 32):
            mf[k] = None
    else:
        for g, t in softmax_ops(4, sbuf(-1)):
            k = 128 + W0 + g - 160
            if k >= 0:
                gaps[k].append((5, t))
    for u in range(5):
        for g, t in softmax_ops(u, sbuf(u), fresh):
            k = 32 * u + W0 + g
            if cold and u == 0 and k < 32:
                k = min(7 + g, 15)
            if k < 160:
                gaps[k].append((5, t))
    for i in range(16):
        for t in range(2):
            gaps[(i if i < 7 else 33 + (i - 7)) if cold else 17 + 2 * i].append((0, vread(i, t, slot)))
        if kpre:
            gaps[129 + 2 * i].append((0, kread(i, (slot + 1) & 3)))
    if dma and not opt.get('nodma'):
        dg = opt.get('dgaps', DG)
        if cold:
            place(gaps, dma_ops(opt, 2, 's2'), [7, 8, 10, 12, 14, 43, 47, 51, 55, 59, 63])
            dg = [79, 83, 87, 91, 95, 99, 103, 107, 111, 115, 119]
        place(gaps, dma_ops(opt, (slot + 3) & 3, 'kv'), dg)
    return mf, gaps


def place(gaps, ops, where):
    assert len(ops) == len(where), (len(ops), len(where))
    for k, t in zip(where, ops):
        gaps[k].append((0 if is_mem(t) else (1 if t.startswith('s_') else 6), t))


def block(gaps, k, ops):
    for t in ops:
        gaps[k].append((7, t))


def emit_body(a, opt, mf, gaps, barwait, auto=False, lo=0, hi=160):
    a.auto_nop = auto
    for k in range(lo, hi):
        if mf[k] is not None:
            a.e(mf[k])
        for _, t in sorted(gaps[k], key=lambda x: x[0]):
            a.e(t)
        if opt.get('pace') and k % opt['pace'] == 0 and mf[k] is not None:
            a.e('s_nop 3')
        if k == 127:
            for t in (barwait if isinstance(barwait, list) else [barwait]):
                a.e(t)
            if opt.get('trace'):
                a.e('s_memrealtime s[86:87]')
                a.e('s_waitcnt lgkmcnt(0)')
                a.e('s_mov_b32 m0, s88')
                a.e('v_writelane_b32 v29, s86, m0')
                a.e('s_add_u32 s88, s88, 1')
            a.e('s_barrier')
    a.auto_nop = True


def max_phase(a, extra, tag):
    M, F = [], []
    extra = list(extra)
    take = lambda n: [extra.pop(0) for _ in range(min(n, len(extra)))]
    for j in range(5):
        d = vr(NM + 4 * j, 4)
        for js in range(4):
            M.append(('%s %s, %s, %s, %s' % (MF, d, ar(A_K + 4 * js, 4), ar(A_Q + 16 * j + 4 * js, 4), '0' if js == 0 else d), 0))
    for t in take(12):
        F.append((t, 0))
    for j in range(5):
        n = NM + 4 * j
        t, u = vr(T0 + 2 * j), vr(T0 + 2 * j + 1)
        ops = ['v_max3_f32 %s, %s, %s, %s' % (t, vr(n), vr(n + 1), vr(n + 2)),
               'v_max_f32 %s, %s, %s' % (t, t, vr(n + 3)),
               'v_mov_b32 %s, %s' % (u, t)] + take(2) + [
               'v_permlane16_swap_b32 %s, %s' % (t, u),
               'v_max_f32 %s, %s, %s' % (t, t, u),
               'v_mov_b32 %s, %s' % (u, t)] + take(2) + [
               'v_permlane32_swap_b32 %s, %s' % (t, u)]
        ops += ['v_min_f32 %s, -%s, -%s' % (vr(n + x), t, u) for x in range(4)]
        for o in ops:
            F.append((o, min(4 * j + 7, 20)))
    merge(a, M, F)
    for t in extra:
        a.e(t)
    a.e('s_cmp_lg_u32 %s, 3' % sr(S_W))
    a.e('s_cbranch_scc1 L_nd%s' % tag)
    for x in range(4):
        a.e('v_mov_b32 %s, 0x%08x' % (vr(NM + 16 + x), f32bits(-1e30)))
    a.label('L_nd%s' % tag)
    a.e('s_nop 1')


ZERO4 = ['v_mov_b32 %s, 0' % vr(OB + 128 + x) for x in range(32)]
ZERO4P = ['v_mov_b64 %s, 0' % vr(OB + 128 + 2 * x, 2) for x in range(16)]


def slow_path(a, opt):
    e = a.e
    a.pend = []
    a.vmq = []
    e('s_or_b64 %s, %s, %s' % (sr(96, 2), sr(S_FLAG[0], 2), sr(S_FLAG[1], 2)))
    e('s_cbranch_scc0 L_fin')
    e('s_waitcnt vmcnt(0) lgkmcnt(0)')
    e('s_lshl_b32 %s, %s, 2' % (sr(S_T0), sr(S_WB)))
    for x in V_KA + V_VA:
        e('v_add_u32 %s, %s, %s' % (vr(x), sr(S_T0), vr(x)))
    for x in V_DK + V_DV:
        e('v_subrev_u32 %s, %s, %s' % (vr(x), sr(S_WB), vr(x)))
    e('s_mov_b32 %s, %s' % (sr(S_WB), sr(S_T0)))
    e('s_mov_b32 %s, 0' % sr(S_HI))
    a.label('L_sp_head')
    e('s_cmp_eq_u32 %s, 0' % sr(S_HI))
    e('s_cselect_b64 %s, %s, %s' % (sr(96, 2), sr(S_FLAG[0], 2), sr(S_FLAG[1], 2)))
    e('s_cmp_eq_u64 %s, 0' % sr(96, 2))
    e('s_cbranch_scc1 L_sp_next')
    e('s_lshl_b32 %s, s2, 1' % sr(S_T1))
    e('s_add_u32 %s, %s, %s' % (sr(S_T1), sr(S_T1), sr(S_HI)))
    e('s_mul_i32 %s, %s, %d' % (sr(S_T1), sr(S_T1), QH))
    set_srd(a, S_SRDQ, 4, S_T1, QH)
    set_srd(a, S_SRDO, 10, S_T1, QH)
    for j in range(5):
        for t in qdma(opt, j, S_WB, 0, 'q', qw=S_OW):
            e(t)
        e('s_waitcnt vmcnt(0)')
        for t in qread(lambda js: vr(OB + 4 * js, 4), V_KA[0], 0) + prescale(j, OB, False):
            e(t)

    def tile_dma(kv):
        for q in range(4):
            e('s_add_u32 m0, %s, %d' % (sr(S_WB), (VRING if kv else 0) + q * 4096))
            e('s_add_u32 %s, %s, %d' % (sr(S_T1), sr(S_OFF), q * 4096))
            for p in range(4):
                e('buffer_load_dwordx4 %s, %s, %s offen offset:%d lds' % (vr(V_DV[p & 1] if kv else V_DK[p]), sr(S_SRDV if kv else S_SRDK, 4), sr(S_T1), p * 1024))

    for j in range(5):
        e('v_mov_b32 %s, 0xff800000' % vr(V_L[j]))
        for x in range(4):
            e('v_mov_b32 %s, 0' % vr(NM + 4 * j + x))
    e('s_lshl_b32 %s, %s, 18' % (sr(S_OFF), sr(S_HI)))
    e('s_mov_b32 %s, 16' % sr(S_CNT))
    a.label('L_sp1')
    tile_dma(0)
    e('s_waitcnt vmcnt(0)')
    for i in range(16):
        e(kread(i, 0))
    for j in range(5):
        for t in qk(j, 0):
            e(t)
        for x in range(8):
            e('v_max3_f32 %s, %s, %s, %s' % (vr(V_L[j]), vr(V_L[j]), vr(SB[0] + 2 * x), vr(SB[0] + 2 * x + 1)))
    e('s_add_u32 %s, %s, %d' % (sr(S_OFF), sr(S_OFF), SLOT))
    e('s_sub_u32 %s, %s, 1' % (sr(S_CNT), sr(S_CNT)))
    e('s_cmp_lg_u32 %s, 0' % sr(S_CNT))
    e('s_cbranch_scc1 L_sp1')
    for j in range(5):
        t, u = vr(V_L[j]), vr(V_U)
        e('v_mov_b32 %s, %s' % (u, t))
        e('v_permlane16_swap_b32 %s, %s' % (t, u))
        e('v_max_f32 %s, %s, %s' % (t, t, u))
        e('v_mov_b32 %s, %s' % (u, t))
        e('v_permlane32_swap_b32 %s, %s' % (t, u))
        for x in range(4):
            e('v_min_f32 %s, -%s, -%s' % (vr(NM + 4 * j + x), t, u))
        e('v_mov_b32 %s, 0' % t)
    for x in range(80):
        e('v_mov_b64 %s, 0' % vr(OB + 2 * x, 2))
    e('s_lshl_b32 %s, %s, 18' % (sr(S_OFF), sr(S_HI)))
    e('s_mov_b32 %s, 16' % sr(S_CNT))
    a.label('L_sp2')
    tile_dma(0)
    tile_dma(1)
    e('s_waitcnt vmcnt(0)')
    for i in range(16):
        e(kread(i, 0))
    for i in range(16):
        for t in range(2):
            e(vread(i, t, 0))
    for j in range(5):
        for t in qk(j, 0):
            e(t)
        for _, t in softmax_ops(j, 0):
            e(t)
        for t in pv(j, 0):
            e(t)
    e('s_add_u32 %s, %s, %d' % (sr(S_OFF), sr(S_OFF), SLOT))
    e('s_sub_u32 %s, %s, 1' % (sr(S_CNT), sr(S_CNT)))
    e('s_cmp_lg_u32 %s, 0' % sr(S_CNT))
    e('s_cbranch_scc1 L_sp2')
    for j in range(5):
        for t in epi_head(j, 0)[:7] + epi_pack(j) + epi_write(j) + epi_fetch(j) + epi_store(j, S_SRDO, ''):
            e(t)
    e('s_waitcnt vmcnt(0)')
    a.label('L_sp_next')
    e('s_add_u32 %s, %s, 1' % (sr(S_HI), sr(S_HI)))
    e('s_cmp_lt_u32 %s, 2' % sr(S_HI))
    e('s_cbranch_scc1 L_sp_head')
    e('s_branch L_fin')


def gen(opt):
    a = Asm()
    a.lag = opt.get('lag', 8)
    a.drop = opt.get('dropall', ())
    e = a.e
    diag = opt.get('diag', False)
    stA = opt.get('sta', '')
    stP = opt.get('stp', '')
    stB = opt.get('stb', ' sc1')
    park = opt.get('park', True)

    def stamp(i, h, real=False):
        if diag:
            b = (64 if h == 0 else 48) + 2 * i
            e('%s s[%d:%d]' % ('s_memrealtime' if real else 's_memtime', b, b + 1))
            e('s_waitcnt lgkmcnt(0)')

    def dump_stamps():
        if not diag:
            return
        e('s_lshl_b32 s80, s2, 2')
        e('s_add_u32 s80, s80, %s' % sr(S_W))
        e('s_lshl_b32 s80, s80, 7')
        e('v_mov_b32 v31, s80')
        for q in range(8):
            for x in range(4):
                e('v_mov_b32 v%d, s%d' % (252 + x, (64 if q < 4 else 32) + 4 * q + x))
            e('s_mov_b64 exec, 1')
            e('global_store_dwordx4 v31, v[252:255], s[84:85] offset:%d' % (16 * q))
            e('s_mov_b64 exec, -1')
            e('s_nop 1')

    e('s_cmp_ge_u32 s2, 256')
    e('s_cbranch_scc1 L_end')
    e('s_load_dwordx8 s[4:11], s[0:1], 0')
    if diag:
        e('s_load_dwordx2 s[84:85], s[0:1], 40')
        stamp(0, 0)
        stamp(6, 0, True)
    e('v_lshrrev_b32 v244, 6, v0')
    e('v_and_b32 v0, 63, v0')
    e('v_readfirstlane_b32 %s, v244' % sr(S_W))
    cpf = opt.get('cpf', 64)
    if cpf:
        e('s_getpc_b64 s[46:47]')
        a.label('L_pc')
        e('s_lshr_b32 %s, s2, 3' % sr(S_T0))
        e('s_lshl_b32 %s, %s, 2' % (sr(S_T0), sr(S_T0)))
        e('s_add_u32 %s, %s, %s' % (sr(S_T0), sr(S_T0), sr(S_W)))
        e('s_and_b32 %s, %s, %d' % (sr(S_T0), sr(S_T0), cpf - 1))
        e('s_lshl_b32 %s, %s, 10' % (sr(S_T0), sr(S_T0)))
        e('s_min_u32 %s, %s, L_slow-L_pc-512' % (sr(S_T0), sr(S_T0)))
        e('v_lshl_add_u32 v245, v0, 4, %s' % sr(S_T0))
        e('global_load_dwordx4 %s, v245, s[46:47] ; @cpf' % ar(A_SP, 4))
    e('v_and_b32 v244, 15, v0')
    e('v_lshrrev_b32 v245, 4, v0')
    e('s_lshl_b32 %s, %s, 12' % (sr(S_WB), sr(S_W)))
    e('s_lshl_b32 %s, %s, 14' % (sr(S_QW), sr(S_W)))
    e('s_lshl_b32 %s, %s, 13' % (sr(S_SW), sr(S_W)))
    e('s_add_u32 %s, %s, %d' % (sr(S_SW), sr(S_SW), STAGE))
    e('s_lshl_b32 %s, s2, 1' % sr(S_HEAD))
    e('s_mul_i32 %s, %s, %d' % (sr(S_T0), sr(S_HEAD), QH))
    e('s_lshl_b32 %s, %s, 18' % (sr(S_T2), sr(S_HEAD)))
    for srd in (S_SRDK, S_SRDV, S_SRDQ, S_SRDO, S_SRDO2):
        e('s_mov_b32 %s, 0x00020000' % sr(srd + 3))
    e('v_lshlrev_b32 v246, 8, v245')
    e('v_add_u32 v246, %s, v246' % sr(S_WB))
    for p in range(4):
        e('v_add_u32 v247, %d, v245' % (4 * p))
        e('v_xor_b32 v247, v247, v244')
        e('v_lshl_add_u32 %s, v247, 4, v246' % vr(V_DK[p]))
    e('s_waitcnt lgkmcnt(0)')
    set_srd(a, S_SRDQ, 4, S_T0, QH)
    QAREA = [(S_WB, 2 * SLOT), (S_WB, 3 * SLOT), (S_WB, VRING + 2 * SLOT), (S_WB, VRING + 3 * SLOT), (S_SW, 0)]
    qd = [qdma(opt, j, QAREA[j][0], QAREA[j][1], 'q%d' % j) for j in range(5)]
    for t in qd[0] + qd[1]:
        e(t)
    for p in range(2):
        e('v_add_u32 v247, %d, v245' % (4 * p))
        e('v_lshlrev_b32 v247, 1, v247')
        e('v_xor_b32 v247, v247, v244')
        e('v_lshl_add_u32 %s, v247, 4, v246' % vr(V_DV[p]))
    c = f32bits(128 ** -0.5 * math.log2(math.e))
    e('s_mov_b32 %s, 0x%08x' % (sr(S_C), c))
    e('s_mov_b32 %s, 0x%08x' % (sr(S_C + 1), c))
    e('s_mov_b32 %s, 0x%08x' % (sr(S_THR), f32bits(opt.get('thr', 2.0 ** 24))))
    e('s_mov_b32 %s, 0xffff0000' % sr(S_MASK))
    if opt.get('rot', 1):
        e('s_lshr_b32 %s, s2, 4' % sr(S_R))
        e('s_xor_b32 %s, %s, s2' % (sr(S_R), sr(S_R)))
        e('s_and_b32 %s, %s, 15' % (sr(S_R), sr(S_R)))
        e('s_lshl_b32 %s, %s, 14' % (sr(S_R), sr(S_R)))
        e('s_mov_b32 %s, 0' % sr(S_N))
        e('s_mov_b32 %s, %s' % (sr(S_OFF), sr(S_R)))
    else:
        e('s_mov_b32 %s, 0' % sr(S_OFF))
    e('s_mul_i32 %s, %s, %d' % (sr(S_OW), sr(S_W), 80 * 256))
    if opt.get('trace'):
        e('s_mov_b32 s88, 0')
        e('v_mov_b32 v29, 0')
    set_srd(a, S_SRDK, 6, S_T2, 2 * KH)
    set_srd(a, S_SRDV, 8, S_T2, 2 * KH)
    for js in range(4):
        e('v_add_u32 v247, %d, v245' % (4 * js))
        e('v_xor_b32 v247, v247, v244')
        e('v_lshlrev_b32 v247, 4, v247')
        e('v_lshl_add_u32 %s, v244, 8, v247' % vr(V_KA[js]))
    e('v_mul_u32_u24 v247, 272, v244')
    e('v_lshl_add_u32 v247, v245, 3, v247')
    e('v_add_u32 %s, %s, v247' % (vr(V_PW), sr(S_SW)))
    e('v_mul_u32_u24 v247, 272, v245')
    e('v_lshl_add_u32 v247, v244, 4, v247')
    e('v_add_u32 %s, %s, v247' % (vr(V_PR), sr(S_SW)))
    e('v_lshlrev_b32 %s, 4, v0' % vr(V_LIN))
    e('v_and_b32 v247, 1, v245')
    e('v_lshlrev_b32 v247, 5, v247')
    e('v_lshl_add_u32 v247, v244, 8, v247')
    e('v_lshrrev_b32 v248, 1, v245')
    e('v_lshl_add_u32 %s, v248, 4, v247' % vr(V_OS))
    e('v_bfe_u32 v246, v0, 2, 2')
    e('v_lshl_add_u32 v247, v245, 2, v246')
    e('v_and_b32 v248, 7, v247')
    e('v_lshlrev_b32 v247, 8, v247')
    e('v_and_b32 v249, 3, v0')
    e('v_lshl_add_u32 v247, v249, 3, v247')
    e('v_add_u32 v247, %d, v247' % VRING)
    for db in range(8):
        e('v_xor_b32 v249, %d, v248' % db)
        e('v_lshl_add_u32 %s, v249, 5, v247' % vr(V_VA[db]))
    set_srd(a, S_SRDO, 10, S_T0, QH)
    e('s_add_u32 %s, %s, %d' % (sr(S_T0), sr(S_T0), QH))
    set_srd(a, S_SRDO2, 10, S_T0, QH)
    e('s_mov_b64 %s, 0' % sr(S_FLAG[0], 2))
    e('s_mov_b64 %s, 0' % sr(S_FLAG[1], 2))
    e('s_mov_b32 %s, 4' % sr(S_CNT))
    e('s_mov_b32 %s, 0' % sr(S_ENDV))
    e('s_mov_b64 vcc, 0')
    QA = 252
    e('s_add_u32 %s, %s, %d' % (sr(S_T2), sr(S_WB), VRING))
    for t in qaddr(NM, S_WB) + qaddr(NM + 4, S_T2) + qaddr(NM + 8, S_SW):
        e(t)
    QRD = [(NM, 2 * SLOT), (NM, 3 * SLOT), (NM + 4, 2 * SLOT), (NM + 4, 3 * SLOT), (NM + 8, 0)]
    for t in qd[2]:
        e(t)
    s0, s1 = dma_ops(opt, 0, 's0'), dma_ops(opt, 1, 's1')
    later = {0: qd[3], 1: qd[4], 2: s0[:5], 3: s0[5:], 4: s1[:5]}
    for j in range(5):
        e('WAITVM q%d' % j)
        if j == 0:
            stamp(1, 0)
        for t in qread(lambda js: vr(OB + 16 * j + 4 * js, 4), QRD[j][0], QRD[j][1]):
            e(t)
        for t in later[j]:
            e(t)
        for t in prescale(j, OB + 16 * j, False):
            e(t)
    set_srd(a, S_SRDQ, 4, S_T0, QH)
    e('WAITVM s0k')
    if opt.get('stag'):
        e('s_lshr_b32 s80, s2, 3')
        e('s_and_b32 s80, s80, 7')
        a.label('L_stag')
        e('s_cmp_eq_u32 s80, 0')
        e('s_cbranch_scc1 L_stagd')
        e('s_sleep %d' % opt['stag'])
        e('s_sub_u32 s80, s80, 1')
        e('s_branch L_stag')
        a.label('L_stagd')
    e('s_barrier')
    for i in range(16):
        e(kread(i, 0))
    for t in s1[5:]:
        e(t)
    m_head = a.mark()
    stamp(2, 0)
    max_phase(a, ZERO4, 'a')
    e('WAITVM s0')
    e('s_barrier')
    stamp(3, 0)
    mf, gaps = body_tables(opt, 0, cold=True, fresh=True)
    emit_body(a, opt, mf, gaps, 's_waitcnt vmcnt(16)', auto=True)
    e('s_branch L_b1')
    m_first_end = a.mark()

    marks = {}

    def seed_pend(slot):
        a.pend = [(Ins(kread(i, slot)).wr, a.nmfma - (31 - 2 * i)) for i in range(16)]

    late = opt.get('trace') or max(opt.get('dgaps', DG)) > 98
    cg = 155 if late else 103
    FREE0 = [1, 3, 7, 11, 15]
    variants = []
    a.raw('.p2align 6')
    def qvariant(gaps, rd, dm):
        if rd is not None:
            place(gaps, qaddr(T0, S_SW), [0, 0, 1, 1])
            place(gaps, qread(lambda js: ar(A_SP + 16 * rd[1] + 4 * js, 4), T0, rd[0] * 4096), [5, 5, 9, 13])
        place(gaps, qdma(opt, dm[0], S_SW, dm[1] * 4096, 'q'), [1, 2, 3, 7, 11, 15])

    for name, rd, dm, j in (('qa3', None, (2, 0), 0), ('qa2', (1, 1), (4, 0), 0), ('qb3', 0, 0, 2), ('qb2', 0, 0, 3), ('qb1', 0, 0, 4), ('qa1', None, (0, 0), 0)):
        a.label('L_' + name)
        m0_ = a.mark()
        seed_pend(0)
        mf, gaps = body_tables(opt, 0)
        if name[1] == 'a':
            qvariant(gaps, rd, dm)
        elif park:
            place(gaps, epi_store(j, S_SRDO, stP, parked=True), FREE0)
        emit_body(a, opt, mf, gaps, None, lo=0, hi=16)
        if name != 'qa1':
            e('s_branch L_b0g1')
        variants.append((m0_, a.mark()))
    for slot in range(4):
        mf, gaps = body_tables(opt, slot)
        bw = 's_waitcnt vmcnt(16)'
        if slot == 0 and park and opt.get('exactw', True):
            bw = 's_waitcnt vmcnt(20)'
        if slot == 1:
            gaps[99].append((1, 's_sub_u32 %s, %s, 2' % (sr(S_T2), sr(S_CNT))))
            gaps[cg].append((1, 's_cmp_le_u32 %s, 1' % sr(S_T2)))
        if slot == 2:
            gaps[99].append((1, 's_sub_u32 %s, %s, 1' % (sr(S_CNT), sr(S_CNT))))
            if opt.get('exactw', True):
                gaps[127 if late else 103].append((1, 's_cmp_le_u32 %s, 1' % sr(S_T2)))
                bw = ['s_waitcnt vmcnt(20)', 's_cbranch_scc1 L_w2', 's_waitcnt vmcnt(16)', 'L_w2:']
            gaps[155].append((1, 's_cmp_eq_u32 %s, %s' % (sr(S_CNT), sr(S_ENDV))))
        if slot == 3:
            gaps[99].append((1, 's_sub_u32 %s, %s, %s' % (sr(S_T2), sr(S_CNT), sr(S_ENDV))))
            gaps[cg].append((1, 's_cmp_eq_u32 %s, 3' % sr(S_T2)))
        marks[slot] = a.mark()
        if slot != 0:
            a.label('L_b%d' % slot)
            seed_pend(slot)
            emit_body(a, opt, mf, gaps, None, lo=0, hi=16)
        a.label('L_b%dg1' % slot)
        a.pend = []
        emit_body(a, opt, mf, gaps, bw, lo=16)
        if slot == 1:
            e('s_cbranch_scc1 L_qlds')
        if slot == 2:
            e('s_cbranch_scc1 L_exit')
    marks[4] = a.mark()
    e('s_cbranch_vccnz L_backb')
    e('s_cbranch_scc1 L_qa3')
    e('s_cmp_eq_u32 %s, 2' % sr(S_T2))
    e('s_cbranch_scc1 L_qa2')
    e('s_branch L_qa1')
    a.label('L_backb')
    e('s_cbranch_scc1 L_qb3')
    e('s_cmp_eq_u32 %s, 2' % sr(S_T2))
    e('s_cbranch_scc1 L_qb2')
    e('s_branch L_qb1')
    a.label('L_qlds')
    e('s_cmp_eq_u32 %s, 2' % sr(S_CNT))
    e('s_cbranch_scc1 L_qm2')
    v2 = []
    for name, rd, dm in (('qm3', (0, 0), (3, 1)), ('qm2', (0, 2), (1, 1))):
        a.label('L_' + name)
        m0_ = a.mark()
        seed_pend(2)
        mf, gaps = body_tables(opt, 2)
        qvariant(gaps, rd, dm)
        emit_body(a, opt, mf, gaps, None, lo=0, hi=16)
        e('s_branch L_b2g1')
        v2.append((m0_, a.mark()))
    a.label('L_exit')
    e('s_cbranch_vccnz L_lastb')
    m_last = a.mark()
    stamp(4, 0)
    seed_pend(3)
    a.vmq = ['n1'] * 8 + ['n2'] * 8
    mf, gaps = body_tables(opt, 3)
    place(gaps, qaddr(QA, S_SW), [3, 7, 11, 15])
    for j in range(2):
        place(gaps, qread(lambda js: ar(A_Q + 16 * j + 4 * js, 4), QA, j * 4096), [32 * j + 16] * 4)
        block(gaps, 32 * j + 29, prescale(j, A_Q + 16 * j, True))
    for j in (2, 3, 4):
        block(gaps, 32 * j + 17, prescale(j, A_SP + 16 * (j - 2), True))
    for j in range(3):
        k = 48 + 32 * j + 17
        pk_ = park and j >= 2
        block(gaps, k, epi_head(j, 0) + epi_pack(j))
        epi_spread(gaps, j, k, S_SRDO, stA, pk_, tight=(j == 2))
    emit_body(a, opt, mf, gaps, 'WAITVM n1', auto=True)
    stamp(5, 0)
    stamp(7, 0, True)
    for x in (0, 1, 2):
        stamp(x, 1)
    stamp(6, 1, True)
    e('s_mov_b32 %s, 14' % sr(S_CNT))
    e('s_mov_b32 %s, 10' % sr(S_ENDV))
    e('s_mov_b64 vcc, -1')
    max_phase(a, epi_head(3, 0) + epi_pack(3, False), 'b')
    stamp(3, 1)
    mf, gaps = body_tables(opt, 0, fresh=True)
    epi_spread(gaps, 3, -1, S_SRDO, stA, park)
    block(gaps, 47, epi_head(4, 0) + epi_pack(4))
    epi_spread(gaps, 4, 47, S_SRDO, stA, park)
    block(gaps, 115, ZERO4P)
    emit_body(a, opt, mf, gaps, 'WAITVM n2', auto=True)
    e('s_branch L_b1')
    m_last_end = a.mark()
    a.label('L_lastb')
    m_lastb = a.mark()
    stamp(4, 1)
    seed_pend(3)
    a.vmq = ['n2'] * 8
    a.drop = tuple(opt.get('droplast', ())) + tuple(opt.get('dropall', ()))
    mf, gaps = body_tables(opt, 3, dma=False, kpre=False)
    for j in range(3):
        k = 48 + 32 * j + 17
        block(gaps, k, epi_head(j, 1) + epi_pack(j))
        epi_spread(gaps, j, k, S_SRDO2, stB, False, tight=(j == 2))
    emit_body(a, opt, mf, gaps, 'WAITVM n2', auto=True)
    sb4 = (3 + 4) & 1
    F = [(t, 0) for g, t in softmax_ops(4, sb4) if 128 + W0 + g >= 160]
    n4 = len(F)
    F += [(t, 0) for t in epi_head(3, 1) + epi_pack(3)]
    n4 = len(F)
    h4 = epi_head(4, 1)
    for x, t in enumerate(epi_write(3)):
        F += [(t, 0), (h4[x], 0)]
    F += [(h4[8], 0)] + [(t, 0) for t in epi_fetch(3)]
    merge(a, [(t, n4) for t in pv(4, sb4)], F)
    d4 = epi_direct(4, S_SRDO2, stB)
    for t in epi_store(3, S_SRDO2, stB) + d4:
        e(t)
    stamp(5, 1)
    stamp(7, 1, True)
    a.drop = ()
    m_end = a.mark()
    a.label('L_slow')
    slow_path(a, opt)
    a.label('L_fin')
    if opt.get('dbg'):
        e('s_load_dwordx2 s[82:83], s[0:1], 32')
        e('s_waitcnt lgkmcnt(0)')
        vals = ['s_not_b32 s80, s76', 's_mov_b32 s80, s62', 's_sub_u32 s80, s58, s64', 's_sub_u32 s80, s70, s64', 's_sub_u32 s80, s72, s70',
                's_sub_u32 s80, s74, s72', 's_sub_u32 s80, s56, s54', 's_sub_u32 s80, s58, s56', 's_sub_u32 s80, s62, s76', 's_sub_u32 s80, s78, s76']
        e('s_mov_b64 exec, 1')
        e('v_mov_b32 v31, 0')
        for n, t in enumerate(vals):
            e(t)
            e('v_mov_b32 v30, s80')
            e('global_atomic_umax v31, v30, s[82:83] offset:%d' % (4 * n))
            e('s_nop 1')
        for n, t in enumerate(vals[2:8]):
            e(t)
            e('s_not_b32 s80, s80')
            e('v_mov_b32 v30, s80')
            e('global_atomic_umax v31, v30, s[82:83] offset:%d' % (40 + 4 * n))
            e('s_nop 1')
        e('s_mov_b64 exec, -1')
    else:
        dump_stamps()
    if opt.get('trace'):
        e('s_lshl_b32 s80, s80, 1')
        e('s_add_u32 s80, s80, 131072')
        e('v_lshl_add_u32 v31, v0, 2, s80')
        e('global_store_dword v31, v29, s[84:85]')
    a.label('L_end')
    e('s_endpgm')

    I = a.ins
    B = lambda s: I[marks[s]:marks[s + 1]]
    bad = []
    seq = I[m_head:m_first_end] + B(1) + B(2) + B(3)
    for lo, hi in variants:
        seq += I[lo:hi] + B(0) + B(1) + B(2) + B(3)
    bad += check_hazards(seq, 'loop')
    g1 = [k for k in range(marks[2], marks[3]) if I[k].text == 'L_b2g1:'][0]
    for lo, hi in v2:
        bad += check_hazards(B(1) + I[lo:hi] + I[g1:marks[3]], 'mid')
    bad += check_hazards(B(2) + I[m_last:m_last_end] + B(1) + B(2) + I[m_lastb:m_end], 'edges')
    sl = I[m_end:]
    bad += check_hazards(sl + sl, 'slow')
    for b in bad[:8]:
        print('HAZARD', b, file=sys.stderr)
    assert not bad or opt.get('nocheck')
    print('body instrs: %d, total %d' % (sum(1 for i in B(1) if i.kind != 'none'), len(I)), file=sys.stderr)

    hdr = open('cdna_kernels/%s.s.ref' % NAME).read().split('\n')
    out = '\n'.join(hdr[:9]) + '\n'
    out += '; @launch grid=(256,1,1) block=(256,1,1) lds=%d\n' % LDS_BYTES
    out += '.amdgcn_target "amdgcn-amd-amdhsa--gfx950"\n.text\n.globl %s_kernel\n.p2align 8\n.type %s_kernel,@function\n%s_kernel:\n' % (NAME, NAME, NAME)
    out += a.text()
    out += '''.section .rodata,"a"
.p2align 6
.amdhsa_kernel %s_kernel
  .amdhsa_next_free_vgpr 512
  .amdhsa_next_free_sgpr 102
  .amdhsa_accum_offset 256
  .amdhsa_group_segment_fixed_size 0
  .amdhsa_kernarg_size 48
  .amdhsa_user_sgpr_count 2
  .amdhsa_user_sgpr_kernarg_segment_ptr 1
  .amdhsa_system_sgpr_workgroup_id_x 1
.end_amdhsa_kernel
''' % NAME
    return out


if __name__ == '__main__':
    opt = {}
    outp = sys.argv[1]
    for kv in sys.argv[2:]:
        k, v = kv.split('=', 1)
        try:
            v = eval(v)
        except Exception:
            pass
        opt[k] = v
    open(outp, 'w').write(gen(opt))
```

```python
import sys, struct, math
from asmlib import Asm, Ins, check_hazards

NAME = 'standalone__mha_softmax__near_ridge'
LDS_BYTES = 163840
QH = 304 * 256
KH = 1024 * 256
VRING = 65536
SLOT = 16384

V_KA = [1, 2, 3, 4]
V_VA = [5, 6, 7, 8, 9, 10, 11, 12]
V_DK = [13, 14, 15, 16]
V_DV = [17, 18]
V_L = [19, 20, 21, 22, 23]
V_OS = 27
V_PW, V_PR, V_LIN = 24, 25, 26
V_R, V_U = 28, 30
OB = 32
NM = 192
SB = (212, 228)
T0 = 244
A_Q, A_K, A_V, A_SP = 0, 80, 144, 208
S_SRDK, S_SRDV, S_SRDQ, S_SRDO = 12, 16, 20, 24
S_OFF, S_WB, S_CNT, S_HI, S_W = 28, 29, 30, 31, 32
S_C, S_THR, S_MASK = 34, 36, 37
S_FLAG = (38, 90)
S_ENDV = 40
S_T0, S_T1, S_T2 = 41, 42, 43
S_HEAD = 44
S_QW, S_SW, S_OW, S_SO = 98, 99, 100, 101
S_N, S_R = 33, 45
S_SRDO2 = 92


def f32bits(x):
    return struct.unpack('<I', struct.pack('<f', x))[0]


def vr(b, n=1):
    return 'v%d' % b if n == 1 else 'v[%d:%d]' % (b, b + n - 1)


def ar(b, n=1):
    return 'a%d' % b if n == 1 else 'a[%d:%d]' % (b, b + n - 1)


def sr(b, n=1):
    return 's%d' % b if n == 1 else 's[%d:%d]' % (b, b + n - 1)


MF = 'v_mfma_f32_16x16x32_bf16'
ALAG = 0


def qk(j, sb):
    out = []
    for kt in range(4):
        d = vr(SB[sb] + 4 * kt, 4)
        for js in range(4):
            c = vr(NM + 4 * j, 4) if js == 0 else d
            out.append('%s %s, %s, %s, %s' % (MF, d, ar(A_K + 16 * kt + 4 * js, 4), ar(A_Q + 16 * j + 4 * js, 4), c))
    return out


def pv(j, sb, czero=False):
    out = []
    for db in range(8):
        o = vr(OB + 32 * j + 4 * db, 4)
        for ks in range(2):
            c = '0' if (czero and ks == 0) else o
            out.append('%s %s, %s, %s, %s' % (MF, o, ar(A_V + 32 * ks + 4 * db, 4), vr(SB[sb] + 4 * ks, 4), c))
    return out


def kread(i, slot):
    kt, js = i >> 2, i & 3
    return 'ds_read_b128 %s, %s offset:%d' % (ar(A_K + 4 * i, 4), vr(V_KA[js]), slot * SLOT + kt * 4096)


def vread(i, t, slot):
    db, ks = i >> 1, i & 1
    return 'ds_read_b64_tr_b16 %s, %s offset:%d' % (ar(A_V + 32 * ks + 4 * db + 2 * t, 2), vr(V_VA[db]), slot * SLOT + ks * 8192 + t * 4096)


def softmax_ops(j, sb, first=False):
    s = SB[sb]
    l = V_L[j]
    ops = []
    for r in range(16):
        ops.append((2 * r - ALAG, 'v_exp_f32 %s, %s' % (vr(s + r), vr(s + r))))
        if first and r == 0:
            ops.append((2 * r + 1, 'v_mov_b32 %s, %s' % (vr(l), vr(s + r))))
        else:
            ops.append((2 * r + 1, 'v_add_f32 %s, %s, %s' % (vr(l), vr(l), vr(s + r))))
        if r & 1:
            k = r >> 1
            ops.append((2 * r + 1, 'v_cvt_pk_bf16_f32 %s, %s, %s' % (vr(s + k), vr(s + 2 * k), vr(s + 2 * k + 1))))
    ops.sort(key=lambda x: x[0])
    return ops


def dma_ops(opt, slot, tag):
    fl = opt.get('dmaflags', ' nt')
    o = ['s_add_u32 m0, %s, %d' % (sr(S_WB), slot * SLOT)]
    for p in range(4):
        o.append('buffer_load_dwordx4 %s, %s, %s offen offset:%d%s lds ; @%s' % (vr(V_DK[p]), sr(S_SRDK, 4), sr(S_OFF), p * 1024, fl, tag + 'k'))
    o.append('s_add_u32 m0, %s, %d' % (sr(S_WB), VRING + slot * SLOT))
    for p in range(4):
        o.append('buffer_load_dwordx4 %s, %s, %s offen offset:%d%s lds ; @%s' % (vr(V_DV[p & 1]), sr(S_SRDV, 4), sr(S_OFF), p * 1024, fl, tag))
    if opt.get('rot', 0):
        o.append('s_add_u32 %s, %s, %d\n    s_xor_b32 %s, %s, %s' % (sr(S_N), sr(S_N), SLOT, sr(S_OFF), sr(S_N), sr(S_R)))
    else:
        o.append('s_add_u32 %s, %s, %d' % (sr(S_OFF), sr(S_OFF), SLOT))
    return o


def qdma(opt, j, m0base, m0off, tag, qw=None):
    fl = opt.get('qflags', ' nt')
    o = ['s_add_u32 m0, %s, %d' % (sr(m0base), m0off),
         's_add_u32 %s, %s, %d' % (sr(S_T1), sr(S_QW if qw is None else qw), j * 4096)]
    for p in range(4):
        o.append('buffer_load_dwordx4 %s, %s, %s offen offset:%d%s lds ; @%s' % (vr(V_DK[p]), sr(S_SRDQ, 4), sr(S_T1), p * 1024, fl, tag))
    return o


def qaddr(base, sg):
    return ['v_add_u32 %s, %s, %s' % (vr(base + js), sr(sg), vr(V_KA[js])) for js in range(4)]


def qread(dst, base, off):
    return ['ds_read_b128 %s, %s offset:%d' % (dst(js), vr(base + js), off) for js in range(4)]


def prescale(j, src, from_acc):
    o = []
    for g in range(4):
        T = [T0 + 2 * x for x in range(4)]
        for x in range(4):
            if from_acc:
                o.append('v_accvgpr_read_b32 %s, %s' % (vr(T[x] + 1), ar(src + 4 * g + x)))
        for x in range(4):
            s = vr(T[x] + 1) if from_acc else vr(src + 4 * g + x)
            o.append('v_lshlrev_b32 %s, 16, %s' % (vr(T[x]), s))
        for x in range(4):
            s = vr(T[x] + 1) if from_acc else vr(src + 4 * g + x)
            o.append('v_and_b32 %s, %s, %s' % (vr(T[x] + 1), sr(S_MASK), s))
        for x in range(4):
            o.append('v_pk_mul_f32 %s, %s, %s' % (vr(T[x], 2), vr(T[x], 2), sr(S_C, 2)))
        for x in range(4):
            o.append('v_cvt_pk_bf16_f32 %s, %s, %s' % (vr(T[x]), vr(T[x]), vr(T[x] + 1)))
        for x in range(4):
            o.append('v_accvgpr_write_b32 %s, %s' % (ar(A_Q + 16 * j + 4 * g + x), vr(T[x])))
    return o


STAGE = 131072


def epi_head(j, h):
    l, u = vr(V_L[j]), vr(V_U)
    return ['v_mov_b32 %s, %s' % (u, l),
            'v_permlane16_swap_b32 %s, %s' % (l, u),
            'v_add_f32 %s, %s, %s' % (l, l, u),
            'v_mov_b32 %s, %s' % (u, l),
            'v_permlane32_swap_b32 %s, %s' % (l, u),
            'v_add_f32 %s, %s, %s' % (l, l, u),
            'v_rcp_f32 %s, %s' % (vr(V_R), l),
            'v_cmp_nge_f32 %s, %s, %s' % (sr(96, 2), sr(S_THR), l),
            's_or_b64 %s, %s, %s' % (sr(S_FLAG[h], 2), sr(S_FLAG[h], 2), sr(96, 2))]


def epi_pack(j, pk=True):
    o = []
    b0 = OB + 32 * j
    for h in range(2):
        if pk:
            for x in range(8):
                b = b0 + 16 * h + 2 * x
                o.append('v_pk_mul_f32 %s, %s, %s op_sel_hi:[1,0]' % (vr(b, 2), vr(b, 2), vr(V_R, 2)))
        else:
            for x in range(16):
                b = b0 + 16 * h + x
                o.append('v_mul_f32 %s, %s, %s' % (vr(b), vr(V_R), vr(b)))
        for db in range(4 * h, 4 * h + 4):
            b = b0 + 4 * db
            o.append('v_cvt_pk_bf16_f32 %s, %s, %s' % (vr(b), vr(b), vr(b + 1)))
            o.append('v_cvt_pk_bf16_f32 %s, %s, %s' % (vr(b + 1), vr(b + 2), vr(b + 3)))
    return o


def epi_write(j):
    return ['ds_write_b64 %s, %s offset:%d' % (vr(V_PW), vr(OB + 32 * j + 4 * db, 2), db * 32) for db in range(8)]


def epi_direct(j, srd, fl):
    o = ['s_add_u32 %s, %s, %d' % (sr(S_SO), sr(S_OW), j * 4096)]
    for mm in range(2):
        for m in (2 * mm, 2 * mm + 1):
            b = OB + 32 * j + 8 * m
            for x in range(4):
                o.append('v_pk_mul_f32 %s, %s, %s op_sel_hi:[1,0]' % (vr(b + 2 * x, 2), vr(b + 2 * x, 2), vr(V_R, 2)))
        for m in (2 * mm, 2 * mm + 1):
            b = OB + 32 * j + 8 * m
            for x in range(4):
                o.append('v_cvt_pk_bf16_f32 %s, %s, %s' % (vr(b + x), vr(b + 2 * x), vr(b + 2 * x + 1)))
        for m in (2 * mm, 2 * mm + 1):
            b = OB + 32 * j + 8 * m
            o.append('v_permlane16_swap_b32 %s, %s' % (vr(b), vr(b + 2)))
            o.append('v_permlane16_swap_b32 %s, %s' % (vr(b + 1), vr(b + 3)))
        for m in (2 * mm, 2 * mm + 1):
            b = OB + 32 * j + 8 * m
            o.append('buffer_store_dwordx4 %s, %s, %s, %s offen offset:%d%s ; @st' % (vr(b, 4), vr(V_OS), sr(srd, 4), sr(S_SO), m * 64, fl))
    return o


def epi_spread(gaps, j, k, srd, fl, parked, tight=False):
    place(gaps, epi_write(j), [k + 1 + 2 * x for x in range(8)])
    place(gaps, epi_fetch(j, parked), [k + 17, k + 18, k + 19, k + 20])
    if not parked:
        place(gaps, epi_store(j, srd, fl), [k + 22, k + 26, k + 27, k + 28, k + 30] if tight else [k + 22, k + 26, k + 30, k + 34, k + 38])


def odst(j, parked):
    return (lambda p: ar(A_SP + 16 * (j - 2) + 4 * p, 4)) if parked else (lambda p: vr(OB + 32 * j + 4 * p, 4))


def epi_fetch(j, parked=False):
    return ['ds_read_b128 %s, %s offset:%d' % (odst(j, parked)(p), vr(V_PR), p * 1088) for p in range(4)]


def epi_store(j, srd, fl, parked=False):
    o = ['s_add_u32 %s, %s, %d' % (sr(S_SO), sr(S_OW), j * 4096)]
    for p in range(4):
        o.append('buffer_store_dwordx4 %s, %s, %s, %s offen offset:%d%s ; @st' % (odst(j, parked)(p), vr(V_LIN), sr(srd, 4), sr(S_SO), p * 1024, fl))
    return o


def is_mem(t):
    return t.startswith(('ds_', 'buffer_', 'global_'))


def cost(t):
    if t.startswith(('v_exp', 'v_rcp')):
        return 8
    if t.endswith(':'):
        return 0
    return 4


def merge(a, mfmas, fillers, budget=8):
    fi = 0
    for mi, (text, need) in enumerate(mfmas):
        while fi < need:
            assert fillers[fi][1] <= mi, (fillers[fi], mi, text)
            a.e(fillers[fi][0])
            fi += 1
        a.e(text)
        b = budget
        valu = False
        while fi < len(fillers) and fillers[fi][1] <= mi + 1 and b > 0:
            t = fillers[fi][0]
            if is_mem(t) and valu:
                break
            if cost(t) > b and b < budget:
                break
            valu = valu or t.startswith('v_')
            b -= cost(t)
            a.e(t)
            fi += 1
    while fi < len(fillers):
        a.e(fillers[fi][0])
        fi += 1


def set_srd(a, srd, ptr, off, size):
    a.e('s_add_u32 %s, %s, %s' % (sr(srd), sr(ptr), sr(off)))
    a.e('s_addc_u32 %s, %s, 0' % (sr(srd + 1), sr(ptr + 1)))
    a.e('s_and_b32 %s, %s, 0xffff' % (sr(srd + 1), sr(srd + 1)))
    a.e('s_mov_b32 %s, %s' % (sr(srd + 2), size))


W0 = 14
DG = [51, 55, 63, 67, 71, 75, 79, 83, 87, 91, 95]


def body_tables(opt, slot, cold=False, fresh=False, dma=True, kpre=True):
    sbuf = lambda u: (slot + u) & 1
    groups = [qk(0, sbuf(0)), pv(4, sbuf(-1)), qk(1, sbuf(1)), pv(0, sbuf(0), fresh), qk(2, sbuf(2)), pv(1, sbuf(1), fresh),
              qk(3, sbuf(3)), pv(2, sbuf(2), fresh), qk(4, sbuf(4)), pv(3, sbuf(3), fresh)]
    mf = [t for g in groups for t in g]
    gaps = [[] for _ in range(160)]
    if cold:
        for k in range(16, 32):
            mf[k] = None
    else:
        for g, t in softmax_ops(4, sbuf(-1)):
            k = 128 + W0 + g - 160
            if k >= 0:
                gaps[k].append((5, t))
    for u in range(5):
        for g, t in softmax_ops(u, sbuf(u), fresh):
            k = 32 * u + W0 + g
            if cold and u == 0 and k < 32:
                k = min(7 + g, 15)
            if k < 160:
                gaps[k].append((5, t))
    for i in range(16):
        for t in range(2):
            gaps[(i if i < 7 else 33 + (i - 7)) if cold else 17 + 2 * i].append((0, vread(i, t, slot)))
        if kpre:
            gaps[129 + 2 * i].append((0, kread(i, (slot + 1) & 3)))
    if dma and not opt.get('nodma'):
        dg = opt.get('dgaps', DG)
        if cold:
            place(gaps, dma_ops(opt, 2, 's2'), [7, 8, 10, 12, 14, 43, 47, 51, 55, 59, 63])
            dg = [79, 83, 87, 91, 95, 99, 103, 107, 111, 115, 119]
        place(gaps, dma_ops(opt, (slot + 3) & 3, 'kv'), dg)
    return mf, gaps


def place(gaps, ops, where):
    assert len(ops) == len(where), (len(ops), len(where))
    for k, t in zip(where, ops):
        gaps[k].append((0 if is_mem(t) else (1 if t.startswith('s_') else 6), t))


def block(gaps, k, ops):
    for t in ops:
        gaps[k].append((7, t))


def emit_body(a, opt, mf, gaps, barwait, auto=False, lo=0, hi=160):
    a.auto_nop = auto
    for k in range(lo, hi):
        if mf[k] is not None:
            a.e(mf[k])
        for _, t in sorted(gaps[k], key=lambda x: x[0]):
            a.e(t)
        if opt.get('pace') and k % opt['pace'] == 0 and mf[k] is not None:
            a.e('s_nop 3')
        if k == 127:
            for t in (barwait if isinstance(barwait, list) else [barwait]):
                a.e(t)
            if opt.get('trace'):
                a.e('s_memrealtime s[86:87]')
                a.e('s_waitcnt lgkmcnt(0)')
                a.e('s_mov_b32 m0, s88')
                a.e('v_writelane_b32 v29, s86, m0')
                a.e('s_add_u32 s88, s88, 1')
            a.e('s_barrier')
    a.auto_nop = True


def max_phase(a, extra, tag):
    M, F = [], []
    extra = list(extra)
    take = lambda n: [extra.pop(0) for _ in range(min(n, len(extra)))]
    for j in range(5):
        d = vr(NM + 4 * j, 4)
        for js in range(4):
            M.append(('%s %s, %s, %s, %s' % (MF, d, ar(A_K + 4 * js, 4), ar(A_Q + 16 * j + 4 * js, 4), '0' if js == 0 else d), 0))
    for t in take(12):
        F.append((t, 0))
    for j in range(5):
        n = NM + 4 * j
        t, u = vr(T0 + 2 * j), vr(T0 + 2 * j + 1)
        ops = ['v_max3_f32 %s, %s, %s, %s' % (t, vr(n), vr(n + 1), vr(n + 2)),
               'v_max_f32 %s, %s, %s' % (t, t, vr(n + 3)),
               'v_mov_b32 %s, %s' % (u, t)] + take(2) + [
               'v_permlane16_swap_b32 %s, %s' % (t, u),
               'v_max_f32 %s, %s, %s' % (t, t, u),
               'v_mov_b32 %s, %s' % (u, t)] + take(2) + [
               'v_permlane32_swap_b32 %s, %s' % (t, u)]
        ops += ['v_min_f32 %s, -%s, -%s' % (vr(n + x), t, u) for x in range(4)]
        for o in ops:
            F.append((o, min(4 * j + 7, 20)))
    merge(a, M, F)
    for t in extra:
        a.e(t)
    a.e('s_cmp_lg_u32 %s, 3' % sr(S_W))
    a.e('s_cbranch_scc1 L_nd%s' % tag)
    for x in range(4):
        a.e('v_mov_b32 %s, 0x%08x' % (vr(NM + 16 + x), f32bits(-1e30)))
    a.label('L_nd%s' % tag)
    a.e('s_nop 1')


ZERO4 = ['v_mov_b32 %s, 0' % vr(OB + 128 + x) for x in range(32)]
ZERO4P = ['v_mov_b64 %s, 0' % vr(OB + 128 + 2 * x, 2) for x in range(16)]


def slow_path(a, opt):
    e = a.e
    a.pend = []
    a.vmq = []
    e('s_or_b64 %s, %s, %s' % (sr(96, 2), sr(S_FLAG[0], 2), sr(S_FLAG[1], 2)))
    e('s_cbranch_scc0 L_fin')
    e('s_waitcnt vmcnt(0) lgkmcnt(0)')
    e('s_lshl_b32 %s, %s, 2' % (sr(S_T0), sr(S_WB)))
    for x in V_KA + V_VA:
        e('v_add_u32 %s, %s, %s' % (vr(x), sr(S_T0), vr(x)))
    for x in V_DK + V_DV:
        e('v_subrev_u32 %s, %s, %s' % (vr(x), sr(S_WB), vr(x)))
    e('s_mov_b32 %s, %s' % (sr(S_WB), sr(S_T0)))
    e('s_mov_b32 %s, 0' % sr(S_HI))
    a.label('L_sp_head')
    e('s_cmp_eq_u32 %s, 0' % sr(S_HI))
    e('s_cselect_b64 %s, %s, %s' % (sr(96, 2), sr(S_FLAG[0], 2), sr(S_FLAG[1], 2)))
    e('s_cmp_eq_u64 %s, 0' % sr(96, 2))
    e('s_cbranch_scc1 L_sp_next')
    e('s_lshl_b32 %s, s2, 1' % sr(S_T1))
    e('s_add_u32 %s, %s, %s' % (sr(S_T1), sr(S_T1), sr(S_HI)))
    e('s_mul_i32 %s, %s, %d' % (sr(S_T1), sr(S_T1), QH))
    set_srd(a, S_SRDQ, 4, S_T1, QH)
    set_srd(a, S_SRDO, 10, S_T1, QH)
    for j in range(5):
        for t in qdma(opt, j, S_WB, 0, 'q', qw=S_OW):
            e(t)
        e('s_waitcnt vmcnt(0)')
        for t in qread(lambda js: vr(OB + 4 * js, 4), V_KA[0], 0) + prescale(j, OB, False):
            e(t)

    def tile_dma(kv):
        for q in range(4):
            e('s_add_u32 m0, %s, %d' % (sr(S_WB), (VRING if kv else 0) + q * 4096))
            e('s_add_u32 %s, %s, %d' % (sr(S_T1), sr(S_OFF), q * 4096))
            for p in range(4):
                e('buffer_load_dwordx4 %s, %s, %s offen offset:%d lds' % (vr(V_DV[p & 1] if kv else V_DK[p]), sr(S_SRDV if kv else S_SRDK, 4), sr(S_T1), p * 1024))

    for j in range(5):
        e('v_mov_b32 %s, 0xff800000' % vr(V_L[j]))
        for x in range(4):
            e('v_mov_b32 %s, 0' % vr(NM + 4 * j + x))
    e('s_lshl_b32 %s, %s, 18' % (sr(S_OFF), sr(S_HI)))
    e('s_mov_b32 %s, 16' % sr(S_CNT))
    a.label('L_sp1')
    tile_dma(0)
    e('s_waitcnt vmcnt(0)')
    for i in range(16):
        e(kread(i, 0))
    for j in range(5):
        for t in qk(j, 0):
            e(t)
        for x in range(8):
            e('v_max3_f32 %s, %s, %s, %s' % (vr(V_L[j]), vr(V_L[j]), vr(SB[0] + 2 * x), vr(SB[0] + 2 * x + 1)))
    e('s_add_u32 %s, %s, %d' % (sr(S_OFF), sr(S_OFF), SLOT))
    e('s_sub_u32 %s, %s, 1' % (sr(S_CNT), sr(S_CNT)))
    e('s_cmp_lg_u32 %s, 0' % sr(S_CNT))
    e('s_cbranch_scc1 L_sp1')
    for j in range(5):
        t, u = vr(V_L[j]), vr(V_U)
        e('v_mov_b32 %s, %s' % (u, t))
        e('v_permlane16_swap_b32 %s, %s' % (t, u))
        e('v_max_f32 %s, %s, %s' % (t, t, u))
        e('v_mov_b32 %s, %s' % (u, t))
        e('v_permlane32_swap_b32 %s, %s' % (t, u))
        for x in range(4):
            e('v_min_f32 %s, -%s, -%s' % (vr(NM + 4 * j + x), t, u))
        e('v_mov_b32 %s, 0' % t)
    for x in range(80):
        e('v_mov_b64 %s, 0' % vr(OB + 2 * x, 2))
    e('s_lshl_b32 %s, %s, 18' % (sr(S_OFF), sr(S_HI)))
    e('s_mov_b32 %s, 16' % sr(S_CNT))
    a.label('L_sp2')
    tile_dma(0)
    tile_dma(1)
    e('s_waitcnt vmcnt(0)')
    for i in range(16):
        e(kread(i, 0))
    for i in range(16):
        for t in range(2):
            e(vread(i, t, 0))
    for j in range(5):
        for t in qk(j, 0):
            e(t)
        for _, t in softmax_ops(j, 0):
            e(t)
        for t in pv(j, 0):
            e(t)
    e('s_add_u32 %s, %s, %d' % (sr(S_OFF), sr(S_OFF), SLOT))
    e('s_sub_u32 %s, %s, 1' % (sr(S_CNT), sr(S_CNT)))
    e('s_cmp_lg_u32 %s, 0' % sr(S_CNT))
    e('s_cbranch_scc1 L_sp2')
    for j in range(5):
        for t in epi_head(j, 0)[:7] + epi_pack(j) + epi_write(j) + epi_fetch(j) + epi_store(j, S_SRDO, ''):
            e(t)
    e('s_waitcnt vmcnt(0)')
    a.label('L_sp_next')
    e('s_add_u32 %s, %s, 1' % (sr(S_HI), sr(S_HI)))
    e('s_cmp_lt_u32 %s, 2' % sr(S_HI))
    e('s_cbranch_scc1 L_sp_head')
    e('s_branch L_fin')


def gen(opt):
    a = Asm()
    a.lag = opt.get('lag', 8)
    a.drop = opt.get('dropall', ())
    e = a.e
    diag = opt.get('diag', False)
    stA = opt.get('sta', '')
    stP = opt.get('stp', '')
    stB = opt.get('stb', ' sc1')
    park = opt.get('park', True)

    def stamp(i, h, real=False):
        if diag:
            b = (64 if h == 0 else 48) + 2 * i
            e('%s s[%d:%d]' % ('s_memrealtime' if real else 's_memtime', b, b + 1))
            e('s_waitcnt lgkmcnt(0)')

    def dump_stamps():
        if not diag:
            return
        e('s_lshl_b32 s80, s2, 2')
        e('s_add_u32 s80, s80, %s' % sr(S_W))
        e('s_lshl_b32 s80, s80, 7')
        e('v_mov_b32 v31, s80')
        for q in range(8):
            for x in range(4):
                e('v_mov_b32 v%d, s%d' % (252 + x, (64 if q < 4 else 32) + 4 * q + x))
            e('s_mov_b64 exec, 1')
            e('global_store_dwordx4 v31, v[252:255], s[84:85] offset:%d' % (16 * q))
            e('s_mov_b64 exec, -1')
            e('s_nop 1')

    e('s_cmp_ge_u32 s2, 256')
    e('s_cbranch_scc1 L_end')
    e('s_load_dwordx8 s[4:11], s[0:1], 0')
    if diag:
        e('s_load_dwordx2 s[84:85], s[0:1], 40')
        stamp(0, 0)
        stamp(6, 0, True)
    e('v_lshrrev_b32 v244, 6, v0')
    e('v_and_b32 v0, 63, v0')
    e('v_readfirstlane_b32 %s, v244' % sr(S_W))
    cpf = opt.get('cpf', 64)
    if cpf:
        e('s_getpc_b64 s[46:47]')
        a.label('L_pc')
        e('s_lshr_b32 %s, s2, 3' % sr(S_T0))
        e('s_lshl_b32 %s, %s, 2' % (sr(S_T0), sr(S_T0)))
        e('s_add_u32 %s, %s, %s' % (sr(S_T0), sr(S_T0), sr(S_W)))
        e('s_and_b32 %s, %s, %d' % (sr(S_T0), sr(S_T0), cpf - 1))
        e('s_lshl_b32 %s, %s, 10' % (sr(S_T0), sr(S_T0)))
        e('s_min_u32 %s, %s, L_slow-L_pc-512' % (sr(S_T0), sr(S_T0)))
        e('v_lshl_add_u32 v245, v0, 4, %s' % sr(S_T0))
        e('global_load_dwordx4 %s, v245, s[46:47] ; @cpf' % ar(A_SP, 4))
    e('v_and_b32 v244, 15, v0')
    e('v_lshrrev_b32 v245, 4, v0')
    e('s_lshl_b32 %s, %s, 12' % (sr(S_WB), sr(S_W)))
    e('s_lshl_b32 %s, %s, 14' % (sr(S_QW), sr(S_W)))
    e('s_lshl_b32 %s, %s, 13' % (sr(S_SW), sr(S_W)))
    e('s_add_u32 %s, %s, %d' % (sr(S_SW), sr(S_SW), STAGE))
    e('s_lshl_b32 %s, s2, 1' % sr(S_HEAD))
    e('s_mul_i32 %s, %s, %d' % (sr(S_T0), sr(S_HEAD), QH))
    e('s_lshl_b32 %s, %s, 18' % (sr(S_T2), sr(S_HEAD)))
    for srd in (S_SRDK, S_SRDV, S_SRDQ, S_SRDO, S_SRDO2):
        e('s_mov_b32 %s, 0x00020000' % sr(srd + 3))
    e('v_lshlrev_b32 v246, 8, v245')
    e('v_add_u32 v246, %s, v246' % sr(S_WB))
    for p in range(4):
        e('v_add_u32 v247, %d, v245' % (4 * p))
        e('v_xor_b32 v247, v247, v244')
        e('v_lshl_add_u32 %s, v247, 4, v246' % vr(V_DK[p]))
    e('s_waitcnt lgkmcnt(0)')
    set_srd(a, S_SRDQ, 4, S_T0, QH)
    QAREA = [(S_WB, 2 * SLOT), (S_WB, 3 * SLOT), (S_WB, VRING + 2 * SLOT), (S_WB, VRING + 3 * SLOT), (S_SW, 0)]
    qd = [qdma(opt, j, QAREA[j][0], QAREA[j][1], 'q%d' % j) for j in range(5)]
    for t in qd[0] + qd[1]:
        e(t)
    for p in range(2):
        e('v_add_u32 v247, %d, v245' % (4 * p))
        e('v_lshlrev_b32 v247, 1, v247')
        e('v_xor_b32 v247, v247, v244')
        e('v_lshl_add_u32 %s, v247, 4, v246' % vr(V_DV[p]))
    c = f32bits(128 ** -0.5 * math.log2(math.e))
    e('s_mov_b32 %s, 0x%08x' % (sr(S_C), c))
    e('s_mov_b32 %s, 0x%08x' % (sr(S_C + 1), c))
    e('s_mov_b32 %s, 0x%08x' % (sr(S_THR), f32bits(opt.get('thr', 2.0 ** 24))))
    e('s_mov_b32 %s, 0xffff0000' % sr(S_MASK))
    if opt.get('rot', 0):
        e('s_lshr_b32 %s, s2, 4' % sr(S_R))
        e('s_xor_b32 %s, %s, s2' % (sr(S_R), sr(S_R)))
        e('s_and_b32 %s, %s, 15' % (sr(S_R), sr(S_R)))
        e('s_lshl_b32 %s, %s, 14' % (sr(S_R), sr(S_R)))
        e('s_mov_b32 %s, 0' % sr(S_N))
        e('s_mov_b32 %s, %s' % (sr(S_OFF), sr(S_R)))
    else:
        e('s_mov_b32 %s, 0' % sr(S_OFF))
    e('s_mul_i32 %s, %s, %d' % (sr(S_OW), sr(S_W), 80 * 256))
    if opt.get('trace'):
        e('s_mov_b32 s88, 0')
        e('v_mov_b32 v29, 0')
    set_srd(a, S_SRDK, 6, S_T2, 2 * KH)
    set_srd(a, S_SRDV, 8, S_T2, 2 * KH)
    for js in range(4):
        e('v_add_u32 v247, %d, v245' % (4 * js))
        e('v_xor_b32 v247, v247, v244')
        e('v_lshlrev_b32 v247, 4, v247')
        e('v_lshl_add_u32 %s, v244, 8, v247' % vr(V_KA[js]))
    e('v_mul_u32_u24 v247, 272, v244')
    e('v_lshl_add_u32 v247, v245, 3, v247')
    e('v_add_u32 %s, %s, v247' % (vr(V_PW), sr(S_SW)))
    e('v_mul_u32_u24 v247, 272, v245')
    e('v_lshl_add_u32 v247, v244, 4, v247')
    e('v_add_u32 %s, %s, v247' % (vr(V_PR), sr(S_SW)))
    e('v_lshlrev_b32 %s, 4, v0' % vr(V_LIN))
    e('v_and_b32 v247, 1, v245')
    e('v_lshlrev_b32 v247, 5, v247')
    e('v_lshl_add_u32 v247, v244, 8, v247')
    e('v_lshrrev_b32 v248, 1, v245')
    e('v_lshl_add_u32 %s, v248, 4, v247' % vr(V_OS))
    e('v_bfe_u32 v246, v0, 2, 2')
    e('v_lshl_add_u32 v247, v245, 2, v246')
    e('v_and_b32 v248, 7, v247')
    e('v_lshlrev_b32 v247, 8, v247')
    e('v_and_b32 v249, 3, v0')
    e('v_lshl_add_u32 v247, v249, 3, v247')
    e('v_add_u32 v247, %d, v247' % VRING)
    for db in range(8):
        e('v_xor_b32 v249, %d, v248' % db)
        e('v_lshl_add_u32 %s, v249, 5, v247' % vr(V_VA[db]))
    set_srd(a, S_SRDO, 10, S_T0, QH)
    e('s_add_u32 %s, %s, %d' % (sr(S_T0), sr(S_T0), QH))
    set_srd(a, S_SRDO2, 10, S_T0, QH)
    e('s_mov_b64 %s, 0' % sr(S_FLAG[0], 2))
    e('s_mov_b64 %s, 0' % sr(S_FLAG[1], 2))
    e('s_mov_b32 %s, 4' % sr(S_CNT))
    e('s_mov_b32 %s, 0' % sr(S_ENDV))
    e('s_mov_b64 vcc, 0')
    QA = 252
    e('s_add_u32 %s, %s, %d' % (sr(S_T2), sr(S_WB), VRING))
    for t in qaddr(NM, S_WB) + qaddr(NM + 4, S_T2) + qaddr(NM + 8, S_SW):
        e(t)
    QRD = [(NM, 2 * SLOT), (NM, 3 * SLOT), (NM + 4, 2 * SLOT), (NM + 4, 3 * SLOT), (NM + 8, 0)]
    for t in qd[2]:
        e(t)
    s0, s1 = dma_ops(opt, 0, 's0'), dma_ops(opt, 1, 's1')
    later = {0: qd[3], 1: qd[4], 2: s0[:5], 3: s0[5:], 4: s1[:5]}
    for j in range(5):
        e('WAITVM q%d' % j)
        if j == 0:
            stamp(1, 0)
        for t in qread(lambda js: vr(OB + 16 * j + 4 * js, 4), QRD[j][0], QRD[j][1]):
            e(t)
        for t in later[j]:
            e(t)
        for t in prescale(j, OB + 16 * j, False):
            e(t)
    set_srd(a, S_SRDQ, 4, S_T0, QH)
    e('WAITVM s0k')
    if opt.get('stag'):
        e('s_lshr_b32 s80, s2, 3')
        e('s_and_b32 s80, s80, 7')
        a.label('L_stag')
        e('s_cmp_eq_u32 s80, 0')
        e('s_cbranch_scc1 L_stagd')
        e('s_sleep %d' % opt['stag'])
        e('s_sub_u32 s80, s80, 1')
        e('s_branch L_stag')
        a.label('L_stagd')
    e('s_barrier')
    for i in range(16):
        e(kread(i, 0))
    for t in s1[5:]:
        e(t)
    m_head = a.mark()
    stamp(2, 0)
    max_phase(a, ZERO4, 'a')
    e('WAITVM s0')
    e('s_barrier')
    stamp(3, 0)
    mf, gaps = body_tables(opt, 0, cold=True, fresh=True)
    emit_body(a, opt, mf, gaps, 's_waitcnt vmcnt(16)', auto=True)
    e('s_branch L_b1')
    m_first_end = a.mark()

    marks = {}

    def seed_pend(slot):
        a.pend = [(Ins(kread(i, slot)).wr, a.nmfma - (31 - 2 * i)) for i in range(16)]

    late = opt.get('trace') or max(opt.get('dgaps', DG)) > 98
    cg = 155 if late else 103
    FREE0 = [1, 3, 7, 11, 15]
    variants = []
    a.raw('.p2align 6')
    def qvariant(gaps, rd, dm):
        if rd is not None:
            place(gaps, qaddr(T0, S_SW), [0, 0, 1, 1])
            place(gaps, qread(lambda js: ar(A_SP + 16 * rd[1] + 4 * js, 4), T0, rd[0] * 4096), [5, 5, 9, 13])
        place(gaps, qdma(opt, dm[0], S_SW, dm[1] * 4096, 'q'), [1, 2, 3, 7, 11, 15])

    for name, rd, dm, j in (('qa3', None, (2, 0), 0), ('qa2', (1, 1), (4, 0), 0), ('qb3', 0, 0, 2), ('qb2', 0, 0, 3), ('qb1', 0, 0, 4), ('qa1', None, (0, 0), 0)):
        a.label('L_' + name)
        m0_ = a.mark()
        seed_pend(0)
        mf, gaps = body_tables(opt, 0)
        if name[1] == 'a':
            qvariant(gaps, rd, dm)
        elif park:
            place(gaps, epi_store(j, S_SRDO, stP, parked=True), FREE0)
        emit_body(a, opt, mf, gaps, None, lo=0, hi=16)
        if name != 'qa1':
            e('s_branch L_b0g1')
        variants.append((m0_, a.mark()))
    for slot in range(4):
        mf, gaps = body_tables(opt, slot)
        bw = 's_waitcnt vmcnt(16)'
        if slot == 0 and park and opt.get('exactw', True):
            bw = 's_waitcnt vmcnt(20)'
        if slot == 1:
            gaps[99].append((1, 's_sub_u32 %s, %s, 2' % (sr(S_T2), sr(S_CNT))))
            gaps[cg].append((1, 's_cmp_le_u32 %s, 1' % sr(S_T2)))
        if slot == 2:
            gaps[99].append((1, 's_sub_u32 %s, %s, 1' % (sr(S_CNT), sr(S_CNT))))
            if opt.get('exactw', True):
                gaps[127 if late else 103].append((1, 's_cmp_le_u32 %s, 1' % sr(S_T2)))
                bw = ['s_waitcnt vmcnt(20)', 's_cbranch_scc1 L_w2', 's_waitcnt vmcnt(16)', 'L_w2:']
            gaps[155].append((1, 's_cmp_eq_u32 %s, %s' % (sr(S_CNT), sr(S_ENDV))))
        if slot == 3:
            gaps[99].append((1, 's_sub_u32 %s, %s, %s' % (sr(S_T2), sr(S_CNT), sr(S_ENDV))))
            gaps[cg].append((1, 's_cmp_eq_u32 %s, 3' % sr(S_T2)))
        marks[slot] = a.mark()
        if slot != 0:
            a.label('L_b%d' % slot)
            seed_pend(slot)
            emit_body(a, opt, mf, gaps, None, lo=0, hi=16)
        a.label('L_b%dg1' % slot)
        a.pend = []
        emit_body(a, opt, mf, gaps, bw, lo=16)
        if slot == 1:
            e('s_cbranch_scc1 L_qlds')
        if slot == 2:
            e('s_cbranch_scc1 L_exit')
    marks[4] = a.mark()
    e('s_cbranch_vccnz L_backb')
    e('s_cbranch_scc1 L_qa3')
    e('s_cmp_eq_u32 %s, 2' % sr(S_T2))
    e('s_cbranch_scc1 L_qa2')
    e('s_branch L_qa1')
    a.label('L_backb')
    e('s_cbranch_scc1 L_qb3')
    e('s_cmp_eq_u32 %s, 2' % sr(S_T2))
    e('s_cbranch_scc1 L_qb2')
    e('s_branch L_qb1')
    a.label('L_qlds')
    e('s_cmp_eq_u32 %s, 2' % sr(S_CNT))
    e('s_cbranch_scc1 L_qm2')
    v2 = []
    for name, rd, dm in (('qm3', (0, 0), (3, 1)), ('qm2', (0, 2), (1, 1))):
        a.label('L_' + name)
        m0_ = a.mark()
        seed_pend(2)
        mf, gaps = body_tables(opt, 2)
        qvariant(gaps, rd, dm)
        emit_body(a, opt, mf, gaps, None, lo=0, hi=16)
        e('s_branch L_b2g1')
        v2.append((m0_, a.mark()))
    a.label('L_exit')
    e('s_cbranch_vccnz L_lastb')
    m_last = a.mark()
    stamp(4, 0)
    seed_pend(3)
    a.vmq = ['n1'] * 8 + ['n2'] * 8
    mf, gaps = body_tables(opt, 3)
    place(gaps, qaddr(QA, S_SW), [3, 7, 11, 15])
    for j in range(2):
        place(gaps, qread(lambda js: ar(A_Q + 16 * j + 4 * js, 4), QA, j * 4096), [32 * j + 16] * 4)
        block(gaps, 32 * j + 29, prescale(j, A_Q + 16 * j, True))
    for j in (2, 3, 4):
        block(gaps, 32 * j + 17, prescale(j, A_SP + 16 * (j - 2), True))
    for j in range(3):
        k = 48 + 32 * j + 17
        pk_ = park and j >= 2
        block(gaps, k, epi_head(j, 0) + epi_pack(j))
        epi_spread(gaps, j, k, S_SRDO, stA, pk_, tight=(j == 2))
    emit_body(a, opt, mf, gaps, 'WAITVM n1', auto=True)
    stamp(5, 0)
    stamp(7, 0, True)
    for x in (0, 1, 2):
        stamp(x, 1)
    stamp(6, 1, True)
    e('s_mov_b32 %s, 14' % sr(S_CNT))
    e('s_mov_b32 %s, 10' % sr(S_ENDV))
    e('s_mov_b64 vcc, -1')
    max_phase(a, epi_head(3, 0) + epi_pack(3, False), 'b')
    stamp(3, 1)
    mf, gaps = body_tables(opt, 0, fresh=True)
    epi_spread(gaps, 3, -1, S_SRDO, stA, park)
    block(gaps, 47, epi_head(4, 0) + epi_pack(4))
    epi_spread(gaps, 4, 47, S_SRDO, stA, park)
    block(gaps, 115, ZERO4P)
    emit_body(a, opt, mf, gaps, 'WAITVM n2', auto=True)
    e('s_branch L_b1')
    m_last_end = a.mark()
    a.label('L_lastb')
    m_lastb = a.mark()
    stamp(4, 1)
    seed_pend(3)
    a.vmq = ['n2'] * 8
    a.drop = tuple(opt.get('droplast', ())) + tuple(opt.get('dropall', ()))
    mf, gaps = body_tables(opt, 3, dma=False, kpre=False)
    for j in range(3):
        k = 48 + 32 * j + 17
        block(gaps, k, epi_head(j, 1) + epi_pack(j))
        epi_spread(gaps, j, k, S_SRDO2, stB, False, tight=(j == 2))
    emit_body(a, opt, mf, gaps, 'WAITVM n2', auto=True)
    sb4 = (3 + 4) & 1
    F = [(t, 0) for g, t in softmax_ops(4, sb4) if 128 + W0 + g >= 160]
    n4 = len(F)
    F += [(t, 0) for t in epi_head(3, 1) + epi_pack(3)]
    n4 = len(F)
    h4 = epi_head(4, 1)
    for x, t in enumerate(epi_write(3)):
        F += [(t, 0), (h4[x], 0)]
    F += [(h4[8], 0)] + [(t, 0) for t in epi_fetch(3)]
    merge(a, [(t, n4) for t in pv(4, sb4)], F)
    d4 = epi_direct(4, S_SRDO2, stB)
    for t in epi_store(3, S_SRDO2, stB) + d4:
        e(t)
    stamp(5, 1)
    stamp(7, 1, True)
    a.drop = ()
    m_end = a.mark()
    a.label('L_slow')
    slow_path(a, opt)
    a.label('L_fin')
    if opt.get('dbg'):
        e('s_cmp_ge_u32 s2, 4')
        e('s_cbranch_scc1 L_end')
        e('s_cmp_lg_u32 %s, 0' % sr(S_W))
        e('s_cbranch_scc1 L_end')
        e('s_load_dwordx2 s[82:83], s[0:1], 32')
        e('s_waitcnt lgkmcnt(0)')
        vals = ['s_sub_u32 s80, s62, s76', 's_sub_u32 s80, s72, s64', 's_sub_u32 s80, s56, s54', 's_sub_u32 s80, s58, s64']
        for n, t in enumerate(vals):
            e(t)
            e('v_mov_b32 v%d, s80' % (252 + n))
        e('s_lshl_b32 s80, s2, 4')
        e('v_mov_b32 v31, s80')
        e('s_mov_b64 exec, 1')
        e('global_store_dwordx4 v31, v[252:255], s[82:83]')
    else:
        dump_stamps()
    if opt.get('trace'):
        e('s_lshl_b32 s80, s80, 1')
        e('s_add_u32 s80, s80, 131072')
        e('v_lshl_add_u32 v31, v0, 2, s80')
        e('global_store_dword v31, v29, s[84:85]')
    a.label('L_end')
    e('s_endpgm')

    I = a.ins
    B = lambda s: I[marks[s]:marks[s + 1]]
    bad = []
    seq = I[m_head:m_first_end] + B(1) + B(2) + B(3)
    for lo, hi in variants:
        seq += I[lo:hi] + B(0) + B(1) + B(2) + B(3)
    bad += check_hazards(seq, 'loop')
    g1 = [k for k in range(marks[2], marks[3]) if I[k].text == 'L_b2g1:'][0]
    for lo, hi in v2:
        bad += check_hazards(B(1) + I[lo:hi] + I[g1:marks[3]], 'mid')
    bad += check_hazards(B(2) + I[m_last:m_last_end] + B(1) + B(2) + I[m_lastb:m_end], 'edges')
    sl = I[m_end:]
    bad += check_hazards(sl + sl, 'slow')
    for b in bad[:8]:
        print('HAZARD', b, file=sys.stderr)
    assert not bad or opt.get('nocheck')
    print('body instrs: %d, total %d' % (sum(1 for i in B(1) if i.kind != 'none'), len(I)), file=sys.stderr)

    hdr = open('cdna_kernels/%s.s.ref' % NAME).read().split('\n')
    out = '\n'.join(hdr[:9]) + '\n'
    out += '; @launch grid=(256,1,1) block=(256,1,1) lds=%d\n' % LDS_BYTES
    out += '.amdgcn_target "amdgcn-amd-amdhsa--gfx950"\n.text\n.globl %s_kernel\n.p2align 8\n.type %s_kernel,@function\n%s_kernel:\n' % (NAME, NAME, NAME)
    out += a.text()
    out += '''.section .rodata,"a"
.p2align 6
.amdhsa_kernel %s_kernel
  .amdhsa_next_free_vgpr 512
  .amdhsa_next_free_sgpr 102
  .amdhsa_accum_offset 256
  .amdhsa_group_segment_fixed_size 0
  .amdhsa_kernarg_size 48
  .amdhsa_user_sgpr_count 2
  .amdhsa_user_sgpr_kernarg_segment_ptr 1
  .amdhsa_system_sgpr_workgroup_id_x 1
.end_amdhsa_kernel
''' % NAME
    return out


if __name__ == '__main__':
    opt = {}
    outp = sys.argv[1]
    for kv in sys.argv[2:]:
        k, v = kv.split('=', 1)
        try:
            v = eval(v)
        except Exception:
            pass
        opt[k] = v
    open(outp, 'w').write(gen(opt))
```

```python
import sys, struct, math, re
from asmlib import Asm, Ins, check_hazards

NAME = 'standalone__mha_softmax__near_ridge'
LDS_BYTES = 163840
QH = 304 * 256
KH = 1024 * 256
VRING = 65536
SLOT = 16384

V_KA = [1, 2, 3, 4]
V_VA = [5, 6, 7, 8, 9, 10, 11, 12]
V_DK = [13, 14, 15, 16]
V_DV = [17, 18]
V_L = [19, 20, 21, 22, 23]
V_OS = 27
V_PW, V_PR, V_LIN = 24, 25, 26
V_R, V_U = 28, 30
OB = 32
NM = 192
SB = (212, 228)
T0 = 244
A_Q, A_K, A_V, A_SP = 0, 80, 144, 208
S_SRDK, S_SRDV, S_SRDQ, S_SRDO = 12, 16, 20, 24
S_OFF, S_WB, S_CNT, S_HI, S_W = 28, 29, 30, 31, 32
S_C, S_THR, S_MASK = 34, 36, 37
S_FLAG = (38, 90)
S_ENDV = 40
S_T0, S_T1, S_T2 = 41, 42, 43
S_HEAD = 44
S_QW, S_SW, S_OW, S_SO = 98, 99, 100, 101
S_N, S_R = 33, 45
S_SRDO2 = 92


def f32bits(x):
    return struct.unpack('<I', struct.pack('<f', x))[0]


def vr(b, n=1):
    return 'v%d' % b if n == 1 else 'v[%d:%d]' % (b, b + n - 1)


def ar(b, n=1):
    return 'a%d' % b if n == 1 else 'a[%d:%d]' % (b, b + n - 1)


def sr(b, n=1):
    return 's%d' % b if n == 1 else 's[%d:%d]' % (b, b + n - 1)


MF = 'v_mfma_f32_16x16x32_bf16'
ALAG = 0


def qk(j, sb):
    out = []
    for kt in range(4):
        d = vr(SB[sb] + 4 * kt, 4)
        for js in range(4):
            c = vr(NM + 4 * j, 4) if js == 0 else d
            out.append('%s %s, %s, %s, %s' % (MF, d, ar(A_K + 16 * kt + 4 * js, 4), ar(A_Q + 16 * j + 4 * js, 4), c))
    return out


PVB = False


def pv(j, sb, czero=False):
    out = []
    for i in range(16):
        db, ks = ((i & 7), i >> 3) if PVB else (i >> 1, i & 1)
        o = vr(OB + 32 * j + 4 * db, 4)
        c = '0' if (czero and ks == 0) else o
        out.append('%s %s, %s, %s, %s' % (MF, o, ar(A_V + 32 * ks + 4 * db, 4), vr(SB[sb] + 4 * ks, 4), c))
    return out


def kread(i, slot):
    kt, js = i >> 2, i & 3
    return 'ds_read_b128 %s, %s offset:%d' % (ar(A_K + 4 * i, 4), vr(V_KA[js]), slot * SLOT + kt * 4096)


def vread(i, t, slot):
    db, ks = ((i & 7), i >> 3) if PVB else (i >> 1, i & 1)
    return 'ds_read_b64_tr_b16 %s, %s offset:%d' % (ar(A_V + 32 * ks + 4 * db + 2 * t, 2), vr(V_VA[db]), slot * SLOT + ks * 8192 + t * 4096)


def softmax_ops(j, sb, first=False):
    s = SB[sb]
    l = V_L[j]
    ops = []
    for r in range(16):
        ops.append((2 * r - ALAG, 'v_exp_f32 %s, %s' % (vr(s + r), vr(s + r))))
        if first and r == 0:
            ops.append((2 * r + 1, 'v_mov_b32 %s, %s' % (vr(l), vr(s + r))))
        else:
            ops.append((2 * r + 1, 'v_add_f32 %s, %s, %s' % (vr(l), vr(l), vr(s + r))))
        if r & 1:
            k = r >> 1
            ops.append((2 * r + 1, 'v_cvt_pk_bf16_f32 %s, %s, %s' % (vr(s + k), vr(s + 2 * k), vr(s + 2 * k + 1))))
    ops.sort(key=lambda x: x[0])
    return ops


def dma_ops(opt, slot, tag, split=False):
    fl = opt.get('dmaflags', ' nt')
    o = ['s_and_b32 m0, %s, 0xffff' % sr(S_OFF)]
    for p in range(4):
        o.append('buffer_load_dwordx4 %s, %s, %s offen offset:%d%s lds ; @%s' % (vr(V_DK[p]), sr(S_SRDK, 4), sr(S_OFF), p * 1024, fl, tag + 'k'))
    o.append('s_add_u32 m0, m0, %d' % VRING if not split else 's_add_u32 m0, %s, %d' % (sr(S_WB), VRING + slot * SLOT))
    for p in range(4):
        o.append('buffer_load_dwordx4 %s, %s, %s offen offset:%d%s lds ; @%s' % (vr(V_DV[p & 1]), sr(S_SRDV, 4), sr(S_OFF), p * 1024, fl, tag))
    if opt.get('rot', 0):
        o.append('s_add_u32 %s, %s, %d\n    s_xor_b32 %s, %s, %s' % (sr(S_N), sr(S_N), SLOT, sr(S_OFF), sr(S_N), sr(S_R)))
    else:
        o.append('s_add_u32 %s, %s, %d' % (sr(S_OFF), sr(S_OFF), SLOT))
    return o


def qdma(opt, j, m0base, m0off, tag, qw=None):
    fl = opt.get('qflags', ' nt')
    o = ['s_add_u32 m0, %s, %d' % (sr(m0base), m0off),
         's_add_u32 %s, %s, %d' % (sr(S_T1), sr(S_OW), j * 4096)]
    for p in range(4):
        o.append('buffer_load_dwordx4 %s, %s, %s offen offset:%d%s lds ; @%s' % (vr(V_DK[p]), sr(S_SRDQ, 4), sr(S_T1), p * 1024, fl, tag))
    return o


def qaddr(base, sg):
    return ['v_add_u32 %s, %s, %s' % (vr(base + js), sr(sg), vr(V_KA[js])) for js in range(4)]


def qread(dst, base, off):
    return ['ds_read_b128 %s, %s offset:%d' % (dst(js), vr(base + js), off) for js in range(4)]


def prescale(j, src, from_acc, dst=None):
    o = []
    for g in range(4):
        T = [T0 + 2 * x for x in range(4)]
        for x in range(4):
            if from_acc:
                o.append('v_accvgpr_read_b32 %s, %s' % (vr(T[x] + 1), ar(src + 4 * g + x)))
        for x in range(4):
            s = vr(T[x] + 1) if from_acc else vr(src + 4 * g + x)
            o.append('v_lshlrev_b32 %s, 16, %s' % (vr(T[x]), s))
        for x in range(4):
            s = vr(T[x] + 1) if from_acc else vr(src + 4 * g + x)
            o.append('v_and_b32 %s, %s, %s' % (vr(T[x] + 1), sr(S_MASK), s))
        for x in range(4):
            o.append('v_pk_mul_f32 %s, %s, %s' % (vr(T[x], 2), vr(T[x], 2), sr(S_C, 2)))
        for x in range(4):
            o.append('v_cvt_pk_bf16_f32 %s, %s, %s' % (vr(T[x]), vr(T[x]), vr(T[x] + 1)))
        for x in range(4):
            o.append('v_accvgpr_write_b32 %s, %s' % (ar((A_Q + 16 * j if dst is None else dst) + 4 * g + x), vr(T[x])))
    return o


STAGE = 131072


def epi_head(j, h):
    l, u = vr(V_L[j]), vr(V_U)
    return ['v_mov_b32 %s, %s' % (u, l),
            'v_permlane16_swap_b32 %s, %s' % (l, u),
            'v_add_f32 %s, %s, %s' % (l, l, u),
            'v_mov_b32 %s, %s' % (u, l),
            'v_permlane32_swap_b32 %s, %s' % (l, u),
            'v_add_f32 %s, %s, %s' % (l, l, u),
            'v_rcp_f32 %s, %s' % (vr(V_R), l),
            'v_cmp_nge_f32 %s, %s, %s' % (sr(96, 2), sr(S_THR), l),
            's_or_b64 %s, %s, %s' % (sr(S_FLAG[h], 2), sr(S_FLAG[h], 2), sr(96, 2))]


def epi_pack(j, pk=True):
    o = []
    b0 = OB + 32 * j
    for h in range(2):
        if pk:
            for x in range(8):
                b = b0 + 16 * h + 2 * x
                o.append('v_pk_mul_f32 %s, %s, %s op_sel_hi:[1,0]' % (vr(b, 2), vr(b, 2), vr(V_R, 2)))
        else:
            for x in range(16):
                b = b0 + 16 * h + x
                o.append('v_mul_f32 %s, %s, %s' % (vr(b), vr(V_R), vr(b)))
        for db in range(4 * h, 4 * h + 4):
            b = b0 + 4 * db
            o.append('v_cvt_pk_bf16_f32 %s, %s, %s' % (vr(b), vr(b), vr(b + 1)))
            o.append('v_cvt_pk_bf16_f32 %s, %s, %s' % (vr(b + 1), vr(b + 2), vr(b + 3)))
    return o


def epi_write(j):
    return ['ds_write_b64 %s, %s offset:%d' % (vr(V_PW), vr(OB + 32 * j + 4 * db, 2), db * 32) for db in range(8)]


def epi_direct(j, srd, fl):
    o = ['s_add_u32 %s, %s, %d' % (sr(S_SO), sr(S_OW), j * 4096)]
    for mm in range(2):
        for m in (2 * mm, 2 * mm + 1):
            b = OB + 32 * j + 8 * m
            for x in range(4):
                o.append('v_pk_mul_f32 %s, %s, %s op_sel_hi:[1,0]' % (vr(b + 2 * x, 2), vr(b + 2 * x, 2), vr(V_R, 2)))
        for m in (2 * mm, 2 * mm + 1):
            b = OB + 32 * j + 8 * m
            for x in range(4):
                o.append('v_cvt_pk_bf16_f32 %s, %s, %s' % (vr(b + x), vr(b + 2 * x), vr(b + 2 * x + 1)))
        for m in (2 * mm, 2 * mm + 1):
            b = OB + 32 * j + 8 * m
            o.append('v_permlane16_swap_b32 %s, %s' % (vr(b), vr(b + 2)))
            o.append('v_permlane16_swap_b32 %s, %s' % (vr(b + 1), vr(b + 3)))
        for m in (2 * mm, 2 * mm + 1):
            b = OB + 32 * j + 8 * m
            o.append('buffer_store_dwordx4 %s, %s, %s, %s offen offset:%d%s ; @st' % (vr(b, 4), vr(V_OS), sr(srd, 4), sr(S_SO), m * 64, fl))
    return o


def epi_spread(gaps, j, k, srd, fl, parked, tight=False):
    place(gaps, epi_write(j), [k + 1 + 2 * x for x in range(8)])
    place(gaps, epi_fetch(j, parked), [k + 17, k + 18, k + 19, k + 20])
    if not parked:
        place(gaps, epi_store(j, srd, fl), [k + 22, k + 26, k + 27, k + 28, k + 30] if tight else [k + 22, k + 26, k + 30, k + 34, k + 38])


def odst(j, parked):
    return (lambda p: ar(A_SP + 16 * (j - 2) + 4 * p, 4)) if parked else (lambda p: vr(OB + 32 * j + 4 * p, 4))


def epi_fetch(j, parked=False):
    return ['ds_read_b128 %s, %s offset:%d' % (odst(j, parked)(p), vr(V_PR), p * 1088) for p in range(4)]


def epi_store(j, srd, fl, parked=False):
    o = ['s_add_u32 %s, %s, %d' % (sr(S_SO), sr(S_OW), j * 4096)]
    for p in range(4):
        o.append('buffer_store_dwordx4 %s, %s, %s, %s offen offset:%d%s ; @st' % (odst(j, parked)(p), vr(V_LIN), sr(srd, 4), sr(S_SO), p * 1024, fl))
    return o


def _tag4(fn, pairs=False):
    def w(j, *args, **kw):
        r = fn(j, *args, **kw)
        if j != 4:
            return r
        if pairs:
            return [(g, t + ' ; #4') for g, t in r]
        return [t if (t.startswith('buffer') and keep_vmem) or t.endswith(':') else (t + ' #4' if ';' in t else t + ' ; #4') for t in r]
    keep_vmem = False
    return w


qk, pv, prescale, epi_head, epi_pack, epi_write, epi_fetch, epi_direct = [_tag4(f) for f in (qk, pv, prescale, epi_head, epi_pack, epi_write, epi_fetch, epi_direct)]
softmax_ops = _tag4(softmax_ops, True)


def is_mem(t):
    return t.startswith(('ds_', 'buffer_', 'global_'))


def cost(t):
    if t.startswith(('v_exp', 'v_rcp')):
        return 8
    if t.endswith(':'):
        return 0
    return 4


def merge(a, mfmas, fillers, budget=8):
    fi = 0
    for mi, (text, need) in enumerate(mfmas):
        while fi < need:
            assert fillers[fi][1] <= mi, (fillers[fi], mi, text)
            a.e(fillers[fi][0])
            fi += 1
        a.e(text)
        b = budget
        valu = False
        while fi < len(fillers) and fillers[fi][1] <= mi + 1 and b > 0:
            t = fillers[fi][0]
            if is_mem(t) and valu:
                break
            if cost(t) > b and b < budget:
                break
            valu = valu or t.startswith('v_')
            b -= cost(t)
            a.e(t)
            fi += 1
    while fi < len(fillers):
        a.e(fillers[fi][0])
        fi += 1


def set_srd(a, srd, ptr, off, size):
    a.e('s_add_u32 %s, %s, %s' % (sr(srd), sr(ptr), sr(off)))
    a.e('s_addc_u32 %s, %s, 0' % (sr(srd + 1), sr(ptr + 1)))
    a.e('s_and_b32 %s, %s, 0xffff' % (sr(srd + 1), sr(srd + 1)))
    a.e('s_mov_b32 %s, %s' % (sr(srd + 2), size))


W0 = 14
DG = [51, 55, 63, 67, 71, 75, 79, 83, 87, 91, 95]


def body_tables(opt, slot, cold=False, fresh=False, dma=True, kpre=True):
    sbuf = lambda u: (slot + u) & 1
    groups = [qk(0, sbuf(0)), pv(4, sbuf(-1)), qk(1, sbuf(1)), pv(0, sbuf(0), fresh), qk(2, sbuf(2)), pv(1, sbuf(1), fresh),
              qk(3, sbuf(3)), pv(2, sbuf(2), fresh), qk(4, sbuf(4)), pv(3, sbuf(3), fresh)]
    mf = [t for g in groups for t in g]
    gaps = [[] for _ in range(160)]
    if cold:
        for k in range(16, 32):
            mf[k] = None
    else:
        for g, t in softmax_ops(4, sbuf(-1)):
            k = 128 + W0 + g - 160
            if k >= 0:
                gaps[k].append((5, t))
    for u in range(5):
        for g, t in softmax_ops(u, sbuf(u), fresh):
            k = 32 * u + W0 + g
            if cold and u == 0 and k < 32:
                k = min(7 + g, 15)
            if k < 160:
                gaps[k].append((5, t))
    for i in range(16):
        if not cold:
            for t in range(2):
                gaps[17 + 2 * i].append((0, vread(i, t, slot)))
        if kpre:
            gaps[129 + 2 * i].append((0, kread(i, (slot + 1) & 3)))
    if dma and not opt.get('nodma'):
        dg = opt.get('dgaps', DG)
        if cold:
            place(gaps, dma_ops(opt, 2, 's2'), [7, 8, 10, 12, 14, 43, 47, 51, 55, 59, 63])
            dg = [79, 83, 87, 91, 95, 99, 103, 107, 111, 115, 119]
        place(gaps, dma_ops(opt, 0, 'kv'), dg)
    return mf, gaps


def place(gaps, ops, where):
    assert len(ops) == len(where), (len(ops), len(where))
    for k, t in zip(where, ops):
        gaps[k].append((0 if is_mem(t) else (1 if t.startswith('s_') else 6), t))


def block(gaps, k, ops):
    for t in ops:
        gaps[k].append((7, t))


def emit_body(a, opt, mf, gaps, barwait, auto=False, lo=0, hi=160):
    a.auto_nop = auto or opt.get('_auto', False)
    for k in range(lo, hi):
        if mf[k] is not None:
            a.e(mf[k])
        for _, t in sorted(gaps[k], key=lambda x: x[0]):
            a.e(t)
        if opt.get('pace') and k % opt['pace'] == 0 and mf[k] is not None:
            a.e('s_nop 3')
        if k == 127 and barwait is not None:
            for t in (barwait if isinstance(barwait, list) else [barwait]):
                a.e(t)
            if opt.get('trace'):
                a.e('s_memrealtime s[86:87]')
                a.e('s_waitcnt lgkmcnt(0)')
                a.e('s_mov_b32 m0, s88')
                a.e('v_writelane_b32 v29, s86, m0')
                a.e('s_add_u32 s88, s88, 1')
            a.e('s_barrier')
    a.auto_nop = True


def max_phase(a, extra, tag):
    M, F = [], []
    extra = list(extra)
    take = lambda n: [extra.pop(0) for _ in range(min(n, len(extra)))]
    for j in range(5):
        d = vr(NM + 4 * j, 4)
        for js in range(4):
            M.append(('%s %s, %s, %s, %s' % (MF, d, ar(A_K + 4 * js, 4), ar(A_Q + 16 * j + 4 * js, 4), '0' if js == 0 else d), 0))
    for t in take(12):
        F.append((t, 0))
    for j in range(5):
        n = NM + 4 * j
        t, u = vr(T0 + 2 * j), vr(T0 + 2 * j + 1)
        ops = ['v_max3_f32 %s, %s, %s, %s' % (t, vr(n), vr(n + 1), vr(n + 2)),
               'v_max_f32 %s, %s, %s' % (t, t, vr(n + 3)),
               'v_mov_b32 %s, %s' % (u, t)] + take(2) + [
               'v_permlane16_swap_b32 %s, %s' % (t, u),
               'v_max_f32 %s, %s, %s' % (t, t, u),
               'v_mov_b32 %s, %s' % (u, t)] + take(2) + [
               'v_permlane32_swap_b32 %s, %s' % (t, u)]
        ops += ['v_min_f32 %s, -%s, -%s' % (vr(n + x), t, u) for x in range(4)]
        for o in ops:
            F.append((o, min(4 * j + 7, 20)))
    merge(a, M, F)
    for t in extra:
        a.e(t)
    a.e('s_cmp_lg_u32 %s, 3' % sr(S_W))
    a.e('s_cbranch_scc1 L_nd%s' % tag)
    for x in range(4):
        a.e('v_mov_b32 %s, 0x%08x' % (vr(NM + 16 + x), f32bits(-1e30)))
    a.label('L_nd%s' % tag)
    a.e('s_nop 1')


def max_one(j):
    n = NM + 4 * j
    d = vr(n, 4)
    t, u = vr(T0), vr(T0 + 1)
    o = ['%s %s, %s, %s, %s' % (MF, d, ar(A_K + 4 * js, 4), ar(A_Q + 16 * j + 4 * js, 4), '0' if js == 0 else d) for js in range(4)]
    o += ['v_max3_f32 %s, %s, %s, %s' % (t, vr(n), vr(n + 1), vr(n + 2)),
          'v_max_f32 %s, %s, %s' % (t, t, vr(n + 3)),
          'v_mov_b32 %s, %s' % (u, t),
          'v_permlane16_swap_b32 %s, %s' % (t, u),
          'v_max_f32 %s, %s, %s' % (t, t, u),
          'v_mov_b32 %s, %s' % (u, t),
          'v_permlane32_swap_b32 %s, %s' % (t, u)]
    o += ['v_min_f32 %s, -%s, -%s' % (vr(n + x), t, u) for x in range(4)]
    if j == 4:
        o += ['s_cmp_lg_u32 %s, 3' % sr(S_W), 's_cbranch_scc1 L_nda']
        o += ['v_mov_b32 %s, 0x%08x' % (vr(NM + 16 + x), f32bits(-1e30)) for x in range(4)]
        o += ['L_nda:', 's_nop 1']
    return o


ZERO4 = ['v_mov_b32 %s, 0 ; #4' % vr(OB + 128 + x) for x in range(32)]
ZERO4P = ['v_mov_b64 %s, 0 ; #4' % vr(OB + 128 + 2 * x, 2) for x in range(16)]


def slow_path(a, opt):
    e = a.e
    a.pend = []
    a.vmq = []
    e('s_or_b64 %s, %s, %s' % (sr(96, 2), sr(S_FLAG[0], 2), sr(S_FLAG[1], 2)))
    e('s_cbranch_scc0 L_fin')
    e('s_waitcnt vmcnt(0) lgkmcnt(0)')
    e('s_lshl_b32 %s, %s, 2' % (sr(S_T0), sr(S_WB)))
    for x in V_KA + V_VA:
        e('v_add_u32 %s, %s, %s' % (vr(x), sr(S_T0), vr(x)))
    e('s_mov_b32 %s, %s' % (sr(S_WB), sr(S_T0)))
    e('s_mov_b32 %s, 0' % sr(S_HI))
    a.label('L_sp_head')
    e('s_cmp_eq_u32 %s, 0' % sr(S_HI))
    e('s_cselect_b64 %s, %s, %s' % (sr(96, 2), sr(S_FLAG[0], 2), sr(S_FLAG[1], 2)))
    e('s_cmp_eq_u64 %s, 0' % sr(96, 2))
    e('s_cbranch_scc1 L_sp_next')
    e('s_lshl_b32 %s, s2, 1' % sr(S_T1))
    e('s_add_u32 %s, %s, %s' % (sr(S_T1), sr(S_T1), sr(S_HI)))
    e('s_mul_i32 %s, %s, %d' % (sr(S_T1), sr(S_T1), QH))
    set_srd(a, S_SRDQ, 4, S_T1, QH)
    set_srd(a, S_SRDO, 10, S_T1, QH)
    for j in range(5):
        for t in qdma(opt, j, S_WB, 0, 'q', qw=S_OW):
            e(t)
        e('s_waitcnt vmcnt(0)')
        for t in qread(lambda js: vr(OB + 4 * js, 4), V_KA[0], 0) + prescale(j, OB, False):
            e(t)

    def tile_dma(kv):
        for q in range(4):
            e('s_add_u32 m0, %s, %d' % (sr(S_WB), (VRING if kv else 0) + q * 4096))
            e('s_add_u32 %s, %s, %d' % (sr(S_T1), sr(S_OFF), q * 4096))
            for p in range(4):
                e('buffer_load_dwordx4 %s, %s, %s offen offset:%d lds' % (vr(V_DV[p & 1] if kv else V_DK[p]), sr(S_SRDV if kv else S_SRDK, 4), sr(S_T1), p * 1024))

    for j in range(5):
        e('v_mov_b32 %s, 0xff800000' % vr(V_L[j]))
        for x in range(4):
            e('v_mov_b32 %s, 0' % vr(NM + 4 * j + x))
    e('s_lshl_b32 %s, %s, 18' % (sr(S_OFF), sr(S_HI)))
    e('s_mov_b32 %s, 16' % sr(S_CNT))
    a.label('L_sp1')
    tile_dma(0)
    e('s_waitcnt vmcnt(0)')
    for i in range(16):
        e(kread(i, 0))
    for j in range(5):
        for t in qk(j, 0):
            e(t)
        for x in range(8):
            e('v_max3_f32 %s, %s, %s, %s' % (vr(V_L[j]), vr(V_L[j]), vr(SB[0] + 2 * x), vr(SB[0] + 2 * x + 1)))
    e('s_add_u32 %s, %s, %d' % (sr(S_OFF), sr(S_OFF), SLOT))
    e('s_sub_u32 %s, %s, 1' % (sr(S_CNT), sr(S_CNT)))
    e('s_cmp_lg_u32 %s, 0' % sr(S_CNT))
    e('s_cbranch_scc1 L_sp1')
    for j in range(5):
        t, u = vr(V_L[j]), vr(V_U)
        e('v_mov_b32 %s, %s' % (u, t))
        e('v_permlane16_swap_b32 %s, %s' % (t, u))
        e('v_max_f32 %s, %s, %s' % (t, t, u))
        e('v_mov_b32 %s, %s' % (u, t))
        e('v_permlane32_swap_b32 %s, %s' % (t, u))
        for x in range(4):
            e('v_min_f32 %s, -%s, -%s' % (vr(NM + 4 * j + x), t, u))
        e('v_mov_b32 %s, 0' % t)
    for x in range(80):
        e('v_mov_b64 %s, 0' % vr(OB + 2 * x, 2))
    e('s_lshl_b32 %s, %s, 18' % (sr(S_OFF), sr(S_HI)))
    e('s_mov_b32 %s, 16' % sr(S_CNT))
    a.label('L_sp2')
    tile_dma(0)
    tile_dma(1)
    e('s_waitcnt vmcnt(0)')
    for i in range(16):
        e(kread(i, 0))
    for i in range(16):
        for t in range(2):
            e(vread(i, t, 0))
    for j in range(5):
        for t in qk(j, 0):
            e(t)
        for _, t in softmax_ops(j, 0):
            e(t)
        for t in pv(j, 0):
            e(t)
    e('s_add_u32 %s, %s, %d' % (sr(S_OFF), sr(S_OFF), SLOT))
    e('s_sub_u32 %s, %s, 1' % (sr(S_CNT), sr(S_CNT)))
    e('s_cmp_lg_u32 %s, 0' % sr(S_CNT))
    e('s_cbranch_scc1 L_sp2')
    for j in range(5):
        for t in epi_head(j, 0)[:7] + epi_pack(j) + epi_write(j) + epi_fetch(j) + epi_store(j, S_SRDO, ''):
            e(t)
    e('s_waitcnt vmcnt(0)')
    a.label('L_sp_next')
    e('s_add_u32 %s, %s, 1' % (sr(S_HI), sr(S_HI)))
    e('s_cmp_lt_u32 %s, 2' % sr(S_HI))
    e('s_cbranch_scc1 L_sp_head')
    e('s_branch L_fin')


def gen(opt):
    global PVB
    PVB = opt.get('pvb', False)
    a = Asm()
    a.lag = opt.get('lag', 8)
    a.drop = opt.get('dropall', ())
    e = a.e
    diag = opt.get('diag', False)
    stA = opt.get('sta', ' sc1')
    stP = opt.get('stp', ' sc1')
    stB = opt.get('stb', ' sc1')
    park = opt.get('park', True)

    def stamp(i, h, real=False):
        if diag:
            b = (64 if h == 0 else 48) + 2 * i
            e('%s s[%d:%d]' % ('s_memrealtime' if real else 's_memtime', b, b + 1))
            e('s_waitcnt lgkmcnt(0)')

    def dump_stamps():
        if not diag:
            return
        e('s_lshl_b32 s80, s2, 2')
        e('s_add_u32 s80, s80, %s' % sr(S_W))
        e('s_lshl_b32 s80, s80, 7')
        e('v_mov_b32 v31, s80')
        for q in range(8):
            for x in range(4):
                e('v_mov_b32 v%d, s%d' % (252 + x, (64 if q < 4 else 32) + 4 * q + x))
            e('s_mov_b64 exec, 1')
            e('global_store_dwordx4 v31, v[252:255], s[84:85] offset:%d' % (16 * q))
            e('s_mov_b64 exec, -1')
            e('s_nop 1')

    e('s_cmp_ge_u32 s2, 256')
    e('s_cbranch_scc1 L_end')
    e('s_load_dwordx8 s[4:11], s[0:1], 0')
    if diag:
        e('s_load_dwordx2 s[84:85], s[0:1], 40')
        stamp(0, 0)
        stamp(6, 0, True)
    e('v_lshrrev_b32 v244, 6, v0')
    e('v_and_b32 v0, 63, v0')
    e('v_readfirstlane_b32 %s, v244' % sr(S_W))
    cpf = opt.get('cpf', 128 if opt.get('w3', True) else 64)
    if cpf:
        e('s_getpc_b64 s[46:47]')
        a.label('L_pc')
        e('s_lshr_b32 %s, s2, 3' % sr(S_T0))
        e('s_lshl_b32 %s, %s, 2' % (sr(S_T0), sr(S_T0)))
        e('s_add_u32 %s, %s, %s' % (sr(S_T0), sr(S_T0), sr(S_W)))
        e('s_and_b32 %s, %s, %d' % (sr(S_T0), sr(S_T0), cpf - 1))
        e('s_lshl_b32 %s, %s, 10' % (sr(S_T0), sr(S_T0)))
        e('s_min_u32 %s, %s, L_slow-L_pc-512' % (sr(S_T0), sr(S_T0)))
        e('v_lshl_add_u32 v245, v0, 4, %s' % sr(S_T0))
        e('global_load_dwordx4 %s, v245, s[46:47] ; @cpf' % ar(A_SP, 4))
    e('v_and_b32 v244, 15, v0')
    e('v_lshrrev_b32 v245, 4, v0')
    e('s_lshl_b32 %s, %s, 12' % (sr(S_WB), sr(S_W)))
    e('s_mul_i32 %s, %s, %d' % (sr(S_OW), sr(S_W), 80 * 256))
    e('s_lshl_b32 %s, %s, 13' % (sr(S_SW), sr(S_W)))
    e('s_add_u32 %s, %s, %d' % (sr(S_SW), sr(S_SW), STAGE))
    e('s_lshl_b32 %s, s2, 1' % sr(S_HEAD))
    e('s_mul_i32 %s, %s, %d' % (sr(S_T0), sr(S_HEAD), QH))
    e('s_lshl_b32 %s, %s, 18' % (sr(S_T2), sr(S_HEAD)))
    for srd in (S_SRDK, S_SRDV, S_SRDQ, S_SRDO, S_SRDO2):
        e('s_mov_b32 %s, 0x00020000' % sr(srd + 3))
    e('v_lshlrev_b32 v246, 8, v245')
    for p in range(4):
        e('v_add_u32 v247, %d, v245' % (4 * p))
        e('v_xor_b32 v247, v247, v244')
        e('v_lshl_add_u32 %s, v247, 4, v246' % vr(V_DK[p]))
    e('s_waitcnt lgkmcnt(0)')
    set_srd(a, S_SRDQ, 4, S_T0, QH)
    QAREA = [(S_WB, 2 * SLOT), (S_WB, 3 * SLOT), (S_WB, VRING + 2 * SLOT), (S_WB, VRING + 3 * SLOT), (S_SW, 0)]
    qd = [qdma(opt, j, QAREA[j][0], QAREA[j][1], 'q%d' % j) for j in range(5)]
    for t in qd[0]:
        e(t)
    e('s_mov_b32 %s, %s' % (sr(S_OFF), sr(S_WB)))
    set_srd(a, S_SRDK, 6, S_T2, 2 * KH)
    st = [dma_ops(opt, n & 3, 's%d' % n, split=True) for n in range(6)]
    for t in (st[0][:5] if opt.get('prog', True) else qd[1]):
        e(t)
    for p in range(2):
        e('v_add_u32 v247, %d, v245' % (4 * p))
        e('v_lshlrev_b32 v247, 1, v247')
        e('v_xor_b32 v247, v247, v244')
        e('v_lshl_add_u32 %s, v247, 4, v246' % vr(V_DV[p]))
    c = f32bits(128 ** -0.5 * math.log2(math.e))
    e('s_mov_b32 %s, 0x%08x' % (sr(S_C), c))
    e('s_mov_b32 %s, 0x%08x' % (sr(S_C + 1), c))
    e('s_mov_b32 %s, 0x%08x' % (sr(S_THR), f32bits(opt.get('thr', 2.0 ** 24))))
    e('s_mov_b32 %s, 0xffff0000' % sr(S_MASK))
    if opt.get('rot', 0):
        e('s_lshr_b32 %s, s2, 4' % sr(S_R))
        e('s_xor_b32 %s, %s, s2' % (sr(S_R), sr(S_R)))
        e('s_and_b32 %s, %s, 15' % (sr(S_R), sr(S_R)))
        e('s_lshl_b32 %s, %s, 14' % (sr(S_R), sr(S_R)))
        e('s_mov_b32 %s, 0' % sr(S_N))
        e('s_mov_b32 %s, %s' % (sr(S_OFF), sr(S_R)))
    if opt.get('trace'):
        e('s_mov_b32 s88, 0')
        e('v_mov_b32 v29, 0')
    set_srd(a, S_SRDV, 8, S_T2, 2 * KH)
    for js in range(4):
        e('v_add_u32 v247, %d, v245' % (4 * js))
        e('v_xor_b32 v247, v247, v244')
        e('v_lshlrev_b32 v247, 4, v247')
        e('v_lshl_add_u32 %s, v244, 8, v247' % vr(V_KA[js]))
    e('v_mul_u32_u24 v247, 272, v244')
    e('v_lshl_add_u32 v247, v245, 3, v247')
    e('v_add_u32 %s, %s, v247' % (vr(V_PW), sr(S_SW)))
    e('v_mul_u32_u24 v247, 272, v245')
    e('v_lshl_add_u32 v247, v244, 4, v247')
    e('v_add_u32 %s, %s, v247' % (vr(V_PR), sr(S_SW)))
    e('v_lshlrev_b32 %s, 4, v0' % vr(V_LIN))
    e('v_and_b32 v247, 1, v245')
    e('v_lshlrev_b32 v247, 5, v247')
    e('v_lshl_add_u32 v247, v244, 8, v247')
    e('v_lshrrev_b32 v248, 1, v245')
    e('v_lshl_add_u32 %s, v248, 4, v247' % vr(V_OS))
    e('v_bfe_u32 v246, v0, 2, 2')
    e('v_lshl_add_u32 v247, v245, 2, v246')
    e('v_and_b32 v248, 7, v247')
    e('v_lshlrev_b32 v247, 8, v247')
    e('v_and_b32 v249, 3, v0')
    e('v_lshl_add_u32 v247, v249, 3, v247')
    e('v_add_u32 v247, %d, v247' % VRING)
    for db in range(8):
        e('v_xor_b32 v249, %d, v248' % db)
        e('v_lshl_add_u32 %s, v249, 5, v247' % vr(V_VA[db]))
    set_srd(a, S_SRDO, 10, S_T0, QH)
    e('s_add_u32 %s, %s, %d' % (sr(S_T0), sr(S_T0), QH))
    set_srd(a, S_SRDO2, 10, S_T0, QH)
    e('s_mov_b64 %s, 0' % sr(S_FLAG[0], 2))
    e('s_mov_b64 %s, 0' % sr(S_FLAG[1], 2))
    e('s_mov_b32 %s, 4' % sr(S_CNT))
    e('s_mov_b32 %s, 0' % sr(S_ENDV))
    e('s_mov_b64 vcc, 0')
    QA = 252
    e('s_add_u32 %s, %s, %d' % (sr(S_T2), sr(S_WB), VRING))
    QWIN = [(S_WB, 2 * SLOT), (S_WB, 3 * SLOT), (S_T2, 2 * SLOT), (S_T2, 3 * SLOT), (S_SW, 0)]
    RAW = OB + 128

    def qprep(j, dma):
        return (qaddr(QA, QWIN[j][0]) + ['WAITVM q%d' % j] + qread(lambda js: vr(RAW + 4 * js, 4), QA, QWIN[j][1])
                + dma + prescale(j, RAW, False))

    bad = []
    w3 = opt.get('w3', True)

    def main(skip4):
        m_begin = a.mark()
        opt['_auto'] = skip4
        a.drop = tuple(opt.get('dropall', ())) + (('#4',) if skip4 else ())
        ab = opt.get('lead', 'ab') == 'ab'
        lead = 2 if ab else opt['lead']
        W1, W2 = 8 * (lead - 1), 8 * (lead - 1) + 4
        if opt.get('prog', True):
            for t in qd[1]:
                e(t)
            stamp(1, 0)
            for t in qprep(0, st[0][5:]):
                e(t)
            e('WAITVM s0k')
            e('s_barrier')
            for i in range(16):
                e(kread(i, 0))
            for t in qd[2]:
                e(t)
            m_head = a.mark()
            stamp(2, 0)
            for t in max_one(0):
                e(t)
            stamp(3, 0)
            mf, gaps = body_tables(opt, 0, cold=True, fresh=True, dma=False, kpre=False)
            block(gaps, 15, qprep(1, qd[3]) + max_one(1))
            block(gaps, 47, ['WAITVM s0', 's_barrier'] + [vread(i, t, 0) for i in range(16) for t in range(2)] + qd[4])
            block(gaps, 63, qprep(2, st[1][:5]) + max_one(2))
            block(gaps, 95, qprep(3, st[1][5:]) + max_one(3))
            block(gaps, 127, qprep(4, st[2][:5]) + max_one(4) + ZERO4P)
            block(gaps, 143, ['WAITVM s1k', 's_barrier'])
            place(gaps, [kread(i, 1) for i in range(16)], [144 + i for i in range(16)])
            place(gaps, st[2][5:], [144, 146, 150, 154, 158, 158])
            emit_body(a, opt, mf, gaps, None, auto=True)
            set_srd(a, S_SRDQ, 4, S_T0, QH)
            if lead == 2:
                e('WAITVM s1')
                e('s_barrier')
                e('s_branch L_b1')
            else:
                mf, gaps = body_tables(opt, 1, dma=False)
                block(gaps, 15, ['WAITVM s1', 's_barrier'])
                place(gaps, st[3] + st[4][:5], [16, 19, 31, 43, 55, 59, 67, 79, 91, 103, 107, 111, 115, 131, 143, 155])
                emit_body(a, opt, mf, gaps, 'WAITVM s2', auto=True)
                mf, gaps = body_tables(opt, 2, dma=False)
                place(gaps, st[4][5:] + st[5], [3, 7, 19, 31, 43, 47, 51, 55, 67, 79, 91, 95, 103, 115, 131, 143, 147])
                gaps[99].append((1, 's_sub_u32 %s, %s, 1' % (sr(S_CNT), sr(S_CNT))))
                emit_body(a, opt, mf, gaps, 'WAITVM s3', auto=True)
                e('s_branch L_b3')
        else:
            for t in qd[2]:
                e(t)
            later = {0: qd[3], 1: qd[4], 2: st[0][:5], 3: st[0][5:], 4: st[1][:5]}
            for j in range(5):
                for t in qprep(j, later[j]):
                    e(t)
                if j == 0:
                    stamp(1, 0)
            set_srd(a, S_SRDQ, 4, S_T0, QH)
            e('WAITVM s0k')
            e('s_barrier')
            for i in range(16):
                e(kread(i, 0))
            for t in st[1][5:]:
                e(t)
            m_head = a.mark()
            stamp(2, 0)
            max_phase(a, ZERO4, 'a')
            e('WAITVM s0')
            e('s_barrier')
            stamp(3, 0)
            mf, gaps = body_tables(opt, 0, cold=True, fresh=True, dma=False)
            place(gaps, [vread(i, t, 0) for i in range(16) for t in range(2)], [(i if i < 7 else 33 + (i - 7)) for i in range(16) for t in range(2)])
            place(gaps, st[2], [7, 8, 10, 12, 14, 43, 47, 51, 55, 59, 63])
            if lead == 3:
                place(gaps, st[3], [79, 83, 87, 91, 95, 99, 103, 107, 111, 115, 119])
            emit_body(a, opt, mf, gaps, 'WAITVM s1', auto=True)
            e('s_branch L_b1')
        m_first_end = a.mark()

        marks = {}

        def seed_pend(slot):
            a.pend = [(Ins(kread(i, slot)).wr, a.nmfma - (31 - 2 * i)) for i in range(16)]

        late = opt.get('trace') or max(opt.get('dgaps', DG)) > 98
        cg = 155 if late else 103
        FREE0 = [1, 3, 7, 11, 15]
        variants = []
        a.raw('.p2align 6')
        def qvariant(gaps, rd, dm):
            if rd is not None:
                place(gaps, qaddr(T0, S_SW), [0, 0, 1, 1])
                if opt.get('early', True):
                    place(gaps, qread(lambda js: ar(A_SP + 16 * rd[1] + 4 * js, 4), T0, rd[0] * 4096), [2, 2, 4, 5])
                    block(gaps, 13, prescale(None, A_SP + 16 * rd[1], True, dst=A_SP + 16 * rd[1]))
                else:
                    place(gaps, qread(lambda js: ar(A_SP + 16 * rd[1] + 4 * js, 4), T0, rd[0] * 4096), [5, 5, 9, 13])
            place(gaps, qdma(opt, dm[0], S_SW, dm[1] * 4096, 'q'), [1, 2, 3, 7, 11, 15])

        for name, rd, dm, j in (('qa3', None, (2, 0), 0), ('qa2', (1, 1), (4, 0), 0), ('qb3', 0, 0, 2), ('qb2', 0, 0, 3), ('qb1', 0, 0, 4), ('qa1', None, (0, 0), 0)):
            a.label('L_' + name)
            m0_ = a.mark()
            seed_pend(0)
            mf, gaps = body_tables(opt, 0)
            if name[1] == 'a':
                qvariant(gaps, rd, dm)
            elif park:
                place(gaps, epi_store(j, S_SRDO, stP, parked=True), FREE0)
            emit_body(a, opt, mf, gaps, None, lo=0, hi=16)
            if name != 'qa1':
                e('s_branch L_b0g1')
            variants.append((m0_, a.mark()))
        for slot in range(4):
            mf, gaps = body_tables(opt, slot)
            bw = 's_waitcnt vmcnt(%d)' % W1
            if slot == 0 and park and opt.get('exactw', True):
                bw = 's_waitcnt vmcnt(%d)' % W2
            if slot == 1:
                gaps[99].append((1, 's_sub_u32 %s, %s, 2' % (sr(S_T2), sr(S_CNT))))
                gaps[cg].append((1, 's_cmp_le_u32 %s, 1' % sr(S_T2)))
            if slot == 2:
                gaps[99].append((1, 's_sub_u32 %s, %s, 1' % (sr(S_CNT), sr(S_CNT))))
                if opt.get('exactw', True):
                    gaps[127 if late else 103].append((1, 's_cmp_le_u32 %s, 1' % sr(S_T2)))
                    bw = ['s_waitcnt vmcnt(%d)' % W2, 's_cbranch_scc1 L_w2', 's_waitcnt vmcnt(%d)' % W1, 'L_w2:']
                gaps[155].append((1, 's_cmp_eq_u32 %s, %s' % (sr(S_CNT), sr(S_ENDV))))
            if slot == 3:
                gaps[99].append((1, 's_sub_u32 %s, %s, %s' % (sr(S_T2), sr(S_CNT), sr(S_ENDV))))
                gaps[cg].append((1, 's_cmp_eq_u32 %s, 3' % sr(S_T2)))
            if ab:
                L = 'L_wd%d' % slot
                wb = 20 if (slot == 0 and park) else 16
                bw = ['s_waitcnt vmcnt(%d)' % wb, 's_cbranch_vccnz ' + L]
                if slot == 0:
                    bw += ['s_waitcnt vmcnt(12)']
                elif slot == 2:
                    bw += ['s_waitcnt vmcnt(12)', 's_cbranch_scc1 ' + L, 's_waitcnt vmcnt(8)']
                else:
                    bw += ['s_waitcnt vmcnt(8)']
                bw += [L + ':']
            marks[slot] = a.mark()
            if slot != 0:
                a.label('L_b%d' % slot)
                seed_pend(slot)
                emit_body(a, opt, mf, gaps, None, lo=0, hi=16)
            a.label('L_b%dg1' % slot)
            a.pend = []
            emit_body(a, opt, mf, gaps, bw, lo=16)
            if slot == 1:
                e('s_cbranch_scc1 L_qlds')
            if slot == 2:
                e('s_cbranch_scc1 L_exit')
        marks[4] = a.mark()
        e('s_cbranch_vccnz L_backb')
        e('s_cbranch_scc1 L_qa3')
        e('s_cmp_eq_u32 %s, 2' % sr(S_T2))
        e('s_cbranch_scc1 L_qa2')
        e('s_branch L_qa1')
        a.label('L_backb')
        e('s_cbranch_scc1 L_qb3')
        e('s_cmp_eq_u32 %s, 2' % sr(S_T2))
        e('s_cbranch_scc1 L_qb2')
        e('s_branch L_qb1')
        a.label('L_qlds')
        e('s_cmp_eq_u32 %s, 2' % sr(S_CNT))
        e('s_cbranch_scc1 L_qm2')
        v2 = []
        for name, rd, dm in (('qm3', (0, 0), (3, 1)), ('qm2', (0, 2), (1, 1))):
            a.label('L_' + name)
            m0_ = a.mark()
            seed_pend(2)
            mf, gaps = body_tables(opt, 2)
            qvariant(gaps, rd, dm)
            emit_body(a, opt, mf, gaps, None, lo=0, hi=16)
            e('s_branch L_b2g1')
            v2.append((m0_, a.mark()))
        a.label('L_exit')
        e('s_cbranch_vccnz L_lastb')
        m_last = a.mark()
        stamp(4, 0)
        seed_pend(3)
        a.vmq = ['n1'] * 8 + ['n2'] * (8 * (lead - 2))
        mf, gaps = body_tables(opt, 3, dma=not ab)
        if ab:
            place(gaps, dma_ops(opt, 0, 'kv'), [1, 5, 9, 13, 19, 21, 27, 35, 43, 51, 53])
            place(gaps, dma_ops(opt, 0, 'kw'), [55, 59, 75, 83, 99, 101, 107, 115, 123, 131, 133])
        place(gaps, qaddr(QA, S_SW), [3, 7, 11, 15])
        for j in range(2):
            place(gaps, qread(lambda js: ar(A_Q + 16 * j + 4 * js, 4), QA, j * 4096), [32 * j + 16] * 4)
            block(gaps, 32 * j + 29, prescale(j, A_Q + 16 * j, True))
        for j in (2, 3, 4):
            if opt.get('early', True):
                block(gaps, 32 * j + 17, ['v_accvgpr_mov_b32 %s, %s' % (ar(A_Q + 16 * j + x), ar(A_SP + 16 * (j - 2) + x)) for x in range(16)])
            else:
                block(gaps, 32 * j + 17, prescale(j, A_SP + 16 * (j - 2), True))
        for j in range(3):
            k = 48 + 32 * j + 17
            pk_ = park and j >= 2
            block(gaps, k, epi_head(j, 0) + epi_pack(j))
            epi_spread(gaps, j, k, S_SRDO, stA, pk_, tight=(j == 2))
        emit_body(a, opt, mf, gaps, 'WAITVM n1', auto=True)
        if lead == 2:
            a.vmq = ['n2' if t == 'kv' else t for t in a.vmq]
        stamp(5, 0)
        stamp(7, 0, True)
        for x in (0, 1, 2):
            stamp(x, 1)
        stamp(6, 1, True)
        e('s_mov_b32 %s, 14' % sr(S_CNT))
        e('s_mov_b32 %s, 10' % sr(S_ENDV))
        e('s_mov_b64 vcc, -1')
        max_phase(a, epi_head(3, 0) + epi_pack(3, False), 'b')
        stamp(3, 1)
        mf, gaps = body_tables(opt, 0, fresh=True)
        epi_spread(gaps, 3, -1, S_SRDO, stA, park)
        block(gaps, 47, epi_head(4, 0) + epi_pack(4))
        epi_spread(gaps, 4, 47, S_SRDO, stA, park)
        block(gaps, 115, ZERO4P)
        emit_body(a, opt, mf, gaps, 'WAITVM n2', auto=True)
        e('s_branch L_b1')
        m_last_end = a.mark()
        a.label('L_lastb')
        m_lastb = a.mark()
        stamp(4, 1)
        seed_pend(3)
        a.vmq = ['n2'] * 8
        a.drop = tuple(a.drop) + tuple(opt.get('droplast', ()))
        mf, gaps = body_tables(opt, 3, dma=False, kpre=False)
        for j in range(3):
            k = 48 + 32 * j + 17
            block(gaps, k, epi_head(j, 1) + epi_pack(j))
            epi_spread(gaps, j, k, S_SRDO2, stB, False, tight=(j == 2))
        emit_body(a, opt, mf, gaps, 'WAITVM n2', auto=True)
        sb4 = (3 + 4) & 1
        F = [(t, 0) for g, t in softmax_ops(4, sb4) if 128 + W0 + g >= 160]
        n4 = len(F)
        F += [(t, 0) for t in epi_head(3, 1) + epi_pack(3)]
        n4 = len(F)
        h4 = epi_head(4, 1)
        for x, t in enumerate(epi_write(3)):
            F += [(t, 0), (h4[x], 0)]
        F += [(h4[8], 0)] + [(t, 0) for t in epi_fetch(3)]
        merge(a, [(t, n4) for t in pv(4, sb4)], F)
        d4 = epi_direct(4, S_SRDO2, stB)
        for t in epi_store(3, S_SRDO2, stB) + d4:
            e(t)
        stamp(5, 1)
        stamp(7, 1, True)
        m_end = a.mark()
        I = a.ins
        B = lambda s: I[marks[s]:marks[s + 1]]
        seq = I[m_head:m_first_end] + (B(1) + B(2) if (lead == 2 or not opt.get('prog', True)) else []) + B(3)
        for lo, hi in variants:
            seq += I[lo:hi] + B(0) + B(1) + B(2) + B(3)
        bad.extend(check_hazards(seq, 'loop'))
        g1 = [k for k in range(marks[2], marks[3]) if I[k].text == 'L_b2g1:'][0]
        for lo, hi in v2:
            bad.extend(check_hazards(B(1) + I[lo:hi] + I[g1:marks[3]], 'mid'))
        bad.extend(check_hazards(B(2) + I[m_last:m_last_end] + B(1) + B(2) + I[m_lastb:m_end], 'edges'))
        print('body instrs: %d' % sum(1 for i in B(1) if i.kind != 'none'), file=sys.stderr)
        a.drop = ()
        if skip4:
            for i in a.ins[m_begin:]:
                i.text = re.sub(r'\bL_(\w+)', lambda m: m.group(0) + '_w3', i.text)

    if w3:
        e('s_cmp_eq_u32 %s, 3' % sr(S_W))
        e('s_cbranch_scc1 L_wave3')
    vmq0, pend0 = list(a.vmq), list(a.pend)
    main(False)
    if w3:
        e('s_branch L_slow')
        a.label('L_wave3')
        a.vmq, a.pend = list(vmq0), list(pend0)
        main(True)
    m_end = a.mark()
    a.label('L_slow')
    slow_path(a, opt)
    a.label('L_fin')
    if opt.get('dbg'):
        e('s_cmp_ge_u32 s2, 4')
        e('s_cbranch_scc1 L_end')
        e('s_cmp_lg_u32 %s, 0' % sr(S_W))
        e('s_cbranch_scc1 L_end')
        e('s_load_dwordx2 s[82:83], s[0:1], 32')
        e('s_waitcnt lgkmcnt(0)')
        vals = ['s_sub_u32 s80, s62, s76', 's_sub_u32 s80, s72, s64', 's_sub_u32 s80, s56, s54', 's_sub_u32 s80, s58, s64']
        for n, t in enumerate(vals):
            e(t)
            e('v_mov_b32 v%d, s80' % (252 + n))
        e('s_lshl_b32 s80, s2, 4')
        e('v_mov_b32 v31, s80')
        e('s_mov_b64 exec, 1')
        e('global_store_dwordx4 v31, v[252:255], s[82:83]')
    else:
        dump_stamps()
    if opt.get('trace'):
        e('s_lshl_b32 s80, s80, 1')
        e('s_add_u32 s80, s80, 131072')
        e('v_lshl_add_u32 v31, v0, 2, s80')
        e('global_store_dword v31, v29, s[84:85]')
    a.label('L_end')
    e('s_endpgm')

    I = a.ins
    sl = I[m_end:]
    bad += check_hazards(sl + sl, 'slow')
    for b in bad[:8]:
        print('HAZARD', b, file=sys.stderr)
    assert not bad or opt.get('nocheck')
    print('total %d' % len(I), file=sys.stderr)

    hdr = open('cdna_kernels/%s.s.ref' % NAME).read().split('\n')
    out = '\n'.join(hdr[:9]) + '\n'
    out += '; @launch grid=(256,1,1) block=(256,1,1) lds=%d\n' % LDS_BYTES
    out += '.amdgcn_target "amdgcn-amd-amdhsa--gfx950"\n.text\n.globl %s_kernel\n.p2align 8\n.type %s_kernel,@function\n%s_kernel:\n' % (NAME, NAME, NAME)
    out += a.text()
    out += '''.section .rodata,"a"
.p2align 6
.amdhsa_kernel %s_kernel
  .amdhsa_next_free_vgpr 512
  .amdhsa_next_free_sgpr 102
  .amdhsa_accum_offset 256
  .amdhsa_group_segment_fixed_size 0
  .amdhsa_kernarg_size 48
  .amdhsa_user_sgpr_count 2
  .amdhsa_user_sgpr_kernarg_segment_ptr 1
  .amdhsa_system_sgpr_workgroup_id_x 1
.end_amdhsa_kernel
''' % NAME
    return out


if __name__ == '__main__':
    opt = {}
    outp = sys.argv[1]
    for kv in sys.argv[2:]:
        k, v = kv.split('=', 1)
        try:
            v = eval(v)
        except Exception:
            pass
        opt[k] = v
    open(outp, 'w').write(gen(opt))
```

```python
import sys, struct, math, re
from asmlib import Asm, Ins, check_hazards

NAME = 'standalone__mha_softmax__near_ridge'
LDS_BYTES = 163840
QH = 304 * 256
KH = 1024 * 256
VRING = 65536
SLOT = 16384

V_KA = [1, 2, 3, 4]
V_VA = [5, 6, 7, 8, 9, 10, 11, 12]
V_DK = [13, 14, 15, 16]
V_DV = [17, 18]
V_L = [19, 20, 21, 22, 23]
V_OS = 27
V_PW, V_PR, V_LIN = 24, 25, 26
V_R, V_U = 28, 30
OB = 32
NM = 192
SB = (212, 228)
T0 = 244
A_Q, A_K, A_V, A_SP = 0, 80, 144, 208
S_SRDK, S_SRDV, S_SRDQ, S_SRDO = 12, 16, 20, 24
S_OFF, S_WB, S_CNT, S_HI, S_W = 28, 29, 30, 31, 32
S_C, S_THR, S_MASK = 34, 36, 37
S_FLAG = (38, 90)
S_ENDV = 40
S_T0, S_T1, S_T2 = 41, 42, 43
S_HEAD = 44
S_QW, S_SW, S_OW, S_SO = 98, 99, 100, 101
S_N, S_R = 33, 45
S_SRDO2 = 92


def f32bits(x):
    return struct.unpack('<I', struct.pack('<f', x))[0]


def vr(b, n=1):
    return 'v%d' % b if n == 1 else 'v[%d:%d]' % (b, b + n - 1)


def ar(b, n=1):
    return 'a%d' % b if n == 1 else 'a[%d:%d]' % (b, b + n - 1)


def sr(b, n=1):
    return 's%d' % b if n == 1 else 's[%d:%d]' % (b, b + n - 1)


MF = 'v_mfma_f32_16x16x32_bf16'
ALAG = 0


def qk(j, sb):
    out = []
    for kt in range(4):
        d = vr(SB[sb] + 4 * kt, 4)
        for js in range(4):
            c = vr(NM + 4 * j, 4) if js == 0 else d
            out.append('%s %s, %s, %s, %s' % (MF, d, ar(A_K + 16 * kt + 4 * js, 4), ar(A_Q + 16 * j + 4 * js, 4), c))
    return out


PVB = False


def pv(j, sb, czero=False):
    out = []
    for i in range(16):
        db, ks = ((i & 7), i >> 3) if PVB else (i >> 1, i & 1)
        o = vr(OB + 32 * j + 4 * db, 4)
        c = '0' if (czero and ks == 0) else o
        out.append('%s %s, %s, %s, %s' % (MF, o, ar(A_V + 32 * ks + 4 * db, 4), vr(SB[sb] + 4 * ks, 4), c))
    return out


def kread(i, slot):
    kt, js = i >> 2, i & 3
    return 'ds_read_b128 %s, %s offset:%d' % (ar(A_K + 4 * i, 4), vr(V_KA[js]), slot * SLOT + kt * 4096)


def vread(i, t, slot):
    db, ks = ((i & 7), i >> 3) if PVB else (i >> 1, i & 1)
    return 'ds_read_b64_tr_b16 %s, %s offset:%d' % (ar(A_V + 32 * ks + 4 * db + 2 * t, 2), vr(V_VA[db]), slot * SLOT + ks * 8192 + t * 4096)


def softmax_ops(j, sb, first=False):
    s = SB[sb]
    l = V_L[j]
    ops = []
    for r in range(16):
        ops.append((2 * r - ALAG, 'v_exp_f32 %s, %s' % (vr(s + r), vr(s + r))))
        if first and r == 0:
            ops.append((2 * r + 1, 'v_mov_b32 %s, %s' % (vr(l), vr(s + r))))
        else:
            ops.append((2 * r + 1, 'v_add_f32 %s, %s, %s' % (vr(l), vr(l), vr(s + r))))
        if r & 1:
            k = r >> 1
            ops.append((2 * r + 1, 'v_cvt_pk_bf16_f32 %s, %s, %s' % (vr(s + k), vr(s + 2 * k), vr(s + 2 * k + 1))))
    ops.sort(key=lambda x: x[0])
    return ops


def dma_ops(opt, slot, tag, split=False):
    fl = opt.get('dmaflags', ' nt')
    o = ['s_and_b32 m0, %s, 0xffff' % sr(S_OFF)]
    for p in range(4):
        o.append('buffer_load_dwordx4 %s, %s, %s offen offset:%d%s lds ; @%s' % (vr(V_DK[p]), sr(S_SRDK, 4), sr(S_OFF), p * 1024, fl, tag + 'k'))
    o.append('s_add_u32 m0, m0, %d' % VRING if not split else 's_add_u32 m0, %s, %d' % (sr(S_WB), VRING + slot * SLOT))
    for p in range(4):
        o.append('buffer_load_dwordx4 %s, %s, %s offen offset:%d%s lds ; @%s' % (vr(V_DV[p & 1]), sr(S_SRDV, 4), sr(S_OFF), p * 1024, fl, tag))
    if opt.get('rot', 0):
        o.append('s_add_u32 %s, %s, %d\n    s_xor_b32 %s, %s, %s' % (sr(S_N), sr(S_N), SLOT, sr(S_OFF), sr(S_N), sr(S_R)))
    else:
        o.append('s_add_u32 %s, %s, %d' % (sr(S_OFF), sr(S_OFF), SLOT))
    return o


def qdma(opt, j, m0base, m0off, tag, qw=None):
    fl = opt.get('qflags', ' nt')
    o = ['s_add_u32 m0, %s, %d' % (sr(m0base), m0off),
         's_add_u32 %s, %s, %d' % (sr(S_T1), sr(S_OW), j * 4096)]
    for p in range(4):
        o.append('buffer_load_dwordx4 %s, %s, %s offen offset:%d%s lds ; @%s' % (vr(V_DK[p]), sr(S_SRDQ, 4), sr(S_T1), p * 1024, fl, tag))
    return o


def qaddr(base, sg):
    return ['v_add_u32 %s, %s, %s' % (vr(base + js), sr(sg), vr(V_KA[js])) for js in range(4)]


def qread(dst, base, off):
    return ['ds_read_b128 %s, %s offset:%d' % (dst(js), vr(base + js), off) for js in range(4)]


def prescale(j, src, from_acc, dst=None):
    o = []
    for g in range(4):
        T = [T0 + 2 * x for x in range(4)]
        for x in range(4):
            if from_acc:
                o.append('v_accvgpr_read_b32 %s, %s' % (vr(T[x] + 1), ar(src + 4 * g + x)))
        for x in range(4):
            s = vr(T[x] + 1) if from_acc else vr(src + 4 * g + x)
            o.append('v_lshlrev_b32 %s, 16, %s' % (vr(T[x]), s))
        for x in range(4):
            s = vr(T[x] + 1) if from_acc else vr(src + 4 * g + x)
            o.append('v_and_b32 %s, %s, %s' % (vr(T[x] + 1), sr(S_MASK), s))
        for x in range(4):
            o.append('v_pk_mul_f32 %s, %s, %s' % (vr(T[x], 2), vr(T[x], 2), sr(S_C, 2)))
        for x in range(4):
            o.append('v_cvt_pk_bf16_f32 %s, %s, %s' % (vr(T[x]), vr(T[x]), vr(T[x] + 1)))
        for x in range(4):
            o.append('v_accvgpr_write_b32 %s, %s' % (ar((A_Q + 16 * j if dst is None else dst) + 4 * g + x), vr(T[x])))
    return o


STAGE = 131072


def epi_head(j, h):
    l, u = vr(V_L[j]), vr(V_U)
    return ['v_mov_b32 %s, %s' % (u, l),
            'v_permlane16_swap_b32 %s, %s' % (l, u),
            'v_add_f32 %s, %s, %s' % (l, l, u),
            'v_mov_b32 %s, %s' % (u, l),
            'v_permlane32_swap_b32 %s, %s' % (l, u),
            'v_add_f32 %s, %s, %s' % (l, l, u),
            'v_rcp_f32 %s, %s' % (vr(V_R), l),
            'v_cmp_nge_f32 %s, %s, %s' % (sr(96, 2), sr(S_THR), l),
            's_or_b64 %s, %s, %s' % (sr(S_FLAG[h], 2), sr(S_FLAG[h], 2), sr(96, 2))]


def epi_pack(j, pk=True):
    o = []
    b0 = OB + 32 * j
    for h in range(2):
        if pk:
            for x in range(8):
                b = b0 + 16 * h + 2 * x
                o.append('v_pk_mul_f32 %s, %s, %s op_sel_hi:[1,0]' % (vr(b, 2), vr(b, 2), vr(V_R, 2)))
        else:
            for x in range(16):
                b = b0 + 16 * h + x
                o.append('v_mul_f32 %s, %s, %s' % (vr(b), vr(V_R), vr(b)))
        for db in range(4 * h, 4 * h + 4):
            b = b0 + 4 * db
            o.append('v_cvt_pk_bf16_f32 %s, %s, %s' % (vr(b), vr(b), vr(b + 1)))
            o.append('v_cvt_pk_bf16_f32 %s, %s, %s' % (vr(b + 1), vr(b + 2), vr(b + 3)))
    return o


def epi_write(j):
    return ['ds_write_b64 %s, %s offset:%d' % (vr(V_PW), vr(OB + 32 * j + 4 * db, 2), db * 32) for db in range(8)]


def epi_direct(j, srd, fl):
    o = ['s_add_u32 %s, %s, %d' % (sr(S_SO), sr(S_OW), j * 4096)]
    for mm in range(2):
        for m in (2 * mm, 2 * mm + 1):
            b = OB + 32 * j + 8 * m
            for x in range(4):
                o.append('v_pk_mul_f32 %s, %s, %s op_sel_hi:[1,0]' % (vr(b + 2 * x, 2), vr(b + 2 * x, 2), vr(V_R, 2)))
        for m in (2 * mm, 2 * mm + 1):
            b = OB + 32 * j + 8 * m
            for x in range(4):
                o.append('v_cvt_pk_bf16_f32 %s, %s, %s' % (vr(b + x), vr(b + 2 * x), vr(b + 2 * x + 1)))
        for m in (2 * mm, 2 * mm + 1):
            b = OB + 32 * j + 8 * m
            o.append('v_permlane16_swap_b32 %s, %s' % (vr(b), vr(b + 2)))
            o.append('v_permlane16_swap_b32 %s, %s' % (vr(b + 1), vr(b + 3)))
        for m in (2 * mm, 2 * mm + 1):
            b = OB + 32 * j + 8 * m
            o.append('buffer_store_dwordx4 %s, %s, %s, %s offen offset:%d%s ; @st' % (vr(b, 4), vr(V_OS), sr(srd, 4), sr(S_SO), m * 64, fl))
    return o


def epi_spread(gaps, j, k, srd, fl, parked, tight=False):
    e1 = fill(gaps, epi_write(j), k + 1, k + (16 if tight else 20), 2)
    e2 = fill(gaps, epi_fetch(j, parked), e1, k + (21 if tight else 30), 1)
    if not parked:
        fill(gaps, epi_store(j, srd, fl), e2 + (3 if tight else 4), k + (30 if tight else 52), 1 if tight else 2)


def odst(j, parked):
    return (lambda p: ar(A_SP + 16 * (j - 2) + 4 * p, 4)) if parked else (lambda p: vr(OB + 32 * j + 4 * p, 4))


def epi_fetch(j, parked=False):
    return ['ds_read_b128 %s, %s offset:%d' % (odst(j, parked)(p), vr(V_PR), p * 1088) for p in range(4)]


def epi_store(j, srd, fl, parked=False):
    o = ['s_add_u32 %s, %s, %d' % (sr(S_SO), sr(S_OW), j * 4096)]
    for p in range(4):
        o.append('buffer_store_dwordx4 %s, %s, %s, %s offen offset:%d%s ; @st' % (odst(j, parked)(p), vr(V_LIN), sr(srd, 4), sr(S_SO), p * 1024, fl))
    return o


def _tag4(fn, pairs=False):
    def w(j, *args, **kw):
        r = fn(j, *args, **kw)
        if j != 4:
            return r
        if pairs:
            return [(g, t + ' ; #4') for g, t in r]
        return [t if (t.startswith('buffer') and keep_vmem) or t.endswith(':') else (t + ' #4' if ';' in t else t + ' ; #4') for t in r]
    keep_vmem = False
    return w


qk, pv, prescale, epi_head, epi_pack, epi_write, epi_fetch, epi_direct = [_tag4(f) for f in (qk, pv, prescale, epi_head, epi_pack, epi_write, epi_fetch, epi_direct)]
softmax_ops = _tag4(softmax_ops, True)


def is_mem(t):
    return t.startswith(('ds_', 'buffer_', 'global_'))


def cost(t):
    if t.startswith(('v_exp', 'v_rcp')):
        return 8
    if t.endswith(':'):
        return 0
    return 4


def merge(a, mfmas, fillers, budget=8):
    fi = 0
    for mi, (text, need) in enumerate(mfmas):
        while fi < need:
            assert fillers[fi][1] <= mi, (fillers[fi], mi, text)
            a.e(fillers[fi][0])
            fi += 1
        a.e(text)
        b = budget
        valu = False
        while fi < len(fillers) and fillers[fi][1] <= mi + 1 and b > 0:
            t = fillers[fi][0]
            if is_mem(t) and valu:
                break
            if cost(t) > b and b < budget:
                break
            valu = valu or t.startswith('v_')
            b -= cost(t)
            a.e(t)
            fi += 1
    while fi < len(fillers):
        a.e(fillers[fi][0])
        fi += 1


def set_srd(a, srd, ptr, off, size):
    a.e('s_add_u32 %s, %s, %s' % (sr(srd), sr(ptr), sr(off)))
    a.e('s_addc_u32 %s, %s, 0' % (sr(srd + 1), sr(ptr + 1)))
    a.e('s_and_b32 %s, %s, 0xffff' % (sr(srd + 1), sr(srd + 1)))
    a.e('s_mov_b32 %s, %s' % (sr(srd + 2), size))


W0 = 14
DG = [51, 55, 63, 67, 71, 75, 79, 83, 87, 91, 95]


def body_tables(opt, slot, cold=False, fresh=False, dma=True, kpre=True):
    sbuf = lambda u: (slot + u) & 1
    groups = [qk(0, sbuf(0)), pv(4, sbuf(-1)), qk(1, sbuf(1)), pv(0, sbuf(0), fresh), qk(2, sbuf(2)), pv(1, sbuf(1), fresh),
              qk(3, sbuf(3)), pv(2, sbuf(2), fresh), qk(4, sbuf(4)), pv(3, sbuf(3), fresh)]
    mf = [t for g in groups for t in g]
    gaps = [[] for _ in range(160)]
    if cold:
        for k in range(16, 32):
            mf[k] = None
    else:
        for g, t in softmax_ops(4, sbuf(-1)):
            k = 128 + W0 + g - 160
            if k >= 0:
                gaps[k].append((5, t))
    for u in range(5):
        for g, t in softmax_ops(u, sbuf(u), fresh):
            k = 32 * u + W0 + g
            if cold and u == 0 and k < 32:
                k = min(7 + g, 15)
            if k < 160:
                gaps[k].append((5, t))
    for i in range(16):
        if not cold:
            for t in range(2):
                gaps[17 + 2 * i].append((0, vread(i, t, slot)))
        if kpre:
            gaps[129 + 2 * i].append((0, kread(i, (slot + 1) & 3)))
    if dma and not opt.get('nodma'):
        dg = opt.get('dgaps', DG)
        if cold:
            place(gaps, dma_ops(opt, 2, 's2'), [7, 8, 10, 12, 14, 43, 47, 51, 55, 59, 63])
            dg = [79, 83, 87, 91, 95, 99, 103, 107, 111, 115, 119]
        place(gaps, dma_ops(opt, 0, 'kv'), dg)
    return mf, gaps


def place(gaps, ops, where):
    assert len(ops) == len(where), (len(ops), len(where))
    for k, t in zip(where, ops):
        gaps[k].append((0 if is_mem(t) else (1 if t.startswith('s_') else 6), t))


def load(g):
    return sum(cost(t) for _, t in g)


def fill(gaps, ops, lo, hi, mind=1):
    k = lo
    for n, t in enumerate(ops):
        last = hi - mind * (len(ops) - 1 - n)
        c = [x for x in range(k, last + 1) if load(gaps[x]) + cost(t) <= 8]
        room = (last - k) // max(1, 1)
        if c and c[0] - k <= max(3, 0) + (hi - lo) // len(ops):
            k = c[0]
        assert k <= last, (t, k, last)
        gaps[k].append((0 if is_mem(t) else (1 if t.startswith('s_') and not t.startswith('s_or') else 6), t))
        k += mind
    return k


def block(gaps, k, ops):
    for t in ops:
        gaps[k].append((7, t))


def emit_body(a, opt, mf, gaps, barwait, auto=False, lo=0, hi=160):
    a.auto_nop = auto or opt.get('_auto', False)
    for k in range(lo, hi):
        if mf[k] is not None:
            a.e(mf[k])
        for _, t in sorted(gaps[k], key=lambda x: x[0]):
            a.e(t)
        if opt.get('pace') and k % opt['pace'] == 0 and mf[k] is not None:
            a.e('s_nop 3')
        if k == 127 and barwait is not None:
            for t in (barwait if isinstance(barwait, list) else [barwait]):
                a.e(t)
            if opt.get('trace'):
                a.e('s_memrealtime s[86:87]')
                a.e('s_waitcnt lgkmcnt(0)')
                a.e('s_mov_b32 s89, m0')
                a.e('s_mov_b32 m0, s88')
                a.e('v_writelane_b32 v29, s86, m0')
                a.e('s_mov_b32 m0, s89')
                a.e('s_add_u32 s88, s88, 1')
            a.e('s_barrier')
    a.auto_nop = True


def max_phase(a, extra, tag):
    M, F = [], []
    extra = list(extra)
    take = lambda n: [extra.pop(0) for _ in range(min(n, len(extra)))]
    for j in range(5):
        d = vr(NM + 4 * j, 4)
        for js in range(4):
            M.append(('%s %s, %s, %s, %s' % (MF, d, ar(A_K + 4 * js, 4), ar(A_Q + 16 * j + 4 * js, 4), '0' if js == 0 else d), 0))
    for t in take(12):
        F.append((t, 0))
    for j in range(5):
        n = NM + 4 * j
        t, u = vr(T0 + 2 * j), vr(T0 + 2 * j + 1)
        ops = ['v_max3_f32 %s, %s, %s, %s' % (t, vr(n), vr(n + 1), vr(n + 2)),
               'v_max_f32 %s, %s, %s' % (t, t, vr(n + 3)),
               'v_mov_b32 %s, %s' % (u, t)] + take(2) + [
               'v_permlane16_swap_b32 %s, %s' % (t, u),
               'v_max_f32 %s, %s, %s' % (t, t, u),
               'v_mov_b32 %s, %s' % (u, t)] + take(2) + [
               'v_permlane32_swap_b32 %s, %s' % (t, u)]
        ops += ['v_min_f32 %s, -%s, -%s' % (vr(n + x), t, u) for x in range(4)]
        for o in ops:
            F.append((o, min(4 * j + 7, 20)))
    merge(a, M, F)
    for t in extra:
        a.e(t)
    a.e('s_cmp_lg_u32 %s, 3' % sr(S_W))
    a.e('s_cbranch_scc1 L_nd%s' % tag)
    for x in range(4):
        a.e('v_mov_b32 %s, 0x%08x' % (vr(NM + 16 + x), f32bits(-1e30)))
    a.label('L_nd%s' % tag)
    a.e('s_nop 1')


def max_one(j):
    n = NM + 4 * j
    d = vr(n, 4)
    t, u = vr(T0), vr(T0 + 1)
    o = ['%s %s, %s, %s, %s' % (MF, d, ar(A_K + 4 * js, 4), ar(A_Q + 16 * j + 4 * js, 4), '0' if js == 0 else d) for js in range(4)]
    o += ['v_max3_f32 %s, %s, %s, %s' % (t, vr(n), vr(n + 1), vr(n + 2)),
          'v_max_f32 %s, %s, %s' % (t, t, vr(n + 3)),
          'v_mov_b32 %s, %s' % (u, t),
          'v_permlane16_swap_b32 %s, %s' % (t, u),
          'v_max_f32 %s, %s, %s' % (t, t, u),
          'v_mov_b32 %s, %s' % (u, t),
          'v_permlane32_swap_b32 %s, %s' % (t, u)]
    o += ['v_min_f32 %s, -%s, -%s' % (vr(n + x), t, u) for x in range(4)]
    if j == 4:
        o += ['s_cmp_lg_u32 %s, 3' % sr(S_W), 's_cbranch_scc1 L_nda']
        o += ['v_mov_b32 %s, 0x%08x' % (vr(NM + 16 + x), f32bits(-1e30)) for x in range(4)]
        o += ['L_nda:', 's_nop 1']
    return o


ZERO4 = ['v_mov_b32 %s, 0 ; #4' % vr(OB + 128 + x) for x in range(32)]
ZERO4P = ['v_mov_b64 %s, 0 ; #4' % vr(OB + 128 + 2 * x, 2) for x in range(16)]


def slow_path(a, opt):
    e = a.e
    a.pend = []
    a.vmq = []
    e('s_or_b64 %s, %s, %s' % (sr(96, 2), sr(S_FLAG[0], 2), sr(S_FLAG[1], 2)))
    e('s_cbranch_scc0 L_fin')
    e('s_waitcnt vmcnt(0) lgkmcnt(0)')
    e('s_lshl_b32 %s, %s, 2' % (sr(S_T0), sr(S_WB)))
    for x in V_KA + V_VA:
        e('v_add_u32 %s, %s, %s' % (vr(x), sr(S_T0), vr(x)))
    e('s_mov_b32 %s, %s' % (sr(S_WB), sr(S_T0)))
    e('s_mov_b32 %s, 0' % sr(S_HI))
    a.label('L_sp_head')
    e('s_cmp_eq_u32 %s, 0' % sr(S_HI))
    e('s_cselect_b64 %s, %s, %s' % (sr(96, 2), sr(S_FLAG[0], 2), sr(S_FLAG[1], 2)))
    e('s_cmp_eq_u64 %s, 0' % sr(96, 2))
    e('s_cbranch_scc1 L_sp_next')
    e('s_lshl_b32 %s, s2, 1' % sr(S_T1))
    e('s_add_u32 %s, %s, %s' % (sr(S_T1), sr(S_T1), sr(S_HI)))
    e('s_mul_i32 %s, %s, %d' % (sr(S_T1), sr(S_T1), QH))
    set_srd(a, S_SRDQ, 4, S_T1, QH)
    set_srd(a, S_SRDO, 10, S_T1, QH)
    for j in range(5):
        for t in qdma(opt, j, S_WB, 0, 'q', qw=S_OW):
            e(t)
        e('s_waitcnt vmcnt(0)')
        for t in qread(lambda js: vr(OB + 4 * js, 4), V_KA[0], 0) + prescale(j, OB, False):
            e(t)

    def tile_dma(kv):
        for q in range(4):
            e('s_add_u32 m0, %s, %d' % (sr(S_WB), (VRING if kv else 0) + q * 4096))
            e('s_add_u32 %s, %s, %d' % (sr(S_T1), sr(S_OFF), q * 4096))
            for p in range(4):
                e('buffer_load_dwordx4 %s, %s, %s offen offset:%d lds' % (vr(V_DV[p & 1] if kv else V_DK[p]), sr(S_SRDV if kv else S_SRDK, 4), sr(S_T1), p * 1024))

    for j in range(5):
        e('v_mov_b32 %s, 0xff800000' % vr(V_L[j]))
        for x in range(4):
            e('v_mov_b32 %s, 0' % vr(NM + 4 * j + x))
    e('s_lshl_b32 %s, %s, 18' % (sr(S_OFF), sr(S_HI)))
    e('s_mov_b32 %s, 16' % sr(S_CNT))
    a.label('L_sp1')
    tile_dma(0)
    e('s_waitcnt vmcnt(0)')
    for i in range(16):
        e(kread(i, 0))
    for j in range(5):
        for t in qk(j, 0):
            e(t)
        for x in range(8):
            e('v_max3_f32 %s, %s, %s, %s' % (vr(V_L[j]), vr(V_L[j]), vr(SB[0] + 2 * x), vr(SB[0] + 2 * x + 1)))
    e('s_add_u32 %s, %s, %d' % (sr(S_OFF), sr(S_OFF), SLOT))
    e('s_sub_u32 %s, %s, 1' % (sr(S_CNT), sr(S_CNT)))
    e('s_cmp_lg_u32 %s, 0' % sr(S_CNT))
    e('s_cbranch_scc1 L_sp1')
    for j in range(5):
        t, u = vr(V_L[j]), vr(V_U)
        e('v_mov_b32 %s, %s' % (u, t))
        e('v_permlane16_swap_b32 %s, %s' % (t, u))
        e('v_max_f32 %s, %s, %s' % (t, t, u))
        e('v_mov_b32 %s, %s' % (u, t))
        e('v_permlane32_swap_b32 %s, %s' % (t, u))
        for x in range(4):
            e('v_min_f32 %s, -%s, -%s' % (vr(NM + 4 * j + x), t, u))
        e('v_mov_b32 %s, 0' % t)
    for x in range(80):
        e('v_mov_b64 %s, 0' % vr(OB + 2 * x, 2))
    e('s_lshl_b32 %s, %s, 18' % (sr(S_OFF), sr(S_HI)))
    e('s_mov_b32 %s, 16' % sr(S_CNT))
    a.label('L_sp2')
    tile_dma(0)
    tile_dma(1)
    e('s_waitcnt vmcnt(0)')
    for i in range(16):
        e(kread(i, 0))
    for i in range(16):
        for t in range(2):
            e(vread(i, t, 0))
    for j in range(5):
        for t in qk(j, 0):
            e(t)
        for _, t in softmax_ops(j, 0):
            e(t)
        for t in pv(j, 0):
            e(t)
    e('s_add_u32 %s, %s, %d' % (sr(S_OFF), sr(S_OFF), SLOT))
    e('s_sub_u32 %s, %s, 1' % (sr(S_CNT), sr(S_CNT)))
    e('s_cmp_lg_u32 %s, 0' % sr(S_CNT))
    e('s_cbranch_scc1 L_sp2')
    for j in range(5):
        for t in epi_head(j, 0)[:7] + epi_pack(j) + epi_write(j) + epi_fetch(j) + epi_store(j, S_SRDO, ''):
            e(t)
    e('s_waitcnt vmcnt(0)')
    a.label('L_sp_next')
    e('s_add_u32 %s, %s, 1' % (sr(S_HI), sr(S_HI)))
    e('s_cmp_lt_u32 %s, 2' % sr(S_HI))
    e('s_cbranch_scc1 L_sp_head')
    e('s_branch L_fin')


def gen(opt):
    global PVB
    PVB = opt.get('pvb', False)
    a = Asm()
    a.lag = opt.get('lag', 8)
    a.drop = opt.get('dropall', ())
    e = a.e
    diag = opt.get('diag', False)
    stA = opt.get('sta', ' sc1')
    stP = opt.get('stp', ' sc1')
    stB = opt.get('stb', ' sc1')
    park = opt.get('park', True)

    def stamp(i, h, real=False):
        if diag:
            b = (64 if h == 0 else 48) + 2 * i
            e('%s s[%d:%d]' % ('s_memrealtime' if real else 's_memtime', b, b + 1))
            e('s_waitcnt lgkmcnt(0)')

    def dump_stamps():
        if not diag:
            return
        e('s_lshl_b32 s80, s2, 2')
        e('s_add_u32 s80, s80, %s' % sr(S_W))
        e('s_lshl_b32 s80, s80, 7')
        e('v_mov_b32 v31, s80')
        for q in range(8):
            for x in range(4):
                e('v_mov_b32 v%d, s%d' % (252 + x, (64 if q < 4 else 32) + 4 * q + x))
            e('s_mov_b64 exec, 1')
            e('global_store_dwordx4 v31, v[252:255], s[84:85] offset:%d' % (16 * q))
            e('s_mov_b64 exec, -1')
            e('s_nop 1')

    e('s_cmp_ge_u32 s2, 256')
    e('s_cbranch_scc1 L_end')
    e('s_load_dwordx8 s[4:11], s[0:1], 0')
    if diag:
        e('s_load_dwordx2 s[84:85], s[0:1], 40')
        stamp(0, 0)
        stamp(6, 0, True)
    e('v_lshrrev_b32 v244, 6, v0')
    e('v_and_b32 v0, 63, v0')
    e('v_readfirstlane_b32 %s, v244' % sr(S_W))
    cpf = opt.get('cpf', 128 if opt.get('w3', True) else 64)
    if cpf:
        e('s_getpc_b64 s[46:47]')
        a.label('L_pc')
        e('s_lshr_b32 %s, s2, 3' % sr(S_T0))
        e('s_lshl_b32 %s, %s, 2' % (sr(S_T0), sr(S_T0)))
        e('s_add_u32 %s, %s, %s' % (sr(S_T0), sr(S_T0), sr(S_W)))
        e('s_and_b32 %s, %s, %d' % (sr(S_T0), sr(S_T0), cpf - 1))
        e('s_lshl_b32 %s, %s, 10' % (sr(S_T0), sr(S_T0)))
        e('s_min_u32 %s, %s, L_slow-L_pc-512' % (sr(S_T0), sr(S_T0)))
        e('v_lshl_add_u32 v245, v0, 4, %s' % sr(S_T0))
        e('global_load_dwordx4 %s, v245, s[46:47] ; @cpf' % ar(A_SP, 4))
    e('v_and_b32 v244, 15, v0')
    e('v_lshrrev_b32 v245, 4, v0')
    e('s_lshl_b32 %s, %s, 12' % (sr(S_WB), sr(S_W)))
    e('s_mul_i32 %s, %s, %d' % (sr(S_OW), sr(S_W), 80 * 256))
    e('s_lshl_b32 %s, %s, 13' % (sr(S_SW), sr(S_W)))
    e('s_add_u32 %s, %s, %d' % (sr(S_SW), sr(S_SW), STAGE))
    e('s_lshl_b32 %s, s2, 1' % sr(S_HEAD))
    e('s_mul_i32 %s, %s, %d' % (sr(S_T0), sr(S_HEAD), QH))
    e('s_lshl_b32 %s, %s, 18' % (sr(S_T2), sr(S_HEAD)))
    for srd in (S_SRDK, S_SRDV, S_SRDQ, S_SRDO, S_SRDO2):
        e('s_mov_b32 %s, 0x00020000' % sr(srd + 3))
    e('v_lshlrev_b32 v246, 8, v245')
    for p in range(4):
        e('v_add_u32 v247, %d, v245' % (4 * p))
        e('v_xor_b32 v247, v247, v244')
        e('v_lshl_add_u32 %s, v247, 4, v246' % vr(V_DK[p]))
    e('s_waitcnt lgkmcnt(0)')
    set_srd(a, S_SRDQ, 4, S_T0, QH)
    QAREA = [(S_WB, 2 * SLOT), (S_WB, 3 * SLOT), (S_WB, VRING + 2 * SLOT), (S_WB, VRING + 3 * SLOT), (S_SW, 0)]
    qd = [qdma(opt, j, QAREA[j][0], QAREA[j][1], 'q%d' % j) for j in range(5)]
    nyield = opt.get('yield', 0)
    if nyield:
        e('s_getreg_b32 s33, hwreg(HW_REG_XCC_ID)')
        e('s_and_b32 s33, s33, 1')
    ycount = [0]

    def gate(ops, n):
        if n >= nyield:
            return ops
        ycount[0] += 1
        L = 'L_y%d' % ycount[0]
        return ['s_cmp_lg_u32 s33, 0', 's_cbranch_scc1 ' + L, 's_waitcnt vmcnt(%d)' % opt.get('ydepth', 0), L + ':'] + ops
    for t in qd[0]:
        e(t)
    e('s_mov_b32 %s, %s' % (sr(S_OFF), sr(S_WB)))
    set_srd(a, S_SRDK, 6, S_T2, 2 * KH)
    st = [dma_ops(opt, n & 3, 's%d' % n, split=True) for n in range(6)]
    for t in (gate(st[0][:5], 0) if opt.get('prog', True) else qd[1]):
        e(t)
    for p in range(2):
        e('v_add_u32 v247, %d, v245' % (4 * p))
        e('v_lshlrev_b32 v247, 1, v247')
        e('v_xor_b32 v247, v247, v244')
        e('v_lshl_add_u32 %s, v247, 4, v246' % vr(V_DV[p]))
    c = f32bits(128 ** -0.5 * math.log2(math.e))
    e('s_mov_b32 %s, 0x%08x' % (sr(S_C), c))
    e('s_mov_b32 %s, 0x%08x' % (sr(S_C + 1), c))
    e('s_mov_b32 %s, 0x%08x' % (sr(S_THR), f32bits(opt.get('thr', 2.0 ** 24))))
    e('s_mov_b32 %s, 0xffff0000' % sr(S_MASK))
    if opt.get('rot', 0):
        e('s_lshr_b32 %s, s2, 4' % sr(S_R))
        e('s_xor_b32 %s, %s, s2' % (sr(S_R), sr(S_R)))
        e('s_and_b32 %s, %s, 15' % (sr(S_R), sr(S_R)))
        e('s_lshl_b32 %s, %s, 14' % (sr(S_R), sr(S_R)))
        e('s_mov_b32 %s, 0' % sr(S_N))
        e('s_mov_b32 %s, %s' % (sr(S_OFF), sr(S_R)))
    if opt.get('trace'):
        e('s_mov_b32 s88, 0')
        e('v_mov_b32 v29, 0')
    set_srd(a, S_SRDV, 8, S_T2, 2 * KH)
    for js in range(4):
        e('v_add_u32 v247, %d, v245' % (4 * js))
        e('v_xor_b32 v247, v247, v244')
        e('v_lshlrev_b32 v247, 4, v247')
        e('v_lshl_add_u32 %s, v244, 8, v247' % vr(V_KA[js]))
    e('v_mul_u32_u24 v247, 272, v244')
    e('v_lshl_add_u32 v247, v245, 3, v247')
    e('v_add_u32 %s, %s, v247' % (vr(V_PW), sr(S_SW)))
    e('v_mul_u32_u24 v247, 272, v245')
    e('v_lshl_add_u32 v247, v244, 4, v247')
    e('v_add_u32 %s, %s, v247' % (vr(V_PR), sr(S_SW)))
    e('v_lshlrev_b32 %s, 4, v0' % vr(V_LIN))
    e('v_and_b32 v247, 1, v245')
    e('v_lshlrev_b32 v247, 5, v247')
    e('v_lshl_add_u32 v247, v244, 8, v247')
    e('v_lshrrev_b32 v248, 1, v245')
    e('v_lshl_add_u32 %s, v248, 4, v247' % vr(V_OS))
    e('v_bfe_u32 v246, v0, 2, 2')
    e('v_lshl_add_u32 v247, v245, 2, v246')
    e('v_and_b32 v248, 7, v247')
    e('v_lshlrev_b32 v247, 8, v247')
    e('v_and_b32 v249, 3, v0')
    e('v_lshl_add_u32 v247, v249, 3, v247')
    e('v_add_u32 v247, %d, v247' % VRING)
    for db in range(8):
        e('v_xor_b32 v249, %d, v248' % db)
        e('v_lshl_add_u32 %s, v249, 5, v247' % vr(V_VA[db]))
    set_srd(a, S_SRDO, 10, S_T0, QH)
    e('s_add_u32 %s, %s, %d' % (sr(S_T0), sr(S_T0), QH))
    set_srd(a, S_SRDO2, 10, S_T0, QH)
    e('s_mov_b64 %s, 0' % sr(S_FLAG[0], 2))
    e('s_mov_b64 %s, 0' % sr(S_FLAG[1], 2))
    e('s_mov_b32 %s, 4' % sr(S_CNT))
    e('s_mov_b32 %s, 0' % sr(S_ENDV))
    e('s_mov_b64 vcc, 0')
    if opt.get('touch'):
        e('v_lshlrev_b32 v247, 16, v0')
        e('s_cmp_lg_u32 %s, 0' % sr(S_W))
        e('s_cbranch_scc1 L_notouch')
        e('buffer_load_dword %s, v247, %s, 0 offen nt' % (ar(A_SP + 8), sr(S_SRDK, 4)))
        e('buffer_load_dword %s, v247, %s, 0 offen nt' % (ar(A_SP + 9), sr(S_SRDV, 4)))
        e('buffer_load_dword %s, v247, %s, 0 offen nt' % (ar(A_SP + 10), sr(S_SRDO, 4)))
        e('buffer_load_dword %s, v247, %s, 0 offen nt' % (ar(A_SP + 11), sr(S_SRDO2, 4)))
        a.label('L_notouch')
        a.vmq = a.vmq[:-4]
    QA = 252
    e('s_add_u32 %s, %s, %d' % (sr(S_T2), sr(S_WB), VRING))
    QWIN = [(S_WB, 2 * SLOT), (S_WB, 3 * SLOT), (S_T2, 2 * SLOT), (S_T2, 3 * SLOT), (S_SW, 0)]
    RAW = OB + 128

    def qprep(j, dma):
        return (qaddr(QA, QWIN[j][0]) + ['WAITVM q%d' % j] + qread(lambda js: vr(RAW + 4 * js, 4), QA, QWIN[j][1])
                + dma + prescale(j, RAW, False))

    bad = []
    w3 = opt.get('w3', True)

    def main(skip4):
        m_begin = a.mark()
        opt['_auto'] = skip4
        a.drop = tuple(opt.get('dropall', ())) + (('#4',) if skip4 else ())
        ab = opt.get('lead', 'ab') == 'ab'
        lead = 2 if ab else opt['lead']
        W1, W2 = 8 * (lead - 1), 8 * (lead - 1) + 4
        if opt.get('prog', True):
            for t in gate(qd[1], 1):
                e(t)
            stamp(1, 0)
            for t in qprep(0, gate(st[0][5:], 2)):
                e(t)
            e('WAITVM s0k')
            e('s_barrier')
            for i in range(16):
                e(kread(i, 0))
            for t in gate(qd[2], 3):
                e(t)
            m_head = a.mark()
            stamp(2, 0)
            for t in max_one(0):
                e(t)
            stamp(3, 0)
            mf, gaps = body_tables(opt, 0, cold=True, fresh=True, dma=False, kpre=False)
            block(gaps, 15, qprep(1, gate(qd[3], 4)) + max_one(1))
            block(gaps, 47, ['WAITVM s0', 's_barrier'] + [vread(i, t, 0) for i in range(16) for t in range(2)] + gate(qd[4], 5))
            block(gaps, 63, qprep(2, gate(st[1][:5], 6)) + max_one(2))
            block(gaps, 95, qprep(3, st[1][5:]) + max_one(3))
            block(gaps, 127, qprep(4, st[2][:5]) + max_one(4) + ZERO4P)
            block(gaps, 143, ['WAITVM s1k', 's_barrier'])
            place(gaps, [kread(i, 1) for i in range(16)], [144 + i for i in range(16)])
            place(gaps, st[2][5:], [144, 146, 150, 154, 158, 158])
            emit_body(a, opt, mf, gaps, None, auto=True)
            set_srd(a, S_SRDQ, 4, S_T0, QH)
            if lead == 2:
                e('WAITVM s1')
                e('s_barrier')
                e('s_branch L_b1')
            else:
                mf, gaps = body_tables(opt, 1, dma=False)
                block(gaps, 15, ['WAITVM s1', 's_barrier'])
                place(gaps, st[3] + st[4][:5], [16, 19, 31, 43, 55, 59, 67, 79, 91, 103, 107, 111, 115, 131, 143, 155])
                emit_body(a, opt, mf, gaps, 'WAITVM s2', auto=True)
                mf, gaps = body_tables(opt, 2, dma=False)
                place(gaps, st[4][5:] + st[5], [3, 7, 19, 31, 43, 47, 51, 55, 67, 79, 91, 95, 103, 115, 131, 143, 147])
                gaps[99].append((1, 's_sub_u32 %s, %s, 1' % (sr(S_CNT), sr(S_CNT))))
                emit_body(a, opt, mf, gaps, 'WAITVM s3', auto=True)
                e('s_branch L_b3')
        else:
            for t in qd[2]:
                e(t)
            later = {0: qd[3], 1: qd[4], 2: st[0][:5], 3: st[0][5:], 4: st[1][:5]}
            for j in range(5):
                for t in qprep(j, later[j]):
                    e(t)
                if j == 0:
                    stamp(1, 0)
            set_srd(a, S_SRDQ, 4, S_T0, QH)
            e('WAITVM s0k')
            e('s_barrier')
            for i in range(16):
                e(kread(i, 0))
            for t in st[1][5:]:
                e(t)
            m_head = a.mark()
            stamp(2, 0)
            max_phase(a, ZERO4, 'a')
            e('WAITVM s0')
            e('s_barrier')
            stamp(3, 0)
            mf, gaps = body_tables(opt, 0, cold=True, fresh=True, dma=False)
            place(gaps, [vread(i, t, 0) for i in range(16) for t in range(2)], [(i if i < 7 else 33 + (i - 7)) for i in range(16) for t in range(2)])
            place(gaps, st[2], [7, 8, 10, 12, 14, 43, 47, 51, 55, 59, 63])
            if lead == 3:
                place(gaps, st[3], [79, 83, 87, 91, 95, 99, 103, 107, 111, 115, 119])
            emit_body(a, opt, mf, gaps, 'WAITVM s1', auto=True)
            e('s_branch L_b1')
        m_first_end = a.mark()

        marks = {}

        def seed_pend(slot):
            a.pend = [(Ins(kread(i, slot)).wr, a.nmfma - (31 - 2 * i)) for i in range(16)]

        late = opt.get('trace') or max(opt.get('dgaps', DG)) > 98
        cg = 155 if late else 103
        FREE0 = [1, 3, 7, 11, 15]
        variants = []
        a.raw('.p2align 6')
        def qvariant(gaps, rd, dm):
            if rd is not None:
                place(gaps, qaddr(T0, S_SW), [0, 0, 1, 1])
                place(gaps, qread(lambda js: ar(A_SP + 16 * rd[1] + 4 * js, 4), T0, rd[0] * 4096), [2, 2, 4, 5])
                block(gaps, 13, prescale(rd[1] + 2, A_SP + 16 * rd[1], True, dst=A_SP + 16 * rd[1]))
            spots = [3, 7, 11, 15] if sum(len(x[2]) for x in dm) == 4 else [3, 9, 15]
            for j, half, pcs in dm:
                q = qdma(opt, j, S_SW, half * 4096, 'q')
                mine = [spots.pop(0) for _ in pcs]
                if rd is not None and half == rd[0]:
                    assert mine[0] > 13
                place(gaps, q[:2], [mine[0] - 1, mine[0] - 1])
                place(gaps, [q[2 + x] for x in pcs], mine)

        smooth = opt.get('smooth', True)
        smoothb = opt.get('smoothb', False)
        if smooth:
            QP = {2: (None, [(2, 0, [0, 1, 2])]), 4: (None, [(2, 0, [3]), (3, 1, [0, 1])]), 6: ((0, 0), [(3, 1, [2, 3]), (4, 0, [0])]),
                  8: ((1, 1), [(4, 0, [1, 2, 3])]), 10: ((0, 2), [(0, 1, [0, 1, 2])]), 12: (None, [(0, 1, [3]), (1, 0, [0, 1])]),
                  14: (None, [(1, 0, [2, 3])])}
            QHALF = [1, 0]
        else:
            A4 = [0, 1, 2, 3]
            QP = {4: (None, [(2, 0, A4)]), 6: ((0, 0), [(3, 1, A4)]), 8: ((1, 1), [(4, 0, A4)]), 10: ((0, 2), [(1, 1, A4)]), 12: (None, [(0, 0, A4)])}
            QHALF = [0, 1]

        for name, rd, dm, j in (('qa3',) + QP[4] + (0,), ('qa2',) + QP[8] + (0,), ('qb3', 0, 0, 2), ('qb2', 0, 0, 3), ('qb1', 0, 0, 4), ('qa1',) + QP[12] + (0,)):
            a.label('L_' + name)
            m0_ = a.mark()
            seed_pend(0)
            mf, gaps = body_tables(opt, 0)
            if name[1] == 'a':
                qvariant(gaps, rd, dm)
            elif park and smoothb:
                q = epi_store(j, S_SRDO, stP, parked=True)
                place(gaps, [q[0], q[3], q[4]], [1, 3, 11])
            elif park:
                place(gaps, epi_store(j, S_SRDO, stP, parked=True), FREE0)
            emit_body(a, opt, mf, gaps, None, lo=0, hi=16)
            if name != 'qa1':
                e('s_branch L_b0g1')
            variants.append((m0_, a.mark()))
        for slot in range(4):
            mf, gaps = body_tables(opt, slot)
            bw = 's_waitcnt vmcnt(%d)' % W1
            if slot == 0 and park and opt.get('exactw', True):
                bw = 's_waitcnt vmcnt(%d)' % W2
            if slot == 1:
                gaps[99].append((1, 's_sub_u32 %s, %s, 2' % (sr(S_T2), sr(S_CNT))))
                gaps[cg].append((1, 's_cmp_le_u32 %s, 1' % sr(S_T2)))
            if slot == 2:
                gaps[99].append((1, 's_sub_u32 %s, %s, 1' % (sr(S_CNT), sr(S_CNT))))
                if opt.get('exactw', True) and not smooth:
                    gaps[127 if late else 103].append((1, 's_cmp_le_u32 %s, 1' % sr(S_T2)))
                    bw = ['s_waitcnt vmcnt(%d)' % W2, 's_cbranch_scc1 L_w2', 's_waitcnt vmcnt(%d)' % W1, 'L_w2:']
                gaps[155].append((1, 's_cmp_eq_u32 %s, %s' % (sr(S_CNT), sr(S_ENDV))))
            if slot == 3:
                gaps[99].append((1, 's_sub_u32 %s, %s, %s' % (sr(S_T2), sr(S_CNT), sr(S_ENDV))))
                gaps[cg].append((1, 's_cmp_eq_u32 %s, 3' % sr(S_T2)))
            if ab:
                L = 'L_wd%d' % slot
                wb = (18 if smoothb else 20) if (slot == 0 and park) else 16
                bw = ['s_waitcnt vmcnt(%d)' % wb, 's_cbranch_vccnz ' + L]
                if smooth and slot in (0, 2):
                    bw += ['s_waitcnt vmcnt(10)']
                elif slot == 0:
                    bw += ['s_waitcnt vmcnt(12)']
                elif slot == 2:
                    bw += ['s_waitcnt vmcnt(12)', 's_cbranch_scc1 ' + L, 's_waitcnt vmcnt(8)']
                else:
                    bw += ['s_waitcnt vmcnt(8)']
                bw += [L + ':']
                if opt.get('strict'):
                    bw = ['s_waitcnt vmcnt(%d)' % (10 if slot in (0, 2) else 8)]
            marks[slot] = a.mark()
            if slot != 0:
                a.label('L_b%d' % slot)
                seed_pend(slot)
                emit_body(a, opt, mf, gaps, None, lo=0, hi=16)
            a.label('L_b%dg1' % slot)
            a.pend = []
            emit_body(a, opt, mf, gaps, bw, lo=16)
            if slot == 1:
                e('s_cbranch_vccz L_qlds' if smooth else 's_cbranch_scc1 L_qlds')
                if smoothb:
                    e('s_cmp_lg_u32 %s, 11' % sr(S_CNT))
                    e('s_cbranch_scc1 L_qn')
            if slot == 2:
                e('s_cbranch_scc1 L_exit')
        marks[4] = a.mark()
        e('s_cbranch_vccnz L_backb')
        e('s_cbranch_scc1 L_qa3')
        e('s_cmp_eq_u32 %s, 2' % sr(S_T2))
        e('s_cbranch_scc1 L_qa2')
        e('s_branch L_qa1')
        a.label('L_backb')
        e('s_cbranch_scc1 L_qb3')
        e('s_cmp_eq_u32 %s, 2' % sr(S_T2))
        e('s_cbranch_scc1 L_qb2')
        e('s_branch L_qb1')
        a.label('L_qlds')
        if smooth:
            e('s_cbranch_scc0 L_qm41')
        e('s_cmp_eq_u32 %s, 2' % sr(S_CNT))
        e('s_cbranch_scc1 L_qm2')
        v2 = []
        for name, rd, dm in [('qm3',) + QP[6], ('qm2',) + QP[10]] + ([('qm4',) + QP[2], ('qm1',) + QP[14]] if smooth else []):
            if name == 'qm4':
                a.label('L_qm41')
                e('s_cmp_eq_u32 %s, 1' % sr(S_CNT))
                e('s_cbranch_scc1 L_qm1')
            a.label('L_' + name)
            m0_ = a.mark()
            seed_pend(2)
            mf, gaps = body_tables(opt, 2)
            qvariant(gaps, rd, dm)
            emit_body(a, opt, mf, gaps, None, lo=0, hi=16)
            e('s_branch L_b2g1')
            v2.append((m0_, a.mark()))
        if smoothb:
            a.label('L_qn')
            e('s_cmp_eq_u32 %s, 13' % sr(S_CNT))
            e('s_cbranch_scc1 L_qn3')
            e('s_cmp_eq_u32 %s, 12' % sr(S_CNT))
            e('s_cbranch_scc1 L_qn4')
            for j in (2, 3, 4):
                a.label('L_qn%d' % j)
                m0_ = a.mark()
                seed_pend(2)
                mf, gaps = body_tables(opt, 2)
                q = epi_store(j, S_SRDO, stP, parked=True)
                place(gaps, q[:3], [1, 3, 11])
                emit_body(a, opt, mf, gaps, None, lo=0, hi=16)
                e('s_branch L_b2g1')
                v2.append((m0_, a.mark()))
        a.label('L_exit')
        e('s_cbranch_vccnz L_lastb')
        m_last = a.mark()
        stamp(4, 0)
        seed_pend(3)
        a.vmq = ['ql'] * 2 + ['n1'] * 8 + ['n2'] * (8 * (lead - 2))
        mf, gaps = body_tables(opt, 3, dma=not ab)
        if ab:
            kw = dma_ops(opt, 0, 'kw')
            if opt.get('spreadb', False):
                place(gaps, dma_ops(opt, 0, 'kv'), [1, 5, 19, 28, 43, 45, 55, 63, 75, 83, 85])
                place(gaps, kw[:5], [107, 111, 127, 143, 155])
            else:
                place(gaps, dma_ops(opt, 0, 'kv'), [1, 5, 9, 13, 19, 21, 27, 35, 43, 51, 53])
                place(gaps, kw, [55, 59, 75, 83, 99, 101, 107, 115, 123, 131, 133])
        place(gaps, qaddr(QA, S_SW), [3, 7, 11, 15])
        for j in range(2):
            place(gaps, qread(lambda js: ar(A_Q + 16 * j + 4 * js, 4), QA, QHALF[j] * 4096), [32 * j + 16] * 4)
            if j == 1:
                gaps[47].append((8, 'WAITVM ql'))
            block(gaps, 32 * j + 29, prescale(j, A_Q + 16 * j, True))
        for j in (2, 3, 4):
            if opt.get('early', True):
                block(gaps, 32 * j + 17, ['v_accvgpr_mov_b32 %s, %s' % (ar(A_Q + 16 * j + x), ar(A_SP + 16 * (j - 2) + x)) for x in range(16)])
            else:
                block(gaps, 32 * j + 17, prescale(j, A_SP + 16 * (j - 2), True))
        for j in range(3):
            k = 48 + 32 * j + 17
            pk_ = park and j >= 2
            fill(gaps, epi_head(j, 0), k - 19, k - 1, 2)
            block(gaps, k, epi_pack(j))
            epi_spread(gaps, j, k, S_SRDO, stA, pk_, tight=(j == 2))
        fill(gaps, epi_head(3, 0), 142, 159, 2)
        emit_body(a, opt, mf, gaps, 'WAITVM n1', auto=True)
        if lead == 2:
            a.vmq = ['n2' if t == 'kv' else t for t in a.vmq]
        stamp(5, 0)
        stamp(7, 0, True)
        for x in (0, 1, 2):
            stamp(x, 1)
        stamp(6, 1, True)
        e('s_mov_b32 %s, 14' % sr(S_CNT))
        e('s_mov_b32 %s, 10' % sr(S_ENDV))
        e('s_mov_b64 vcc, -1')
        p3, p3n = epi_pack(3), epi_pack(3, False)
        max_phase(a, p3n[:24] + p3n[24:32] + p3[20:], 'b')
        stamp(3, 1)
        mf, gaps = body_tables(opt, 0, fresh=True, dma=not (ab and opt.get('spreadb', False)))
        if ab and opt.get('spreadb', False):
            place(gaps, kw[5:], [1, 3, 15, 31, 46, 46])
            place(gaps, dma_ops(opt, 0, 'kx'), [51, 55, 67, 79, 91, 95, 103, 114, 123, 139, 141])
        epi_spread(gaps, 3, -1, S_SRDO, stA, park)
        fill(gaps, epi_head(4, 0), 22, 46, 2)
        block(gaps, 47, epi_pack(4))
        epi_spread(gaps, 4, 47, S_SRDO, stA, park)
        block(gaps, 115, ZERO4P)
        emit_body(a, opt, mf, gaps, 'WAITVM n2', auto=True)
        e('s_branch L_b1')
        m_last_end = a.mark()
        a.label('L_lastb')
        m_lastb = a.mark()
        stamp(4, 1)
        seed_pend(3)
        a.vmq = ['n2'] * 8
        a.drop = tuple(a.drop) + tuple(opt.get('droplast', ()))
        mf, gaps = body_tables(opt, 3, dma=False, kpre=False)
        for j in range(3):
            k = 48 + 32 * j + 17
            fill(gaps, epi_head(j, 1), k - 19, k - 1, 2)
            block(gaps, k, epi_pack(j))
            epi_spread(gaps, j, k, S_SRDO2, stB, False, tight=(j == 2))
        fill(gaps, epi_head(3, 1), 142, 159, 2)
        emit_body(a, opt, mf, gaps, 'WAITVM n2', auto=True)
        sb4 = (3 + 4) & 1
        sm = [t for g, t in softmax_ops(4, sb4) if 128 + W0 + g >= 160]
        p3 = epi_pack(3)
        F = []
        for t in sm:
            F.append((t, 0))
            if t.startswith('v_exp'):
                F.append((p3.pop(0), 0))
        F += [(t, 0) for t in p3]
        n4 = len(F)
        h4 = epi_head(4, 1)
        for x, t in enumerate(epi_write(3)):
            F += [(t, 0), (h4[x], 0)]
        F += [(h4[8], 0)] + [(t, 0) for t in epi_fetch(3)]
        merge(a, [(t, n4) for t in pv(4, sb4)], F)
        d4 = epi_direct(4, S_SRDO2, stB)
        for t in epi_store(3, S_SRDO2, stB) + d4:
            e(t)
        stamp(5, 1)
        stamp(7, 1, True)
        m_end = a.mark()
        I = a.ins
        B = lambda s: I[marks[s]:marks[s + 1]]
        seq = I[m_head:m_first_end] + (B(1) + B(2) if (lead == 2 or not opt.get('prog', True)) else []) + B(3)
        for lo, hi in variants:
            seq += I[lo:hi] + B(0) + B(1) + B(2) + B(3)
        bad.extend(check_hazards(seq, 'loop'))
        g1 = [k for k in range(marks[2], marks[3]) if I[k].text == 'L_b2g1:'][0]
        for lo, hi in v2:
            bad.extend(check_hazards(B(1) + I[lo:hi] + I[g1:marks[3]], 'mid'))
        bad.extend(check_hazards(B(2) + I[m_last:m_last_end] + B(1) + B(2) + I[m_lastb:m_end], 'edges'))
        print('body instrs: %d' % sum(1 for i in B(1) if i.kind != 'none'), file=sys.stderr)
        a.drop = ()
        if skip4:
            for i in a.ins[m_begin:]:
                i.text = re.sub(r'\bL_(\w+)', lambda m: m.group(0) + '_w3', i.text)

    if w3:
        e('s_cmp_eq_u32 %s, 3' % sr(S_W))
        e('s_cbranch_scc1 L_wave3')
    vmq0, pend0 = list(a.vmq), list(a.pend)
    main(False)
    if w3:
        e('s_branch L_slow')
        a.label('L_wave3')
        a.vmq, a.pend = list(vmq0), list(pend0)
        main(True)
    m_end = a.mark()
    a.label('L_slow')
    slow_path(a, opt)
    a.label('L_fin')
    if opt.get('dbg'):
        e('s_cmp_ge_u32 s2, 4')
        e('s_cbranch_scc1 L_end')
        e('s_cmp_lg_u32 %s, 0' % sr(S_W))
        e('s_cbranch_scc1 L_end')
        e('s_load_dwordx2 s[82:83], s[0:1], 32')
        e('s_waitcnt lgkmcnt(0)')
        vals = ['s_sub_u32 s80, s62, s76', 's_sub_u32 s80, s72, s64', 's_sub_u32 s80, s56, s54', 's_sub_u32 s80, s58, s64']
        for n, t in enumerate(vals):
            e(t)
            e('v_mov_b32 v%d, s80' % (252 + n))
        e('s_lshl_b32 s80, s2, 4')
        e('v_mov_b32 v31, s80')
        e('s_mov_b64 exec, 1')
        e('global_store_dwordx4 v31, v[252:255], s[82:83]')
    else:
        dump_stamps()
    if opt.get('trace'):
        e('s_lshl_b32 s80, s80, 1')
        e('s_add_u32 s80, s80, 131072')
        e('v_lshl_add_u32 v31, v0, 2, s80')
        e('global_store_dword v31, v29, s[84:85]')
    a.label('L_end')
    e('s_endpgm')

    I = a.ins
    sl = I[m_end:]
    bad += check_hazards(sl + sl, 'slow')
    for b in bad[:8]:
        print('HAZARD', b, file=sys.stderr)
    assert not bad or opt.get('nocheck')
    print('total %d' % len(I), file=sys.stderr)

    hdr = open('cdna_kernels/%s.s.ref' % NAME).read().split('\n')
    out = '\n'.join(hdr[:9]) + '\n'
    out += '; @launch grid=(256,1,1) block=(256,1,1) lds=%d\n' % LDS_BYTES
    out += '.amdgcn_target "amdgcn-amd-amdhsa--gfx950"\n.text\n.globl %s_kernel\n.p2align 8\n.type %s_kernel,@function\n%s_kernel:\n' % (NAME, NAME, NAME)
    out += a.text()
    out += '''.section .rodata,"a"
.p2align 6
.amdhsa_kernel %s_kernel
  .amdhsa_next_free_vgpr 512
  .amdhsa_next_free_sgpr 102
  .amdhsa_accum_offset 256
  .amdhsa_group_segment_fixed_size 0
  .amdhsa_kernarg_size 48
  .amdhsa_user_sgpr_count 2
  .amdhsa_user_sgpr_kernarg_segment_ptr 1
  .amdhsa_system_sgpr_workgroup_id_x 1
.end_amdhsa_kernel
''' % NAME
    return out


if __name__ == '__main__':
    opt = {}
    outp = sys.argv[1]
    for kv in sys.argv[2:]:
        k, v = kv.split('=', 1)
        try:
            v = eval(v)
        except Exception:
            pass
        opt[k] = v
    open(outp, 'w').write(gen(opt))
```

```python
import sys, struct, math, re
from asmlib import Asm, Ins, check_hazards

NAME = 'standalone__mha_softmax__near_ridge'
LDS_BYTES = 163840
QH = 304 * 256
KH = 1024 * 256
VRING = 65536
SLOT = 16384

V_KA = [1, 2, 3, 4]
V_VA = [5, 6, 7, 8, 9, 10, 11, 12]
V_DK = [13, 14, 15, 16]
V_DV = [17, 18]
V_L = [19, 20, 21, 22, 23]
V_OS = 27
V_PW, V_PR, V_LIN = 24, 25, 26
V_R, V_U = 28, 30
OB = 32
NM = 192
SB = (212, 228)
T0 = 244
A_Q, A_K, A_V, A_SP = 0, 80, 144, 208
S_SRDK, S_SRDV, S_SRDQ, S_SRDO = 12, 16, 20, 24
S_OFF, S_WB, S_CNT, S_HI, S_W = 28, 29, 30, 31, 32
S_C, S_THR, S_MASK = 34, 36, 37
S_FLAG = (38, 90)
S_ENDV = 40
S_T0, S_T1, S_T2 = 41, 42, 43
S_HEAD = 44
S_QW, S_SW, S_OW, S_SO = 98, 99, 100, 101
S_N, S_R = 33, 45
S_SRDO2 = 92


def f32bits(x):
    return struct.unpack('<I', struct.pack('<f', x))[0]


def vr(b, n=1):
    return 'v%d' % b if n == 1 else 'v[%d:%d]' % (b, b + n - 1)


def ar(b, n=1):
    return 'a%d' % b if n == 1 else 'a[%d:%d]' % (b, b + n - 1)


def sr(b, n=1):
    return 's%d' % b if n == 1 else 's[%d:%d]' % (b, b + n - 1)


MF = 'v_mfma_f32_16x16x32_bf16'
ALAG = 0


def qk(j, sb):
    out = []
    for kt in range(4):
        d = vr(SB[sb] + 4 * kt, 4)
        for js in range(4):
            c = vr(NM + 4 * j, 4) if js == 0 else d
            out.append('%s %s, %s, %s, %s' % (MF, d, ar(A_K + 16 * kt + 4 * js, 4), ar(A_Q + 16 * j + 4 * js, 4), c))
    return out


PVB = False


def pv(j, sb, czero=False):
    out = []
    for i in range(16):
        db, ks = ((i & 7), i >> 3) if PVB else (i >> 1, i & 1)
        o = vr(OB + 32 * j + 4 * db, 4)
        c = '0' if (czero and ks == 0) else o
        out.append('%s %s, %s, %s, %s' % (MF, o, ar(A_V + 32 * ks + 4 * db, 4), vr(SB[sb] + 4 * ks, 4), c))
    return out


def kread(i, slot):
    kt, js = i >> 2, i & 3
    return 'ds_read_b128 %s, %s offset:%d' % (ar(A_K + 4 * i, 4), vr(V_KA[js]), slot * SLOT + kt * 4096)


def vread(i, t, slot):
    db, ks = ((i & 7), i >> 3) if PVB else (i >> 1, i & 1)
    return 'ds_read_b64_tr_b16 %s, %s offset:%d' % (ar(A_V + 32 * ks + 4 * db + 2 * t, 2), vr(V_VA[db]), slot * SLOT + ks * 8192 + t * 4096)


def softmax_ops(j, sb, first=False):
    s = SB[sb]
    l = V_L[j]
    ops = []
    for r in range(16):
        ops.append((2 * r - ALAG, 'v_exp_f32 %s, %s' % (vr(s + r), vr(s + r))))
        if first and r == 0:
            ops.append((2 * r + 1, 'v_mov_b32 %s, %s' % (vr(l), vr(s + r))))
        else:
            ops.append((2 * r + 1, 'v_add_f32 %s, %s, %s' % (vr(l), vr(l), vr(s + r))))
        if r & 1:
            k = r >> 1
            ops.append((2 * r + 1, 'v_cvt_pk_bf16_f32 %s, %s, %s' % (vr(s + k), vr(s + 2 * k), vr(s + 2 * k + 1))))
    ops.sort(key=lambda x: x[0])
    return ops


def dma_ops(opt, slot, tag, split=False):
    fl = opt.get('dmaflags', ' nt')
    o = ['s_and_b32 m0, %s, 0xffff' % sr(S_OFF)]
    for p in range(4):
        o.append('buffer_load_dwordx4 %s, %s, %s offen offset:%d%s lds ; @%s' % (vr(V_DK[p]), sr(S_SRDK, 4), sr(S_OFF), p * 1024, fl, tag + 'k'))
    o.append('s_add_u32 m0, m0, %d' % VRING if not split else 's_add_u32 m0, %s, %d' % (sr(S_WB), VRING + slot * SLOT))
    for p in range(4):
        o.append('buffer_load_dwordx4 %s, %s, %s offen offset:%d%s lds ; @%s' % (vr(V_DV[p & 1]), sr(S_SRDV, 4), sr(S_OFF), p * 1024, fl, tag))
    if opt.get('rot', 0):
        o.append('s_add_u32 %s, %s, %d\n    s_xor_b32 %s, %s, %s' % (sr(S_N), sr(S_N), SLOT, sr(S_OFF), sr(S_N), sr(S_R)))
    else:
        o.append('s_add_u32 %s, %s, %d' % (sr(S_OFF), sr(S_OFF), SLOT))
    return o


def qdma(opt, j, m0base, m0off, tag, qw=None):
    fl = opt.get('qflags', ' nt')
    o = ['s_add_u32 m0, %s, %d' % (sr(m0base), m0off),
         's_add_u32 %s, %s, %d' % (sr(S_T1), sr(S_OW), j * 4096)]
    for p in range(4):
        o.append('buffer_load_dwordx4 %s, %s, %s offen offset:%d%s lds ; @%s' % (vr(V_DK[p]), sr(S_SRDQ, 4), sr(S_T1), p * 1024, fl, tag))
    return o


def qaddr(base, sg):
    return ['v_add_u32 %s, %s, %s' % (vr(base + js), sr(sg), vr(V_KA[js])) for js in range(4)]


def qread(dst, base, off):
    return ['ds_read_b128 %s, %s offset:%d' % (dst(js), vr(base + js), off) for js in range(4)]


def prescale(j, src, from_acc, dst=None):
    o = []
    for g in range(4):
        T = [T0 + 2 * x for x in range(4)]
        for x in range(4):
            if from_acc:
                o.append('v_accvgpr_read_b32 %s, %s' % (vr(T[x] + 1), ar(src + 4 * g + x)))
        for x in range(4):
            s = vr(T[x] + 1) if from_acc else vr(src + 4 * g + x)
            o.append('v_lshlrev_b32 %s, 16, %s' % (vr(T[x]), s))
        for x in range(4):
            s = vr(T[x] + 1) if from_acc else vr(src + 4 * g + x)
            o.append('v_and_b32 %s, %s, %s' % (vr(T[x] + 1), sr(S_MASK), s))
        for x in range(4):
            o.append('v_pk_mul_f32 %s, %s, %s' % (vr(T[x], 2), vr(T[x], 2), sr(S_C, 2)))
        for x in range(4):
            o.append('v_cvt_pk_bf16_f32 %s, %s, %s' % (vr(T[x]), vr(T[x]), vr(T[x] + 1)))
        for x in range(4):
            o.append('v_accvgpr_write_b32 %s, %s' % (ar((A_Q + 16 * j if dst is None else dst) + 4 * g + x), vr(T[x])))
    return o


STAGE = 131072


def epi_head(j, h):
    l, u = vr(V_L[j]), vr(V_U)
    return ['v_mov_b32 %s, %s' % (u, l),
            'v_permlane16_swap_b32 %s, %s' % (l, u),
            'v_add_f32 %s, %s, %s' % (l, l, u),
            'v_mov_b32 %s, %s' % (u, l),
            'v_permlane32_swap_b32 %s, %s' % (l, u),
            'v_add_f32 %s, %s, %s' % (l, l, u),
            'v_rcp_f32 %s, %s' % (vr(V_R), l),
            'v_cmp_nge_f32 %s, %s, %s' % (sr(96, 2), sr(S_THR), l),
            's_or_b64 %s, %s, %s' % (sr(S_FLAG[h], 2), sr(S_FLAG[h], 2), sr(96, 2))]


def epi_pack(j, pk=True):
    o = []
    b0 = OB + 32 * j
    for h in range(2):
        if pk:
            for x in range(8):
                b = b0 + 16 * h + 2 * x
                o.append('v_pk_mul_f32 %s, %s, %s op_sel_hi:[1,0]' % (vr(b, 2), vr(b, 2), vr(V_R, 2)))
        else:
            for x in range(16):
                b = b0 + 16 * h + x
                o.append('v_mul_f32 %s, %s, %s' % (vr(b), vr(V_R), vr(b)))
        for db in range(4 * h, 4 * h + 4):
            b = b0 + 4 * db
            o.append('v_cvt_pk_bf16_f32 %s, %s, %s' % (vr(b), vr(b), vr(b + 1)))
            o.append('v_cvt_pk_bf16_f32 %s, %s, %s' % (vr(b + 1), vr(b + 2), vr(b + 3)))
    return o


def epi_write(j):
    return ['ds_write_b64 %s, %s offset:%d' % (vr(V_PW), vr(OB + 32 * j + 4 * db, 2), db * 32) for db in range(8)]


def epi_direct(j, srd, fl):
    o = ['s_add_u32 %s, %s, %d' % (sr(S_SO), sr(S_OW), j * 4096)]
    for mm in range(2):
        for m in (2 * mm, 2 * mm + 1):
            b = OB + 32 * j + 8 * m
            for x in range(4):
                o.append('v_pk_mul_f32 %s, %s, %s op_sel_hi:[1,0]' % (vr(b + 2 * x, 2), vr(b + 2 * x, 2), vr(V_R, 2)))
        for m in (2 * mm, 2 * mm + 1):
            b = OB + 32 * j + 8 * m
            for x in range(4):
                o.append('v_cvt_pk_bf16_f32 %s, %s, %s' % (vr(b + x), vr(b + 2 * x), vr(b + 2 * x + 1)))
        for m in (2 * mm, 2 * mm + 1):
            b = OB + 32 * j + 8 * m
            o.append('v_permlane16_swap_b32 %s, %s' % (vr(b), vr(b + 2)))
            o.append('v_permlane16_swap_b32 %s, %s' % (vr(b + 1), vr(b + 3)))
        for m in (2 * mm, 2 * mm + 1):
            b = OB + 32 * j + 8 * m
            o.append('buffer_store_dwordx4 %s, %s, %s, %s offen offset:%d%s ; @st' % (vr(b, 4), vr(V_OS), sr(srd, 4), sr(S_SO), m * 64, fl))
    return o


def epi_spread(gaps, j, k, srd, fl, parked, tight=False, nostore=False):
    e1 = fill(gaps, epi_write(j), k + 1, k + (16 if tight else 20), 2)
    e2 = fill(gaps, epi_fetch(j, parked), e1, k + (21 if tight else 30), 1)
    if not parked and not nostore:
        fill(gaps, epi_store(j, srd, fl), e2 + (3 if tight else 4), k + (30 if tight else 52), 1 if tight else 2)


def odst(j, parked):
    return (lambda p: ar(A_SP + 16 * (j - 2) + 4 * p, 4)) if parked else (lambda p: vr(OB + 32 * j + 4 * p, 4))


def epi_fetch(j, parked=False):
    return ['ds_read_b128 %s, %s offset:%d' % (odst(j, parked)(p), vr(V_PR), p * 1088) for p in range(4)]


def epi_store(j, srd, fl, parked=False):
    o = ['s_add_u32 %s, %s, %d' % (sr(S_SO), sr(S_OW), j * 4096)]
    for p in range(4):
        o.append('buffer_store_dwordx4 %s, %s, %s, %s offen offset:%d%s ; @st' % (odst(j, parked)(p), vr(V_LIN), sr(srd, 4), sr(S_SO), p * 1024, fl))
    return o


def _tag4(fn, pairs=False):
    def w(j, *args, **kw):
        r = fn(j, *args, **kw)
        if j != 4:
            return r
        if pairs:
            return [(g, t + ' ; #4') for g, t in r]
        return [t if (t.startswith('buffer') and keep_vmem) or t.endswith(':') else (t + ' #4' if ';' in t else t + ' ; #4') for t in r]
    keep_vmem = False
    return w


qk, pv, prescale, epi_head, epi_pack, epi_write, epi_fetch, epi_direct = [_tag4(f) for f in (qk, pv, prescale, epi_head, epi_pack, epi_write, epi_fetch, epi_direct)]
softmax_ops = _tag4(softmax_ops, True)


def is_mem(t):
    return t.startswith(('ds_', 'buffer_', 'global_'))


def cost(t):
    if t.startswith(('v_exp', 'v_rcp')):
        return 8
    if t.endswith(':'):
        return 0
    return 4


def merge(a, mfmas, fillers, budget=8):
    fi = 0
    for mi, (text, need) in enumerate(mfmas):
        while fi < need:
            assert fillers[fi][1] <= mi, (fillers[fi], mi, text)
            a.e(fillers[fi][0])
            fi += 1
        a.e(text)
        b = budget
        valu = False
        while fi < len(fillers) and fillers[fi][1] <= mi + 1 and b > 0:
            t = fillers[fi][0]
            if is_mem(t) and valu:
                break
            if cost(t) > b and b < budget:
                break
            valu = valu or t.startswith('v_')
            b -= cost(t)
            a.e(t)
            fi += 1
    while fi < len(fillers):
        a.e(fillers[fi][0])
        fi += 1


def set_srd(a, srd, ptr, off, size):
    a.e('s_add_u32 %s, %s, %s' % (sr(srd), sr(ptr), sr(off)))
    a.e('s_addc_u32 %s, %s, 0' % (sr(srd + 1), sr(ptr + 1)))
    a.e('s_and_b32 %s, %s, 0xffff' % (sr(srd + 1), sr(srd + 1)))
    a.e('s_mov_b32 %s, %s' % (sr(srd + 2), size))


W0 = 14
DG = [51, 55, 63, 67, 71, 75, 79, 83, 87, 91, 95]


def body_tables(opt, slot, cold=False, fresh=False, dma=True, kpre=True):
    sbuf = lambda u: (slot + u) & 1
    groups = [qk(0, sbuf(0)), pv(4, sbuf(-1)), qk(1, sbuf(1)), pv(0, sbuf(0), fresh), qk(2, sbuf(2)), pv(1, sbuf(1), fresh),
              qk(3, sbuf(3)), pv(2, sbuf(2), fresh), qk(4, sbuf(4)), pv(3, sbuf(3), fresh)]
    mf = [t for g in groups for t in g]
    gaps = [[] for _ in range(160)]
    if cold:
        for k in range(16, 32):
            mf[k] = None
    else:
        for g, t in softmax_ops(4, sbuf(-1)):
            k = 128 + W0 + g - 160
            if k >= 0:
                gaps[k].append((5, t))
    for u in range(5):
        for g, t in softmax_ops(u, sbuf(u), fresh):
            k = 32 * u + W0 + g
            if cold and u == 0 and k < 32:
                k = min(7 + g, 15)
            if k < 160:
                gaps[k].append((5, t))
    for i in range(16):
        if not cold:
            for t in range(2):
                gaps[17 + 2 * i].append((0, vread(i, t, slot)))
        if kpre:
            gaps[129 + 2 * i].append((0, kread(i, (slot + 1) & 3)))
    if dma and not opt.get('nodma'):
        dg = opt.get('dgaps', DG)
        if cold:
            place(gaps, dma_ops(opt, 2, 's2'), [7, 8, 10, 12, 14, 43, 47, 51, 55, 59, 63])
            dg = [79, 83, 87, 91, 95, 99, 103, 107, 111, 115, 119]
        place(gaps, dma_ops(opt, 0, 'kv'), dg)
    return mf, gaps


def place(gaps, ops, where):
    assert len(ops) == len(where), (len(ops), len(where))
    for k, t in zip(where, ops):
        gaps[k].append((0 if is_mem(t) else (1 if t.startswith('s_') else 6), t))


def load(g):
    return sum(cost(t) for _, t in g)


def fill(gaps, ops, lo, hi, mind=1):
    k = lo
    for n, t in enumerate(ops):
        last = hi - mind * (len(ops) - 1 - n)
        c = [x for x in range(k, last + 1) if load(gaps[x]) + cost(t) <= 8]
        room = (last - k) // max(1, 1)
        if c and c[0] - k <= max(3, 0) + (hi - lo) // len(ops):
            k = c[0]
        assert k <= last, (t, k, last)
        gaps[k].append((0 if is_mem(t) else (1 if t.startswith('s_') and not t.startswith('s_or') else 6), t))
        k += mind
    return k


def block(gaps, k, ops):
    for t in ops:
        gaps[k].append((7, t))


def emit_body(a, opt, mf, gaps, barwait, auto=False, lo=0, hi=160):
    a.auto_nop = auto or opt.get('_auto', False)
    for k in range(lo, hi):
        if mf[k] is not None:
            a.e(mf[k])
        for _, t in sorted(gaps[k], key=lambda x: x[0]):
            a.e(t)
        if opt.get('pace') and k % opt['pace'] == 0 and mf[k] is not None:
            a.e('s_nop 3')
        if k == 127 and barwait is not None:
            for t in (barwait if isinstance(barwait, list) else [barwait]):
                a.e(t)
            if opt.get('trace'):
                a.e('s_memrealtime s[86:87]')
                a.e('s_waitcnt lgkmcnt(0)')
                a.e('s_mov_b32 s89, m0')
                a.e('s_mov_b32 m0, s88')
                a.e('v_writelane_b32 v29, s86, m0')
                a.e('s_mov_b32 m0, s89')
                a.e('s_add_u32 s88, s88, 1')
            a.e('s_barrier')
    a.auto_nop = True


def max_phase(a, extra, tag):
    M, F = [], []
    extra = list(extra)
    take = lambda n: [extra.pop(0) for _ in range(min(n, len(extra)))]
    for j in range(5):
        d = vr(NM + 4 * j, 4)
        for js in range(4):
            M.append(('%s %s, %s, %s, %s' % (MF, d, ar(A_K + 4 * js, 4), ar(A_Q + 16 * j + 4 * js, 4), '0' if js == 0 else d), 0))
    for t in take(12):
        F.append((t, 0))
    for j in range(5):
        n = NM + 4 * j
        t, u = vr(T0 + 2 * j), vr(T0 + 2 * j + 1)
        ops = ['v_max3_f32 %s, %s, %s, %s' % (t, vr(n), vr(n + 1), vr(n + 2)),
               'v_max_f32 %s, %s, %s' % (t, t, vr(n + 3)),
               'v_mov_b32 %s, %s' % (u, t)] + take(2) + [
               'v_permlane16_swap_b32 %s, %s' % (t, u),
               'v_max_f32 %s, %s, %s' % (t, t, u),
               'v_mov_b32 %s, %s' % (u, t)] + take(2) + [
               'v_permlane32_swap_b32 %s, %s' % (t, u)]
        ops += ['v_min_f32 %s, -%s, -%s' % (vr(n + x), t, u) for x in range(4)]
        for o in ops:
            F.append((o, min(4 * j + 7, 20)))
    merge(a, M, F)
    for t in extra:
        a.e(t)
    a.e('s_cmp_lg_u32 %s, 3' % sr(S_W))
    a.e('s_cbranch_scc1 L_nd%s' % tag)
    for x in range(4):
        a.e('v_mov_b32 %s, 0x%08x' % (vr(NM + 16 + x), f32bits(-1e30)))
    a.label('L_nd%s' % tag)
    a.e('s_nop 1')


def max_one(j):
    n = NM + 4 * j
    d = vr(n, 4)
    t, u = vr(T0), vr(T0 + 1)
    o = ['%s %s, %s, %s, %s' % (MF, d, ar(A_K + 4 * js, 4), ar(A_Q + 16 * j + 4 * js, 4), '0' if js == 0 else d) for js in range(4)]
    o += ['v_max3_f32 %s, %s, %s, %s' % (t, vr(n), vr(n + 1), vr(n + 2)),
          'v_max_f32 %s, %s, %s' % (t, t, vr(n + 3)),
          'v_mov_b32 %s, %s' % (u, t),
          'v_permlane16_swap_b32 %s, %s' % (t, u),
          'v_max_f32 %s, %s, %s' % (t, t, u),
          'v_mov_b32 %s, %s' % (u, t),
          'v_permlane32_swap_b32 %s, %s' % (t, u)]
    o += ['v_min_f32 %s, -%s, -%s' % (vr(n + x), t, u) for x in range(4)]
    if j == 4:
        o += ['s_cmp_lg_u32 %s, 3' % sr(S_W), 's_cbranch_scc1 L_nda']
        o += ['v_mov_b32 %s, 0x%08x' % (vr(NM + 16 + x), f32bits(-1e30)) for x in range(4)]
        o += ['L_nda:', 's_nop 1']
    return o


ZERO4 = ['v_mov_b32 %s, 0 ; #4' % vr(OB + 128 + x) for x in range(32)]
ZERO4P = ['v_mov_b64 %s, 0 ; #4' % vr(OB + 128 + 2 * x, 2) for x in range(16)]


def slow_path(a, opt):
    e = a.e
    a.pend = []
    a.vmq = []
    e('s_or_b64 %s, %s, %s' % (sr(96, 2), sr(S_FLAG[0], 2), sr(S_FLAG[1], 2)))
    e('s_cbranch_scc0 L_fin')
    e('s_waitcnt vmcnt(0) lgkmcnt(0)')
    e('s_lshl_b32 %s, %s, 2' % (sr(S_T0), sr(S_WB)))
    for x in V_KA + V_VA:
        e('v_add_u32 %s, %s, %s' % (vr(x), sr(S_T0), vr(x)))
    e('s_mov_b32 %s, %s' % (sr(S_WB), sr(S_T0)))
    e('s_mov_b32 %s, 0' % sr(S_HI))
    a.label('L_sp_head')
    e('s_cmp_eq_u32 %s, 0' % sr(S_HI))
    e('s_cselect_b64 %s, %s, %s' % (sr(96, 2), sr(S_FLAG[0], 2), sr(S_FLAG[1], 2)))
    e('s_cmp_eq_u64 %s, 0' % sr(96, 2))
    e('s_cbranch_scc1 L_sp_next')
    e('s_lshl_b32 %s, s2, 1' % sr(S_T1))
    e('s_add_u32 %s, %s, %s' % (sr(S_T1), sr(S_T1), sr(S_HI)))
    e('s_mul_i32 %s, %s, %d' % (sr(S_T1), sr(S_T1), QH))
    set_srd(a, S_SRDQ, 4, S_T1, QH)
    set_srd(a, S_SRDO, 10, S_T1, QH)
    for j in range(5):
        for t in qdma(opt, j, S_WB, 0, 'q', qw=S_OW):
            e(t)
        e('s_waitcnt vmcnt(0)')
        for t in qread(lambda js: vr(OB + 4 * js, 4), V_KA[0], 0) + prescale(j, OB, False):
            e(t)

    def tile_dma(kv):
        for q in range(4):
            e('s_add_u32 m0, %s, %d' % (sr(S_WB), (VRING if kv else 0) + q * 4096))
            e('s_add_u32 %s, %s, %d' % (sr(S_T1), sr(S_OFF), q * 4096))
            for p in range(4):
                e('buffer_load_dwordx4 %s, %s, %s offen offset:%d lds' % (vr(V_DV[p & 1] if kv else V_DK[p]), sr(S_SRDV if kv else S_SRDK, 4), sr(S_T1), p * 1024))

    for j in range(5):
        e('v_mov_b32 %s, 0xff800000' % vr(V_L[j]))
        for x in range(4):
            e('v_mov_b32 %s, 0' % vr(NM + 4 * j + x))
    e('s_lshl_b32 %s, %s, 18' % (sr(S_OFF), sr(S_HI)))
    e('s_mov_b32 %s, 16' % sr(S_CNT))
    a.label('L_sp1')
    tile_dma(0)
    e('s_waitcnt vmcnt(0)')
    for i in range(16):
        e(kread(i, 0))
    for j in range(5):
        for t in qk(j, 0):
            e(t)
        for x in range(8):
            e('v_max3_f32 %s, %s, %s, %s' % (vr(V_L[j]), vr(V_L[j]), vr(SB[0] + 2 * x), vr(SB[0] + 2 * x + 1)))
    e('s_add_u32 %s, %s, %d' % (sr(S_OFF), sr(S_OFF), SLOT))
    e('s_sub_u32 %s, %s, 1' % (sr(S_CNT), sr(S_CNT)))
    e('s_cmp_lg_u32 %s, 0' % sr(S_CNT))
    e('s_cbranch_scc1 L_sp1')
    for j in range(5):
        t, u = vr(V_L[j]), vr(V_U)
        e('v_mov_b32 %s, %s' % (u, t))
        e('v_permlane16_swap_b32 %s, %s' % (t, u))
        e('v_max_f32 %s, %s, %s' % (t, t, u))
        e('v_mov_b32 %s, %s' % (u, t))
        e('v_permlane32_swap_b32 %s, %s' % (t, u))
        for x in range(4):
            e('v_min_f32 %s, -%s, -%s' % (vr(NM + 4 * j + x), t, u))
        e('v_mov_b32 %s, 0' % t)
    for x in range(80):
        e('v_mov_b64 %s, 0' % vr(OB + 2 * x, 2))
    e('s_lshl_b32 %s, %s, 18' % (sr(S_OFF), sr(S_HI)))
    e('s_mov_b32 %s, 16' % sr(S_CNT))
    a.label('L_sp2')
    tile_dma(0)
    tile_dma(1)
    e('s_waitcnt vmcnt(0)')
    for i in range(16):
        e(kread(i, 0))
    for i in range(16):
        for t in range(2):
            e(vread(i, t, 0))
    for j in range(5):
        for t in qk(j, 0):
            e(t)
        for _, t in softmax_ops(j, 0):
            e(t)
        for t in pv(j, 0):
            e(t)
    e('s_add_u32 %s, %s, %d' % (sr(S_OFF), sr(S_OFF), SLOT))
    e('s_sub_u32 %s, %s, 1' % (sr(S_CNT), sr(S_CNT)))
    e('s_cmp_lg_u32 %s, 0' % sr(S_CNT))
    e('s_cbranch_scc1 L_sp2')
    for j in range(5):
        for t in epi_head(j, 0)[:7] + epi_pack(j) + epi_write(j) + epi_fetch(j) + epi_store(j, S_SRDO, ''):
            e(t)
    e('s_waitcnt vmcnt(0)')
    a.label('L_sp_next')
    e('s_add_u32 %s, %s, 1' % (sr(S_HI), sr(S_HI)))
    e('s_cmp_lt_u32 %s, 2' % sr(S_HI))
    e('s_cbranch_scc1 L_sp_head')
    e('s_branch L_fin')


DOC = '''; Fused attention forward, generated by a script (one workgroup per CU, two consecutive heads each).
;    use v_mfma_f32_16x16x32_bf16; Q is pre-multiplied by log2(e)/sqrt(d).
'''


def gen(opt):
    global PVB
    PVB = opt.get('pvb', False)
    a = Asm()
    a.lag = opt.get('lag', 8)
    a.drop = opt.get('dropall', ())
    e = a.e
    diag = opt.get('diag', False)
    stA = opt.get('sta', ' sc1')
    stP = opt.get('stp', ' sc1')
    stB = opt.get('stb', ' sc1')
    park = opt.get('park', True)

    def stamp(i, h, real=False):
        if diag:
            b = (64 if h == 0 else 48) + 2 * i
            e('%s s[%d:%d]' % ('s_memrealtime' if real else 's_memtime', b, b + 1))
            e('s_waitcnt lgkmcnt(0)')

    def dump_stamps():
        if not diag:
            return
        e('s_lshl_b32 s80, s2, 2')
        e('s_add_u32 s80, s80, %s' % sr(S_W))
        e('s_lshl_b32 s80, s80, 7')
        e('v_mov_b32 v31, s80')
        for q in range(8):
            for x in range(4):
                e('v_mov_b32 v%d, s%d' % (252 + x, (64 if q < 4 else 32) + 4 * q + x))
            e('s_mov_b64 exec, 1')
            e('global_store_dwordx4 v31, v[252:255], s[84:85] offset:%d' % (16 * q))
            e('s_mov_b64 exec, -1')
            e('s_nop 1')

    e('s_cmp_ge_u32 s2, 256')
    e('s_cbranch_scc1 L_end')
    e('s_load_dwordx8 s[4:11], s[0:1], 0')
    if diag:
        e('s_load_dwordx2 s[84:85], s[0:1], 40')
        stamp(0, 0)
        stamp(6, 0, True)
    e('v_lshrrev_b32 v244, 6, v0')
    e('v_and_b32 v0, 63, v0')
    e('v_readfirstlane_b32 %s, v244' % sr(S_W))
    cpf = opt.get('cpf', 128 if opt.get('w3', True) else 64)
    if cpf:
        e('s_getpc_b64 s[46:47]')
        a.label('L_pc')
        e('s_lshr_b32 %s, s2, 3' % sr(S_T0))
        e('s_lshl_b32 %s, %s, 2' % (sr(S_T0), sr(S_T0)))
        e('s_add_u32 %s, %s, %s' % (sr(S_T0), sr(S_T0), sr(S_W)))
        e('s_and_b32 %s, %s, %d' % (sr(S_T0), sr(S_T0), cpf - 1))
        e('s_lshl_b32 %s, %s, 10' % (sr(S_T0), sr(S_T0)))
        e('s_min_u32 %s, %s, L_slow-L_pc-512' % (sr(S_T0), sr(S_T0)))
        e('v_lshl_add_u32 v245, v0, 4, %s' % sr(S_T0))
        e('global_load_dwordx4 %s, v245, s[46:47] ; @cpf' % ar(A_SP, 4))
    e('v_and_b32 v244, 15, v0')
    e('v_lshrrev_b32 v245, 4, v0')
    e('s_lshl_b32 %s, %s, 12' % (sr(S_WB), sr(S_W)))
    e('s_mul_i32 %s, %s, %d' % (sr(S_OW), sr(S_W), 80 * 256))
    e('s_lshl_b32 %s, %s, 13' % (sr(S_SW), sr(S_W)))
    e('s_add_u32 %s, %s, %d' % (sr(S_SW), sr(S_SW), STAGE))
    e('s_lshl_b32 %s, s2, 1' % sr(S_HEAD))
    e('s_mul_i32 %s, %s, %d' % (sr(S_T0), sr(S_HEAD), QH))
    e('s_lshl_b32 %s, %s, 18' % (sr(S_T2), sr(S_HEAD)))
    for srd in (S_SRDK, S_SRDV, S_SRDQ, S_SRDO, S_SRDO2):
        e('s_mov_b32 %s, 0x00020000' % sr(srd + 3))
    e('v_lshlrev_b32 v246, 8, v245')
    for p in range(4):
        e('v_add_u32 v247, %d, v245' % (4 * p))
        e('v_xor_b32 v247, v247, v244')
        e('v_lshl_add_u32 %s, v247, 4, v246' % vr(V_DK[p]))
    e('s_waitcnt lgkmcnt(0)')
    set_srd(a, S_SRDQ, 4, S_T0, QH)
    QAREA = [(S_WB, 2 * SLOT), (S_WB, 3 * SLOT), (S_WB, VRING + 2 * SLOT), (S_WB, VRING + 3 * SLOT), (S_SW, 0)]
    qd = [qdma(opt, j, QAREA[j][0], QAREA[j][1], 'q%d' % j) for j in range(5)]
    nyield = opt.get('yield', 7)
    if nyield:
        e('s_getreg_b32 s33, hwreg(HW_REG_XCC_ID)')
        e('s_and_b32 s33, s33, 1')
    ycount = [0]

    def gate(ops, n):
        if n >= nyield:
            return ops
        ycount[0] += 1
        L = 'L_y%d' % ycount[0]
        return ['s_cmp_lg_u32 s33, 0', 's_cbranch_scc1 ' + L, 's_waitcnt vmcnt(%d)' % opt.get('ydepth', 0), L + ':'] + ops
    for t in qd[0]:
        e(t)
    e('s_mov_b32 %s, %s' % (sr(S_OFF), sr(S_WB)))
    set_srd(a, S_SRDK, 6, S_T2, 2 * KH)
    st = [dma_ops(opt, n & 3, 's%d' % n, split=True) for n in range(6)]
    for t in (gate(st[0][:5], 0) if opt.get('prog', True) else qd[1]):
        e(t)
    for p in range(2):
        e('v_add_u32 v247, %d, v245' % (4 * p))
        e('v_lshlrev_b32 v247, 1, v247')
        e('v_xor_b32 v247, v247, v244')
        e('v_lshl_add_u32 %s, v247, 4, v246' % vr(V_DV[p]))
    c = f32bits(128 ** -0.5 * math.log2(math.e))
    e('s_mov_b32 %s, 0x%08x' % (sr(S_C), c))
    e('s_mov_b32 %s, 0x%08x' % (sr(S_C + 1), c))
    e('s_mov_b32 %s, 0x%08x' % (sr(S_THR), f32bits(opt.get('thr', 2.0 ** 24))))
    e('s_mov_b32 %s, 0xffff0000' % sr(S_MASK))
    if opt.get('rot', 0):
        e('s_lshr_b32 %s, s2, 4' % sr(S_R))
        e('s_xor_b32 %s, %s, s2' % (sr(S_R), sr(S_R)))
        e('s_and_b32 %s, %s, 15' % (sr(S_R), sr(S_R)))
        e('s_lshl_b32 %s, %s, 14' % (sr(S_R), sr(S_R)))
        e('s_mov_b32 %s, 0' % sr(S_N))
        e('s_mov_b32 %s, %s' % (sr(S_OFF), sr(S_R)))
    if opt.get('trace'):
        e('s_mov_b32 s88, 0')
        e('v_mov_b32 v29, 0')
    set_srd(a, S_SRDV, 8, S_T2, 2 * KH)
    for js in range(4):
        e('v_add_u32 v247, %d, v245' % (4 * js))
        e('v_xor_b32 v247, v247, v244')
        e('v_lshlrev_b32 v247, 4, v247')
        e('v_lshl_add_u32 %s, v244, 8, v247' % vr(V_KA[js]))
    e('v_mul_u32_u24 v247, 272, v244')
    e('v_lshl_add_u32 v247, v245, 3, v247')
    e('v_add_u32 %s, %s, v247' % (vr(V_PW), sr(S_SW)))
    e('v_mul_u32_u24 v247, 272, v245')
    e('v_lshl_add_u32 v247, v244, 4, v247')
    e('v_add_u32 %s, %s, v247' % (vr(V_PR), sr(S_SW)))
    e('v_lshlrev_b32 %s, 4, v0' % vr(V_LIN))
    e('v_and_b32 v247, 1, v245')
    e('v_lshlrev_b32 v247, 5, v247')
    e('v_lshl_add_u32 v247, v244, 8, v247')
    e('v_lshrrev_b32 v248, 1, v245')
    e('v_lshl_add_u32 %s, v248, 4, v247' % vr(V_OS))
    e('v_bfe_u32 v246, v0, 2, 2')
    e('v_lshl_add_u32 v247, v245, 2, v246')
    e('v_and_b32 v248, 7, v247')
    e('v_lshlrev_b32 v247, 8, v247')
    e('v_and_b32 v249, 3, v0')
    e('v_lshl_add_u32 v247, v249, 3, v247')
    e('v_add_u32 v247, %d, v247' % VRING)
    for db in range(8):
        e('v_xor_b32 v249, %d, v248' % db)
        e('v_lshl_add_u32 %s, v249, 5, v247' % vr(V_VA[db]))
    set_srd(a, S_SRDO, 10, S_T0, QH)
    e('s_add_u32 %s, %s, %d' % (sr(S_T0), sr(S_T0), QH))
    set_srd(a, S_SRDO2, 10, S_T0, QH)
    e('s_mov_b64 %s, 0' % sr(S_FLAG[0], 2))
    e('s_mov_b64 %s, 0' % sr(S_FLAG[1], 2))
    e('s_mov_b32 %s, 4' % sr(S_CNT))
    e('s_mov_b32 %s, 0' % sr(S_ENDV))
    e('s_mov_b64 vcc, 0')
    if opt.get('touch'):
        e('v_lshlrev_b32 v247, 16, v0')
        e('s_cmp_lg_u32 %s, 0' % sr(S_W))
        e('s_cbranch_scc1 L_notouch')
        e('buffer_load_dword %s, v247, %s, 0 offen nt' % (ar(A_SP + 8), sr(S_SRDK, 4)))
        e('buffer_load_dword %s, v247, %s, 0 offen nt' % (ar(A_SP + 9), sr(S_SRDV, 4)))
        e('buffer_load_dword %s, v247, %s, 0 offen nt' % (ar(A_SP + 10), sr(S_SRDO, 4)))
        e('buffer_load_dword %s, v247, %s, 0 offen nt' % (ar(A_SP + 11), sr(S_SRDO2, 4)))
        a.label('L_notouch')
        a.vmq = a.vmq[:-4]
    QA = 252
    e('s_add_u32 %s, %s, %d' % (sr(S_T2), sr(S_WB), VRING))
    QWIN = [(S_WB, 2 * SLOT), (S_WB, 3 * SLOT), (S_T2, 2 * SLOT), (S_T2, 3 * SLOT), (S_SW, 0)]
    RAW = OB + 128

    def qprep(j, dma):
        return (qaddr(QA, QWIN[j][0]) + ['WAITVM q%d' % j] + qread(lambda js: vr(RAW + 4 * js, 4), QA, QWIN[j][1])
                + dma + prescale(j, RAW, False))

    bad = []
    w3 = opt.get('w3', True)

    def main(skip4):
        m_begin = a.mark()
        opt['_auto'] = skip4
        a.drop = tuple(opt.get('dropall', ())) + (('#4',) if skip4 else ())
        ab = opt.get('lead', 'ab') == 'ab'
        lead = 2 if ab else opt['lead']
        W1, W2 = 8 * (lead - 1), 8 * (lead - 1) + 4
        if opt.get('prog', True):
            for t in gate(qd[1], 1):
                e(t)
            stamp(1, 0)
            for t in qprep(0, gate(st[0][5:], 2)):
                e(t)
            e('WAITVM s0k')
            e('s_barrier')
            for i in range(16):
                e(kread(i, 0))
            for t in gate(qd[2], 3):
                e(t)
            m_head = a.mark()
            stamp(2, 0)
            for t in max_one(0):
                e(t)
            stamp(3, 0)
            mf, gaps = body_tables(opt, 0, cold=True, fresh=True, dma=False, kpre=False)
            block(gaps, 15, qprep(1, gate(qd[3], 4)) + max_one(1))
            block(gaps, 47, ['WAITVM s0', 's_barrier'] + [vread(i, t, 0) for i in range(16) for t in range(2)] + gate(qd[4], 5))
            block(gaps, 63, qprep(2, gate(st[1][:5], 6)) + max_one(2))
            block(gaps, 95, qprep(3, gate(st[1][5:], 7)) + max_one(3))
            block(gaps, 127, qprep(4, gate(st[2][:5], 8)) + max_one(4) + ZERO4P)
            block(gaps, 143, ['WAITVM s1k', 's_barrier'])
            place(gaps, [kread(i, 1) for i in range(16)], [144 + i for i in range(16)])
            place(gaps, st[2][5:], [144, 146, 150, 154, 158, 158])
            emit_body(a, opt, mf, gaps, None, auto=True)
            set_srd(a, S_SRDQ, 4, S_T0, QH)
            if lead == 2:
                e('WAITVM s1')
                e('s_barrier')
                e('s_branch L_b1')
            else:
                mf, gaps = body_tables(opt, 1, dma=False)
                block(gaps, 15, ['WAITVM s1', 's_barrier'])
                place(gaps, st[3] + st[4][:5], [16, 19, 31, 43, 55, 59, 67, 79, 91, 103, 107, 111, 115, 131, 143, 155])
                emit_body(a, opt, mf, gaps, 'WAITVM s2', auto=True)
                mf, gaps = body_tables(opt, 2, dma=False)
                place(gaps, st[4][5:] + st[5], [3, 7, 19, 31, 43, 47, 51, 55, 67, 79, 91, 95, 103, 115, 131, 143, 147])
                gaps[99].append((1, 's_sub_u32 %s, %s, 1' % (sr(S_CNT), sr(S_CNT))))
                emit_body(a, opt, mf, gaps, 'WAITVM s3', auto=True)
                e('s_branch L_b3')
        else:
            for t in qd[2]:
                e(t)
            later = {0: qd[3], 1: qd[4], 2: st[0][:5], 3: st[0][5:], 4: st[1][:5]}
            for j in range(5):
                for t in qprep(j, later[j]):
                    e(t)
                if j == 0:
                    stamp(1, 0)
            set_srd(a, S_SRDQ, 4, S_T0, QH)
            e('WAITVM s0k')
            e('s_barrier')
            for i in range(16):
                e(kread(i, 0))
            for t in st[1][5:]:
                e(t)
            m_head = a.mark()
            stamp(2, 0)
            max_phase(a, ZERO4, 'a')
            e('WAITVM s0')
            e('s_barrier')
            stamp(3, 0)
            mf, gaps = body_tables(opt, 0, cold=True, fresh=True, dma=False)
            place(gaps, [vread(i, t, 0) for i in range(16) for t in range(2)], [(i if i < 7 else 33 + (i - 7)) for i in range(16) for t in range(2)])
            place(gaps, st[2], [7, 8, 10, 12, 14, 43, 47, 51, 55, 59, 63])
            if lead == 3:
                place(gaps, st[3], [79, 83, 87, 91, 95, 99, 103, 107, 111, 115, 119])
            emit_body(a, opt, mf, gaps, 'WAITVM s1', auto=True)
            e('s_branch L_b1')
        m_first_end = a.mark()

        marks = {}

        def seed_pend(slot):
            a.pend = [(Ins(kread(i, slot)).wr, a.nmfma - (31 - 2 * i)) for i in range(16)]

        late = opt.get('trace') or max(opt.get('dgaps', DG)) > 98
        cg = 155 if late else 103
        FREE0 = [1, 3, 7, 11, 15]
        variants = []
        a.raw('.p2align 6')
        def qvariant(gaps, rd, dm):
            if rd is not None:
                place(gaps, qaddr(T0, S_SW), [0, 0, 1, 1])
                place(gaps, qread(lambda js: ar(A_SP + 16 * rd[1] + 4 * js, 4), T0, rd[0] * 4096), [2, 2, 4, 5])
                block(gaps, 13, prescale(rd[1] + 2, A_SP + 16 * rd[1], True, dst=A_SP + 16 * rd[1]))
            spots = [3, 7, 11, 15] if sum(len(x[2]) for x in dm) == 4 else [3, 9, 15]
            for j, half, pcs in dm:
                q = qdma(opt, j, S_SW, half * 4096, 'q')
                mine = [spots.pop(0) for _ in pcs]
                if rd is not None and half == rd[0]:
                    assert mine[0] > 13
                place(gaps, q[:2], [mine[0] - 1, mine[0] - 1])
                place(gaps, [q[2 + x] for x in pcs], mine)

        smooth = opt.get('smooth', True)
        smoothb = opt.get('smoothb', False)
        if smooth:
            QP = {2: (None, [(2, 0, [0, 1, 2])]), 4: (None, [(2, 0, [3]), (3, 1, [0, 1])]), 6: ((0, 0), [(3, 1, [2, 3]), (4, 0, [0])]),
                  8: ((1, 1), [(4, 0, [1, 2, 3])]), 10: ((0, 2), [(0, 1, [0, 1, 2])]), 12: (None, [(0, 1, [3]), (1, 0, [0, 1])]),
                  14: (None, [(1, 0, [2, 3])])}
            QHALF = [1, 0]
        else:
            A4 = [0, 1, 2, 3]
            QP = {4: (None, [(2, 0, A4)]), 6: ((0, 0), [(3, 1, A4)]), 8: ((1, 1), [(4, 0, A4)]), 10: ((0, 2), [(1, 1, A4)]), 12: (None, [(0, 0, A4)])}
            QHALF = [0, 1]

        for name, rd, dm, j in (('qa3',) + QP[4] + (0,), ('qa2',) + QP[8] + (0,), ('qb3', 0, 0, 2), ('qb2', 0, 0, 3), ('qb1', 0, 0, 4), ('qa1',) + QP[12] + (0,)):
            a.label('L_' + name)
            m0_ = a.mark()
            seed_pend(0)
            mf, gaps = body_tables(opt, 0)
            if name[1] == 'a':
                qvariant(gaps, rd, dm)
            elif park and smoothb:
                q = epi_store(j, S_SRDO, stP, parked=True)
                place(gaps, [q[0], q[3], q[4]], [1, 3, 11])
            elif park:
                place(gaps, epi_store(j, S_SRDO, stP, parked=True), FREE0)
            emit_body(a, opt, mf, gaps, None, lo=0, hi=16)
            if name != 'qa1':
                e('s_branch L_b0g1')
            variants.append((m0_, a.mark()))
        for slot in range(4):
            mf, gaps = body_tables(opt, slot)
            bw = 's_waitcnt vmcnt(%d)' % W1
            if slot == 0 and park and opt.get('exactw', True):
                bw = 's_waitcnt vmcnt(%d)' % W2
            if slot == 1:
                gaps[99].append((1, 's_sub_u32 %s, %s, 2' % (sr(S_T2), sr(S_CNT))))
                gaps[cg].append((1, 's_cmp_le_u32 %s, 1' % sr(S_T2)))
            if slot == 2:
                gaps[99].append((1, 's_sub_u32 %s, %s, 1' % (sr(S_CNT), sr(S_CNT))))
                if opt.get('exactw', True) and not smooth:
                    gaps[127 if late else 103].append((1, 's_cmp_le_u32 %s, 1' % sr(S_T2)))
                    bw = ['s_waitcnt vmcnt(%d)' % W2, 's_cbranch_scc1 L_w2', 's_waitcnt vmcnt(%d)' % W1, 'L_w2:']
                gaps[155].append((1, 's_cmp_eq_u32 %s, %s' % (sr(S_CNT), sr(S_ENDV))))
            if slot == 3:
                gaps[99].append((1, 's_sub_u32 %s, %s, %s' % (sr(S_T2), sr(S_CNT), sr(S_ENDV))))
                gaps[cg].append((1, 's_cmp_eq_u32 %s, 3' % sr(S_T2)))
            if ab:
                L = 'L_wd%d' % slot
                wb = (18 if smoothb else 20) if (slot == 0 and park) else 16
                bw = ['s_waitcnt vmcnt(%d)' % wb, 's_cbranch_vccnz ' + L]
                if smooth and slot in (0, 2):
                    bw += ['s_waitcnt vmcnt(10)']
                elif slot == 0:
                    bw += ['s_waitcnt vmcnt(12)']
                elif slot == 2:
                    bw += ['s_waitcnt vmcnt(12)', 's_cbranch_scc1 ' + L, 's_waitcnt vmcnt(8)']
                else:
                    bw += ['s_waitcnt vmcnt(8)']
                bw += [L + ':']
                if opt.get('strict', True):
                    bw = ['s_waitcnt vmcnt(%d)' % (10 if slot in (0, 2) else 8)]
            marks[slot] = a.mark()
            if slot != 0:
                a.label('L_b%d' % slot)
                seed_pend(slot)
                emit_body(a, opt, mf, gaps, None, lo=0, hi=16)
            a.label('L_b%dg1' % slot)
            a.pend = []
            emit_body(a, opt, mf, gaps, bw, lo=16)
            if slot == 1:
                e('s_cbranch_vccz L_qlds' if smooth else 's_cbranch_scc1 L_qlds')
                if smoothb:
                    e('s_cmp_lg_u32 %s, 11' % sr(S_CNT))
                    e('s_cbranch_scc1 L_qn')
            if slot == 2:
                e('s_cbranch_scc1 L_exit')
        marks[4] = a.mark()
        e('s_cbranch_vccnz L_backb')
        e('s_cbranch_scc1 L_qa3')
        e('s_cmp_eq_u32 %s, 2' % sr(S_T2))
        e('s_cbranch_scc1 L_qa2')
        e('s_branch L_qa1')
        a.label('L_backb')
        e('s_cbranch_scc1 L_qb3')
        e('s_cmp_eq_u32 %s, 2' % sr(S_T2))
        e('s_cbranch_scc1 L_qb2')
        e('s_branch L_qb1')
        a.label('L_qlds')
        if smooth:
            e('s_cbranch_scc0 L_qm41')
        e('s_cmp_eq_u32 %s, 2' % sr(S_CNT))
        e('s_cbranch_scc1 L_qm2')
        v2 = []
        for name, rd, dm in [('qm3',) + QP[6], ('qm2',) + QP[10]] + ([('qm4',) + QP[2], ('qm1',) + QP[14]] if smooth else []):
            if name == 'qm4':
                a.label('L_qm41')
                e('s_cmp_eq_u32 %s, 1' % sr(S_CNT))
                e('s_cbranch_scc1 L_qm1')
            a.label('L_' + name)
            m0_ = a.mark()
            seed_pend(2)
            mf, gaps = body_tables(opt, 2)
            qvariant(gaps, rd, dm)
            emit_body(a, opt, mf, gaps, None, lo=0, hi=16)
            e('s_branch L_b2g1')
            v2.append((m0_, a.mark()))
        if smoothb:
            a.label('L_qn')
            e('s_cmp_eq_u32 %s, 13' % sr(S_CNT))
            e('s_cbranch_scc1 L_qn3')
            e('s_cmp_eq_u32 %s, 12' % sr(S_CNT))
            e('s_cbranch_scc1 L_qn4')
            for j in (2, 3, 4):
                a.label('L_qn%d' % j)
                m0_ = a.mark()
                seed_pend(2)
                mf, gaps = body_tables(opt, 2)
                q = epi_store(j, S_SRDO, stP, parked=True)
                place(gaps, q[:3], [1, 3, 11])
                emit_body(a, opt, mf, gaps, None, lo=0, hi=16)
                e('s_branch L_b2g1')
                v2.append((m0_, a.mark()))
        a.label('L_exit')
        e('s_cbranch_vccnz L_lastb')
        m_last = a.mark()
        stamp(4, 0)
        seed_pend(3)
        a.vmq = ['ql'] * 2 + ['n1'] * 8 + ['n2'] * (8 * (lead - 2))
        mf, gaps = body_tables(opt, 3, dma=not ab)
        if ab:
            kw = dma_ops(opt, 0, 'kw')
            if opt.get('spreadb', False):
                place(gaps, dma_ops(opt, 0, 'kv'), [1, 5, 19, 28, 43, 45, 55, 63, 75, 83, 85])
                place(gaps, kw[:5], [107, 111, 127, 143, 155])
            else:
                place(gaps, dma_ops(opt, 0, 'kv'), [1, 5, 9, 13, 19, 21, 27, 35, 43, 51, 53])
                place(gaps, kw, [55, 59, 75, 83, 99, 101, 107, 115, 123, 131, 133])
        place(gaps, qaddr(QA, S_SW), [3, 7, 11, 15])
        for j in range(2):
            place(gaps, qread(lambda js: ar(A_Q + 16 * j + 4 * js, 4), QA, QHALF[j] * 4096), [32 * j + 16] * 4)
            if j == 1:
                gaps[47].append((8, 'WAITVM ql'))
            block(gaps, 32 * j + 29, prescale(j, A_Q + 16 * j, True))
        for j in (2, 3, 4):
            if opt.get('early', True):
                block(gaps, 32 * j + 17, ['v_accvgpr_mov_b32 %s, %s' % (ar(A_Q + 16 * j + x), ar(A_SP + 16 * (j - 2) + x)) for x in range(16)])
            else:
                block(gaps, 32 * j + 17, prescale(j, A_SP + 16 * (j - 2), True))
        for j in range(3):
            k = 48 + 32 * j + 17
            pk_ = park and j >= 2
            fill(gaps, epi_head(j, 0), k - 19, k - 1, 2)
            block(gaps, k, epi_pack(j))
            epi_spread(gaps, j, k, S_SRDO, stA, pk_, tight=(j == 2), nostore=(j == 1 and opt.get('late1', True)))
        fill(gaps, epi_head(3, 0), 142, 159, 2)
        emit_body(a, opt, mf, gaps, 'WAITVM n1', auto=True)
        if lead == 2:
            a.vmq = ['n2' if t == 'kv' else t for t in a.vmq]
        stamp(5, 0)
        stamp(7, 0, True)
        for x in (0, 1, 2):
            stamp(x, 1)
        stamp(6, 1, True)
        e('s_mov_b32 %s, 14' % sr(S_CNT))
        e('s_mov_b32 %s, 10' % sr(S_ENDV))
        e('s_mov_b64 vcc, -1')
        p3, p3n = epi_pack(3), epi_pack(3, False)
        max_phase(a, p3n[:24] + p3n[24:32] + p3[20:], 'b')
        stamp(3, 1)
        mf, gaps = body_tables(opt, 0, fresh=True, dma=not (ab and opt.get('spreadb', False)))
        if ab and opt.get('spreadb', False):
            place(gaps, kw[5:], [1, 3, 15, 31, 46, 46])
            place(gaps, dma_ops(opt, 0, 'kx'), [51, 55, 67, 79, 91, 95, 103, 114, 123, 139, 141])
        epi_spread(gaps, 3, -1, S_SRDO, stA, park)
        if opt.get('late1', True):
            place(gaps, epi_store(1, S_SRDO, stA), [0, 1, 16, 32, 46])
        fill(gaps, epi_head(4, 0), 22, 46, 2)
        block(gaps, 47, epi_pack(4))
        epi_spread(gaps, 4, 47, S_SRDO, stA, park)
        block(gaps, 115, ZERO4P)
        emit_body(a, opt, mf, gaps, 'WAITVM n2', auto=True)
        e('s_branch L_b1')
        m_last_end = a.mark()
        a.label('L_lastb')
        m_lastb = a.mark()
        stamp(4, 1)
        seed_pend(3)
        a.vmq = ['n2'] * 8
        a.drop = tuple(a.drop) + tuple(opt.get('droplast', ()))
        mf, gaps = body_tables(opt, 3, dma=False, kpre=False)
        for j in range(3):
            k = 48 + 32 * j + 17
            fill(gaps, epi_head(j, 1), k - 19, k - 1, 2)
            block(gaps, k, epi_pack(j))
            epi_spread(gaps, j, k, S_SRDO2, stB, False, tight=(j == 2))
        fill(gaps, epi_head(3, 1), 142, 159, 2)
        gaps[3].append((1, 's_waitcnt vmcnt(0)'))
        emit_body(a, opt, mf, gaps, [], auto=True)
        sb4 = (3 + 4) & 1
        sm = [t for g, t in softmax_ops(4, sb4) if 128 + W0 + g >= 160]
        p3 = epi_pack(3)
        F = []
        for t in sm:
            F.append((t, 0))
            if t.startswith('v_exp'):
                F.append((p3.pop(0), 0))
        F += [(t, 0) for t in p3]
        n4 = len(F)
        h4 = epi_head(4, 1)
        for x, t in enumerate(epi_write(3)):
            F += [(t, 0), (h4[x], 0)]
        F += [(h4[8], 0)] + [(t, 0) for t in epi_fetch(3)]
        merge(a, [(t, n4) for t in pv(4, sb4)], F)
        d4 = epi_direct(4, S_SRDO2, stB)
        for t in epi_store(3, S_SRDO2, stB) + d4:
            e(t)
        stamp(5, 1)
        stamp(7, 1, True)
        m_end = a.mark()
        I = a.ins
        B = lambda s: I[marks[s]:marks[s + 1]]
        seq = I[m_head:m_first_end] + (B(1) + B(2) if (lead == 2 or not opt.get('prog', True)) else []) + B(3)
        for lo, hi in variants:
            seq += I[lo:hi] + B(0) + B(1) + B(2) + B(3)
        bad.extend(check_hazards(seq, 'loop'))
        g1 = [k for k in range(marks[2], marks[3]) if I[k].text == 'L_b2g1:'][0]
        for lo, hi in v2:
            bad.extend(check_hazards(B(1) + I[lo:hi] + I[g1:marks[3]], 'mid'))
        bad.extend(check_hazards(B(2) + I[m_last:m_last_end] + B(1) + B(2) + I[m_lastb:m_end], 'edges'))
        print('body instrs: %d' % sum(1 for i in B(1) if i.kind != 'none'), file=sys.stderr)
        a.drop = ()
        if skip4:
            for i in a.ins[m_begin:]:
                i.text = re.sub(r'\bL_(\w+)', lambda m: m.group(0) + '_w3', i.text)

    if w3:
        e('s_cmp_eq_u32 %s, 3' % sr(S_W))
        e('s_cbranch_scc1 L_wave3')
    vmq0, pend0 = list(a.vmq), list(a.pend)
    main(False)
    if w3:
        e('s_branch L_slow')
        a.label('L_wave3')
        a.vmq, a.pend = list(vmq0), list(pend0)
        main(True)
    m_end = a.mark()
    a.label('L_slow')
    slow_path(a, opt)
    a.label('L_fin')
    if opt.get('dbg'):
        e('s_cmp_ge_u32 s2, 4')
        e('s_cbranch_scc1 L_end')
        e('s_cmp_lg_u32 %s, 0' % sr(S_W))
        e('s_cbranch_scc1 L_end')
        e('s_load_dwordx2 s[82:83], s[0:1], 32')
        e('s_waitcnt lgkmcnt(0)')
        vals = ['s_sub_u32 s80, s62, s76', 's_sub_u32 s80, s72, s64', 's_sub_u32 s80, s56, s54', 's_sub_u32 s80, s58, s64']
        for n, t in enumerate(vals):
            e(t)
            e('v_mov_b32 v%d, s80' % (252 + n))
        e('s_lshl_b32 s80, s2, 4')
        e('v_mov_b32 v31, s80')
        e('s_mov_b64 exec, 1')
        e('global_store_dwordx4 v31, v[252:255], s[82:83]')
    else:
        dump_stamps()
    if opt.get('trace'):
        e('s_lshl_b32 s80, s80, 1')
        e('s_add_u32 s80, s80, 131072')
        e('v_lshl_add_u32 v31, v0, 2, s80')
        e('global_store_dword v31, v29, s[84:85]')
    a.label('L_end')
    e('s_endpgm')

    I = a.ins
    sl = I[m_end:]
    bad += check_hazards(sl + sl, 'slow')
    for b in bad[:8]:
        print('HAZARD', b, file=sys.stderr)
    assert not bad or opt.get('nocheck')
    print('total %d' % len(I), file=sys.stderr)

    hdr = open('cdna_kernels/%s.s.ref' % NAME).read().split('\n')
    out = '\n'.join(hdr[:9]) + '\n'
    out += '; @launch grid=(256,1,1) block=(256,1,1) lds=%d\n' % LDS_BYTES
    out += DOC
    out += '.amdgcn_target "amdgcn-amd-amdhsa--gfx950"\n.text\n.globl %s_kernel\n.p2align 8\n.type %s_kernel,@function\n%s_kernel:\n' % (NAME, NAME, NAME)
    out += a.text()
    out += '''.section .rodata,"a"
.p2align 6
.amdhsa_kernel %s_kernel
  .amdhsa_next_free_vgpr 512
  .amdhsa_next_free_sgpr 102
  .amdhsa_accum_offset 256
  .amdhsa_group_segment_fixed_size 0
  .amdhsa_kernarg_size 48
  .amdhsa_user_sgpr_count 2
  .amdhsa_user_sgpr_kernarg_segment_ptr 1
  .amdhsa_system_sgpr_workgroup_id_x 1
.end_amdhsa_kernel
''' % NAME
    return out


if __name__ == '__main__':
    opt = {}
    outp = sys.argv[1]
    for kv in sys.argv[2:]:
        k, v = kv.split('=', 1)
        try:
            v = eval(v)
        except Exception:
            pass
        opt[k] = v
    open(outp, 'w').write(gen(opt))
```

```python
import sys, struct, math, re
from asmlib import Asm, Ins, check_hazards

NAME = 'standalone__mha_softmax__near_ridge'
LDS_BYTES = 163840
QH = 304 * 256
KH = 1024 * 256
VRING = 65536
SLOT = 16384

V_KA = [1, 2, 3, 4]
V_VA = [5, 6, 7, 8, 9, 10, 11, 12]
V_DK = [13, 14, 15, 16]
V_DV = [17, 18]
V_L = [19, 20, 21, 22, 23]
V_OS = 27
V_PW, V_PR, V_LIN = 24, 25, 26
V_R, V_U = 28, 30
OB = 32
NM = 192
SB = (212, 228)
T0 = 244
A_Q, A_K, A_V, A_SP = 0, 80, 144, 208
S_SRDK, S_SRDV, S_SRDQ, S_SRDO = 12, 16, 20, 24
S_OFF, S_WB, S_CNT, S_HI, S_W = 28, 29, 30, 31, 32
S_C, S_THR, S_MASK = 34, 36, 37
S_FLAG = (38, 90)
S_ENDV = 40
S_T0, S_T1, S_T2 = 41, 42, 43
S_HEAD = 44
S_QW, S_SW, S_OW, S_SO = 98, 99, 100, 101
S_N, S_R = 33, 45
S_SRDO2 = 92


def f32bits(x):
    return struct.unpack('<I', struct.pack('<f', x))[0]


def vr(b, n=1):
    return 'v%d' % b if n == 1 else 'v[%d:%d]' % (b, b + n - 1)


def ar(b, n=1):
    return 'a%d' % b if n == 1 else 'a[%d:%d]' % (b, b + n - 1)


def sr(b, n=1):
    return 's%d' % b if n == 1 else 's[%d:%d]' % (b, b + n - 1)


MF = 'v_mfma_f32_16x16x32_bf16'
ALAG = 0


def qk(j, sb):
    out = []
    for kt in range(4):
        d = vr(SB[sb] + 4 * kt, 4)
        for js in range(4):
            c = vr(NM + 4 * j, 4) if js == 0 else d
            out.append('%s %s, %s, %s, %s' % (MF, d, ar(A_K + 16 * kt + 4 * js, 4), ar(A_Q + 16 * j + 4 * js, 4), c))
    return out


PVB = False


def pv(j, sb, czero=False):
    out = []
    for i in range(16):
        db, ks = ((i & 7), i >> 3) if PVB else (i >> 1, i & 1)
        o = vr(OB + 32 * j + 4 * db, 4)
        c = '0' if (czero and ks == 0) else o
        out.append('%s %s, %s, %s, %s' % (MF, o, ar(A_V + 32 * ks + 4 * db, 4), vr(SB[sb] + 4 * ks, 4), c))
    return out


def kread(i, slot):
    kt, js = i >> 2, i & 3
    return 'ds_read_b128 %s, %s offset:%d' % (ar(A_K + 4 * i, 4), vr(V_KA[js]), slot * SLOT + kt * 4096)


def vread(i, t, slot):
    db, ks = ((i & 7), i >> 3) if PVB else (i >> 1, i & 1)
    return 'ds_read_b64_tr_b16 %s, %s offset:%d' % (ar(A_V + 32 * ks + 4 * db + 2 * t, 2), vr(V_VA[db]), slot * SLOT + ks * 8192 + t * 4096)


def softmax_ops(j, sb, first=False):
    s = SB[sb]
    l = V_L[j]
    ops = []
    for r in range(16):
        ops.append((2 * r - ALAG, 'v_exp_f32 %s, %s' % (vr(s + r), vr(s + r))))
        if first and r == 0:
            ops.append((2 * r + 1, 'v_mov_b32 %s, %s' % (vr(l), vr(s + r))))
        else:
            ops.append((2 * r + 1, 'v_add_f32 %s, %s, %s' % (vr(l), vr(l), vr(s + r))))
        if r & 1:
            k = r >> 1
            ops.append((2 * r + 1, 'v_cvt_pk_bf16_f32 %s, %s, %s' % (vr(s + k), vr(s + 2 * k), vr(s + 2 * k + 1))))
    ops.sort(key=lambda x: x[0])
    return ops


def dma_ops(opt, slot, tag, split=False):
    fl = opt.get('dmaflags', ' nt')
    o = ['s_and_b32 m0, %s, 0xffff' % sr(S_OFF)]
    for p in range(4):
        o.append('buffer_load_dwordx4 %s, %s, %s offen offset:%d%s lds ; @%s' % (vr(V_DK[p]), sr(S_SRDK, 4), sr(S_OFF), p * 1024, fl, tag + 'k'))
    o.append('s_add_u32 m0, m0, %d' % VRING if not split else 's_add_u32 m0, %s, %d' % (sr(S_WB), VRING + slot * SLOT))
    for p in range(4):
        o.append('buffer_load_dwordx4 %s, %s, %s offen offset:%d%s lds ; @%s' % (vr(V_DV[p & 1]), sr(S_SRDV, 4), sr(S_OFF), p * 1024, fl, tag))
    if opt.get('rot', 0):
        o.append('s_add_u32 %s, %s, %d\n    s_xor_b32 %s, %s, %s' % (sr(S_N), sr(S_N), SLOT, sr(S_OFF), sr(S_N), sr(S_R)))
    else:
        o.append('s_add_u32 %s, %s, %d' % (sr(S_OFF), sr(S_OFF), SLOT))
    return o


def qdma(opt, j, m0base, m0off, tag, qw=None):
    fl = opt.get('qflags', ' nt')
    o = ['s_add_u32 m0, %s, %d' % (sr(m0base), m0off),
         's_add_u32 %s, %s, %d' % (sr(S_T1), sr(S_OW), j * 4096)]
    for p in range(4):
        o.append('buffer_load_dwordx4 %s, %s, %s offen offset:%d%s lds ; @%s' % (vr(V_DK[p]), sr(S_SRDQ, 4), sr(S_T1), p * 1024, fl, tag))
    return o


def qaddr(base, sg):
    return ['v_add_u32 %s, %s, %s' % (vr(base + js), sr(sg), vr(V_KA[js])) for js in range(4)]


def qread(dst, base, off):
    return ['ds_read_b128 %s, %s offset:%d' % (dst(js), vr(base + js), off) for js in range(4)]


def prescale(j, src, from_acc, dst=None):
    o = []
    for g in range(4):
        T = [T0 + 2 * x for x in range(4)]
        for x in range(4):
            if from_acc:
                o.append('v_accvgpr_read_b32 %s, %s' % (vr(T[x] + 1), ar(src + 4 * g + x)))
        for x in range(4):
            s = vr(T[x] + 1) if from_acc else vr(src + 4 * g + x)
            o.append('v_lshlrev_b32 %s, 16, %s' % (vr(T[x]), s))
        for x in range(4):
            s = vr(T[x] + 1) if from_acc else vr(src + 4 * g + x)
            o.append('v_and_b32 %s, %s, %s' % (vr(T[x] + 1), sr(S_MASK), s))
        for x in range(4):
            o.append('v_pk_mul_f32 %s, %s, %s' % (vr(T[x], 2), vr(T[x], 2), sr(S_C, 2)))
        for x in range(4):
            o.append('v_cvt_pk_bf16_f32 %s, %s, %s' % (vr(T[x]), vr(T[x]), vr(T[x] + 1)))
        for x in range(4):
            o.append('v_accvgpr_write_b32 %s, %s' % (ar((A_Q + 16 * j if dst is None else dst) + 4 * g + x), vr(T[x])))
    return o


STAGE = 131072


def epi_head(j, h):
    l, u = vr(V_L[j]), vr(V_U)
    return ['v_mov_b32 %s, %s' % (u, l),
            'v_permlane16_swap_b32 %s, %s' % (l, u),
            'v_add_f32 %s, %s, %s' % (l, l, u),
            'v_mov_b32 %s, %s' % (u, l),
            'v_permlane32_swap_b32 %s, %s' % (l, u),
            'v_add_f32 %s, %s, %s' % (l, l, u),
            'v_rcp_f32 %s, %s' % (vr(V_R), l),
            'v_cmp_nge_f32 %s, %s, %s' % (sr(96, 2), sr(S_THR), l),
            's_or_b64 %s, %s, %s' % (sr(S_FLAG[h], 2), sr(S_FLAG[h], 2), sr(96, 2))]


def epi_pack(j, pk=True):
    o = []
    b0 = OB + 32 * j
    for h in range(2):
        if pk:
            for x in range(8):
                b = b0 + 16 * h + 2 * x
                o.append('v_pk_mul_f32 %s, %s, %s op_sel_hi:[1,0]' % (vr(b, 2), vr(b, 2), vr(V_R, 2)))
        else:
            for x in range(16):
                b = b0 + 16 * h + x
                o.append('v_mul_f32 %s, %s, %s' % (vr(b), vr(V_R), vr(b)))
        for db in range(4 * h, 4 * h + 4):
            b = b0 + 4 * db
            o.append('v_cvt_pk_bf16_f32 %s, %s, %s' % (vr(b), vr(b), vr(b + 1)))
            o.append('v_cvt_pk_bf16_f32 %s, %s, %s' % (vr(b + 1), vr(b + 2), vr(b + 3)))
    return o


def epi_write(j):
    return ['ds_write_b64 %s, %s offset:%d' % (vr(V_PW), vr(OB + 32 * j + 4 * db, 2), db * 32) for db in range(8)]


def epi_direct(j, srd, fl):
    o = ['s_add_u32 %s, %s, %d' % (sr(S_SO), sr(S_OW), j * 4096)]
    for mm in range(2):
        for m in (2 * mm, 2 * mm + 1):
            b = OB + 32 * j + 8 * m
            for x in range(4):
                o.append('v_pk_mul_f32 %s, %s, %s op_sel_hi:[1,0]' % (vr(b + 2 * x, 2), vr(b + 2 * x, 2), vr(V_R, 2)))
        for m in (2 * mm, 2 * mm + 1):
            b = OB + 32 * j + 8 * m
            for x in range(4):
                o.append('v_cvt_pk_bf16_f32 %s, %s, %s' % (vr(b + x), vr(b + 2 * x), vr(b + 2 * x + 1)))
        for m in (2 * mm, 2 * mm + 1):
            b = OB + 32 * j + 8 * m
            o.append('v_permlane16_swap_b32 %s, %s' % (vr(b), vr(b + 2)))
            o.append('v_permlane16_swap_b32 %s, %s' % (vr(b + 1), vr(b + 3)))
        for m in (2 * mm, 2 * mm + 1):
            b = OB + 32 * j + 8 * m
            o.append('buffer_store_dwordx4 %s, %s, %s, %s offen offset:%d%s ; @st' % (vr(b, 4), vr(V_OS), sr(srd, 4), sr(S_SO), m * 64, fl))
    return o


def epi_spread(gaps, j, k, srd, fl, parked, tight=False, nostore=False):
    e1 = fill(gaps, epi_write(j), k + 1, k + (16 if tight else 20), 2)
    e2 = fill(gaps, epi_fetch(j, parked), e1, k + (21 if tight else 30), 1)
    if not parked and not nostore:
        fill(gaps, epi_store(j, srd, fl), e2 + (3 if tight else 4), k + (30 if tight else 52), 1 if tight else 2)


def odst(j, parked):
    return (lambda p: ar(A_SP + 16 * (j - 2) + 4 * p, 4)) if parked else (lambda p: vr(OB + 32 * j + 4 * p, 4))


def epi_fetch(j, parked=False):
    return ['ds_read_b128 %s, %s offset:%d' % (odst(j, parked)(p), vr(V_PR), p * 1088) for p in range(4)]


def epi_store(j, srd, fl, parked=False):
    o = ['s_add_u32 %s, %s, %d' % (sr(S_SO), sr(S_OW), j * 4096)]
    for p in range(4):
        o.append('buffer_store_dwordx4 %s, %s, %s, %s offen offset:%d%s ; @st' % (odst(j, parked)(p), vr(V_LIN), sr(srd, 4), sr(S_SO), p * 1024, fl))
    return o


def _tag4(fn, pairs=False):
    def w(j, *args, **kw):
        r = fn(j, *args, **kw)
        if j != 4:
            return r
        if pairs:
            return [(g, t + ' ; #4') for g, t in r]
        return [t if (t.startswith('buffer') and keep_vmem) or t.endswith(':') else (t + ' #4' if ';' in t else t + ' ; #4') for t in r]
    keep_vmem = False
    return w


qk, pv, prescale, epi_head, epi_pack, epi_write, epi_fetch, epi_direct = [_tag4(f) for f in (qk, pv, prescale, epi_head, epi_pack, epi_write, epi_fetch, epi_direct)]
softmax_ops = _tag4(softmax_ops, True)


def is_mem(t):
    return t.startswith(('ds_', 'buffer_', 'global_'))


def cost(t):
    if t.startswith(('v_exp', 'v_rcp')):
        return 8
    if t.endswith(':'):
        return 0
    return 4


def merge(a, mfmas, fillers, budget=8):
    fi = 0
    for mi, (text, need) in enumerate(mfmas):
        while fi < need:
            assert fillers[fi][1] <= mi, (fillers[fi], mi, text)
            a.e(fillers[fi][0])
            fi += 1
        a.e(text)
        b = budget
        valu = False
        while fi < len(fillers) and fillers[fi][1] <= mi + 1 and b > 0:
            t = fillers[fi][0]
            if is_mem(t) and valu:
                break
            if cost(t) > b and b < budget:
                break
            valu = valu or t.startswith('v_')
            b -= cost(t)
            a.e(t)
            fi += 1
    while fi < len(fillers):
        a.e(fillers[fi][0])
        fi += 1


def set_srd(a, srd, ptr, off, size):
    a.e('s_add_u32 %s, %s, %s' % (sr(srd), sr(ptr), sr(off)))
    a.e('s_addc_u32 %s, %s, 0' % (sr(srd + 1), sr(ptr + 1)))
    a.e('s_and_b32 %s, %s, 0xffff' % (sr(srd + 1), sr(srd + 1)))
    a.e('s_mov_b32 %s, %s' % (sr(srd + 2), size))


W0 = 14
DG = [51, 55, 63, 67, 71, 75, 79, 83, 87, 91, 95]


def body_tables(opt, slot, cold=False, fresh=False, dma=True, kpre=True):
    sbuf = lambda u: (slot + u) & 1
    groups = [qk(0, sbuf(0)), pv(4, sbuf(-1)), qk(1, sbuf(1)), pv(0, sbuf(0), fresh), qk(2, sbuf(2)), pv(1, sbuf(1), fresh),
              qk(3, sbuf(3)), pv(2, sbuf(2), fresh), qk(4, sbuf(4)), pv(3, sbuf(3), fresh)]
    mf = [t for g in groups for t in g]
    gaps = [[] for _ in range(160)]
    if cold:
        for k in range(16, 32):
            mf[k] = None
    else:
        for g, t in softmax_ops(4, sbuf(-1)):
            k = 128 + W0 + g - 160
            if k >= 0:
                gaps[k].append((5, t))
    for u in range(5):
        for g, t in softmax_ops(u, sbuf(u), fresh):
            k = 32 * u + W0 + g
            if cold and u == 0 and k < 32:
                k = min(7 + g, 15)
            if k < 160:
                gaps[k].append((5, t))
    for i in range(16):
        if not cold:
            for t in range(2):
                gaps[17 + 2 * i].append((0, vread(i, t, slot)))
        if kpre:
            gaps[129 + 2 * i].append((0, kread(i, (slot + 1) & 3)))
    if dma and not opt.get('nodma'):
        dg = opt.get('dgaps', DG)
        if cold:
            place(gaps, dma_ops(opt, 2, 's2'), [7, 8, 10, 12, 14, 43, 47, 51, 55, 59, 63])
            dg = [79, 83, 87, 91, 95, 99, 103, 107, 111, 115, 119]
        place(gaps, dma_ops(opt, 0, 'kv'), dg)
    return mf, gaps


def place(gaps, ops, where):
    assert len(ops) == len(where), (len(ops), len(where))
    for k, t in zip(where, ops):
        gaps[k].append((0 if is_mem(t) else (1 if t.startswith('s_') else 6), t))


def load(g):
    return sum(cost(t) for _, t in g)


def fill(gaps, ops, lo, hi, mind=1):
    k = lo
    for n, t in enumerate(ops):
        last = hi - mind * (len(ops) - 1 - n)
        c = [x for x in range(k, last + 1) if load(gaps[x]) + cost(t) <= 8]
        room = (last - k) // max(1, 1)
        if c and c[0] - k <= max(3, 0) + (hi - lo) // len(ops):
            k = c[0]
        assert k <= last, (t, k, last)
        gaps[k].append((0 if is_mem(t) else (1 if t.startswith('s_') and not t.startswith('s_or') else 6), t))
        k += mind
    return k


def block(gaps, k, ops):
    for t in ops:
        gaps[k].append((7, t))


def emit_body(a, opt, mf, gaps, barwait, auto=False, lo=0, hi=160):
    a.auto_nop = auto or opt.get('_auto', False)
    for k in range(lo, hi):
        if mf[k] is not None:
            a.e(mf[k])
        for _, t in sorted(gaps[k], key=lambda x: x[0]):
            a.e(t)
        if opt.get('pace') and k % opt['pace'] == 0 and mf[k] is not None:
            a.e('s_nop 3')
        if k == 127 and barwait is not None:
            for t in (barwait if isinstance(barwait, list) else [barwait]):
                a.e(t)
            if opt.get('trace'):
                a.e('s_memrealtime s[86:87]')
                a.e('s_waitcnt lgkmcnt(0)')
                a.e('s_mov_b32 s89, m0')
                a.e('s_mov_b32 m0, s88')
                a.e('v_writelane_b32 v29, s86, m0')
                a.e('s_mov_b32 m0, s89')
                a.e('s_add_u32 s88, s88, 1')
            a.e('s_barrier')
    a.auto_nop = True


def max_phase(a, extra, tag):
    M, F = [], []
    extra = list(extra)
    take = lambda n: [extra.pop(0) for _ in range(min(n, len(extra)))]
    for j in range(5):
        d = vr(NM + 4 * j, 4)
        for js in range(4):
            M.append(('%s %s, %s, %s, %s' % (MF, d, ar(A_K + 4 * js, 4), ar(A_Q + 16 * j + 4 * js, 4), '0' if js == 0 else d), 0))
    for t in take(12):
        F.append((t, 0))
    for j in range(5):
        n = NM + 4 * j
        t, u = vr(T0 + 2 * j), vr(T0 + 2 * j + 1)
        ops = ['v_max3_f32 %s, %s, %s, %s' % (t, vr(n), vr(n + 1), vr(n + 2)),
               'v_max_f32 %s, %s, %s' % (t, t, vr(n + 3)),
               'v_mov_b32 %s, %s' % (u, t)] + take(2) + [
               'v_permlane16_swap_b32 %s, %s' % (t, u),
               'v_max_f32 %s, %s, %s' % (t, t, u),
               'v_mov_b32 %s, %s' % (u, t)] + take(2) + [
               'v_permlane32_swap_b32 %s, %s' % (t, u)]
        ops += ['v_min_f32 %s, -%s, -%s' % (vr(n + x), t, u) for x in range(4)]
        for o in ops:
            F.append((o, min(4 * j + 7, 20)))
    merge(a, M, F)
    for t in extra:
        a.e(t)
    a.e('s_cmp_lg_u32 %s, 3' % sr(S_W))
    a.e('s_cbranch_scc1 L_nd%s' % tag)
    for x in range(4):
        a.e('v_mov_b32 %s, 0x%08x' % (vr(NM + 16 + x), f32bits(-1e30)))
    a.label('L_nd%s' % tag)
    a.e('s_nop 1')


def max_one(j):
    n = NM + 4 * j
    d = vr(n, 4)
    t, u = vr(T0), vr(T0 + 1)
    o = ['%s %s, %s, %s, %s' % (MF, d, ar(A_K + 4 * js, 4), ar(A_Q + 16 * j + 4 * js, 4), '0' if js == 0 else d) for js in range(4)]
    o += ['v_max3_f32 %s, %s, %s, %s' % (t, vr(n), vr(n + 1), vr(n + 2)),
          'v_max_f32 %s, %s, %s' % (t, t, vr(n + 3)),
          'v_mov_b32 %s, %s' % (u, t),
          'v_permlane16_swap_b32 %s, %s' % (t, u),
          'v_max_f32 %s, %s, %s' % (t, t, u),
          'v_mov_b32 %s, %s' % (u, t),
          'v_permlane32_swap_b32 %s, %s' % (t, u)]
    o += ['v_min_f32 %s, -%s, -%s' % (vr(n + x), t, u) for x in range(4)]
    if j == 4:
        o += ['s_cmp_lg_u32 %s, 3' % sr(S_W), 's_cbranch_scc1 L_nda']
        o += ['v_mov_b32 %s, 0x%08x' % (vr(NM + 16 + x), f32bits(-1e30)) for x in range(4)]
        o += ['L_nda:', 's_nop 1']
    return o


ZERO4 = ['v_mov_b32 %s, 0 ; #4' % vr(OB + 128 + x) for x in range(32)]
ZERO4P = ['v_mov_b64 %s, 0 ; #4' % vr(OB + 128 + 2 * x, 2) for x in range(16)]


def slow_path(a, opt):
    e = a.e
    a.pend = []
    a.vmq = []
    e('s_or_b64 %s, %s, %s' % (sr(96, 2), sr(S_FLAG[0], 2), sr(S_FLAG[1], 2)))
    e('s_cbranch_scc0 L_fin')
    e('s_waitcnt vmcnt(0) lgkmcnt(0)')
    e('s_lshl_b32 %s, %s, 2' % (sr(S_T0), sr(S_WB)))
    for x in V_KA + V_VA:
        e('v_add_u32 %s, %s, %s' % (vr(x), sr(S_T0), vr(x)))
    e('s_mov_b32 %s, %s' % (sr(S_WB), sr(S_T0)))
    e('s_mov_b32 %s, 0' % sr(S_HI))
    a.label('L_sp_head')
    e('s_cmp_eq_u32 %s, 0' % sr(S_HI))
    e('s_cselect_b64 %s, %s, %s' % (sr(96, 2), sr(S_FLAG[0], 2), sr(S_FLAG[1], 2)))
    e('s_cmp_eq_u64 %s, 0' % sr(96, 2))
    e('s_cbranch_scc1 L_sp_next')
    e('s_lshl_b32 %s, s2, 1' % sr(S_T1))
    e('s_add_u32 %s, %s, %s' % (sr(S_T1), sr(S_T1), sr(S_HI)))
    e('s_mul_i32 %s, %s, %d' % (sr(S_T1), sr(S_T1), QH))
    set_srd(a, S_SRDQ, 4, S_T1, QH)
    set_srd(a, S_SRDO, 10, S_T1, QH)
    for j in range(5):
        for t in qdma(opt, j, S_WB, 0, 'q', qw=S_OW):
            e(t)
        e('s_waitcnt vmcnt(0)')
        for t in qread(lambda js: vr(OB + 4 * js, 4), V_KA[0], 0) + prescale(j, OB, False):
            e(t)

    def tile_dma(kv):
        for q in range(4):
            e('s_add_u32 m0, %s, %d' % (sr(S_WB), (VRING if kv else 0) + q * 4096))
            e('s_add_u32 %s, %s, %d' % (sr(S_T1), sr(S_OFF), q * 4096))
            for p in range(4):
                e('buffer_load_dwordx4 %s, %s, %s offen offset:%d lds' % (vr(V_DV[p & 1] if kv else V_DK[p]), sr(S_SRDV if kv else S_SRDK, 4), sr(S_T1), p * 1024))

    for j in range(5):
        e('v_mov_b32 %s, 0xff800000' % vr(V_L[j]))
        for x in range(4):
            e('v_mov_b32 %s, 0' % vr(NM + 4 * j + x))
    e('s_lshl_b32 %s, %s, 18' % (sr(S_OFF), sr(S_HI)))
    e('s_mov_b32 %s, 16' % sr(S_CNT))
    a.label('L_sp1')
    tile_dma(0)
    e('s_waitcnt vmcnt(0)')
    for i in range(16):
        e(kread(i, 0))
    for j in range(5):
        for t in qk(j, 0):
            e(t)
        for x in range(8):
            e('v_max3_f32 %s, %s, %s, %s' % (vr(V_L[j]), vr(V_L[j]), vr(SB[0] + 2 * x), vr(SB[0] + 2 * x + 1)))
    e('s_add_u32 %s, %s, %d' % (sr(S_OFF), sr(S_OFF), SLOT))
    e('s_sub_u32 %s, %s, 1' % (sr(S_CNT), sr(S_CNT)))
    e('s_cmp_lg_u32 %s, 0' % sr(S_CNT))
    e('s_cbranch_scc1 L_sp1')
    for j in range(5):
        t, u = vr(V_L[j]), vr(V_U)
        e('v_mov_b32 %s, %s' % (u, t))
        e('v_permlane16_swap_b32 %s, %s' % (t, u))
        e('v_max_f32 %s, %s, %s' % (t, t, u))
        e('v_mov_b32 %s, %s' % (u, t))
        e('v_permlane32_swap_b32 %s, %s' % (t, u))
        for x in range(4):
            e('v_min_f32 %s, -%s, -%s' % (vr(NM + 4 * j + x), t, u))
        e('v_mov_b32 %s, 0' % t)
    for x in range(80):
        e('v_mov_b64 %s, 0' % vr(OB + 2 * x, 2))
    e('s_lshl_b32 %s, %s, 18' % (sr(S_OFF), sr(S_HI)))
    e('s_mov_b32 %s, 16' % sr(S_CNT))
    a.label('L_sp2')
    tile_dma(0)
    tile_dma(1)
    e('s_waitcnt vmcnt(0)')
    for i in range(16):
        e(kread(i, 0))
    for i in range(16):
        for t in range(2):
            e(vread(i, t, 0))
    for j in range(5):
        for t in qk(j, 0):
            e(t)
        for _, t in softmax_ops(j, 0):
            e(t)
        for t in pv(j, 0):
            e(t)
    e('s_add_u32 %s, %s, %d' % (sr(S_OFF), sr(S_OFF), SLOT))
    e('s_sub_u32 %s, %s, 1' % (sr(S_CNT), sr(S_CNT)))
    e('s_cmp_lg_u32 %s, 0' % sr(S_CNT))
    e('s_cbranch_scc1 L_sp2')
    for j in range(5):
        for t in epi_head(j, 0)[:7] + epi_pack(j) + epi_write(j) + epi_fetch(j) + epi_store(j, S_SRDO, ''):
            e(t)
    e('s_waitcnt vmcnt(0)')
    a.label('L_sp_next')
    e('s_add_u32 %s, %s, 1' % (sr(S_HI), sr(S_HI)))
    e('s_cmp_lt_u32 %s, 2' % sr(S_HI))
    e('s_cbranch_scc1 L_sp_head')
    e('s_branch L_fin')


DOC = '''; Fused attention forward, generated by a script (one workgroup per CU, two consecutive heads each).
;    use v_mfma_f32_16x16x32_bf16; Q is pre-multiplied by log2(e)/sqrt(d).
'''


def gen(opt):
    global PVB
    PVB = opt.get('pvb', False)
    a = Asm()
    a.lag = opt.get('lag', 8)
    a.drop = opt.get('dropall', ())
    e = a.e
    diag = opt.get('diag', False)
    stA = opt.get('sta', ' sc1')
    stP = opt.get('stp', ' sc1')
    stB = opt.get('stb', ' sc1')
    park = opt.get('park', True)

    def stamp(i, h, real=False):
        if diag:
            b = (64 if h == 0 else 48) + 2 * i
            e('%s s[%d:%d]' % ('s_memrealtime' if real else 's_memtime', b, b + 1))
            e('s_waitcnt lgkmcnt(0)')

    def dump_stamps():
        if not diag:
            return
        e('s_lshl_b32 s80, s2, 2')
        e('s_add_u32 s80, s80, %s' % sr(S_W))
        e('s_lshl_b32 s80, s80, 7')
        e('v_mov_b32 v31, s80')
        for q in range(8):
            for x in range(4):
                e('v_mov_b32 v%d, s%d' % (252 + x, (64 if q < 4 else 32) + 4 * q + x))
            e('s_mov_b64 exec, 1')
            e('global_store_dwordx4 v31, v[252:255], s[84:85] offset:%d' % (16 * q))
            e('s_mov_b64 exec, -1')
            e('s_nop 1')

    e('s_cmp_ge_u32 s2, 256')
    e('s_cbranch_scc1 L_end')
    e('s_load_dwordx8 s[4:11], s[0:1], 0')
    if diag:
        e('s_load_dwordx2 s[84:85], s[0:1], 40')
        stamp(0, 0)
        stamp(6, 0, True)
    e('v_lshrrev_b32 v244, 6, v0')
    e('v_and_b32 v0, 63, v0')
    e('v_readfirstlane_b32 %s, v244' % sr(S_W))
    cpf = opt.get('cpf', 128 if opt.get('w3', True) else 64)
    if cpf:
        e('s_getpc_b64 s[46:47]')
        a.label('L_pc')
        e('s_lshr_b32 %s, s2, 3' % sr(S_T0))
        e('s_lshl_b32 %s, %s, 2' % (sr(S_T0), sr(S_T0)))
        e('s_add_u32 %s, %s, %s' % (sr(S_T0), sr(S_T0), sr(S_W)))
        e('s_and_b32 %s, %s, %d' % (sr(S_T0), sr(S_T0), cpf - 1))
        e('s_lshl_b32 %s, %s, 10' % (sr(S_T0), sr(S_T0)))
        e('s_min_u32 %s, %s, L_slow-L_pc-512' % (sr(S_T0), sr(S_T0)))
        e('v_lshl_add_u32 v250, v0, 4, %s' % sr(S_T0))
        if opt.get('cpfearly', True) or not opt.get('touch2', False):
            e('global_load_dwordx4 %s, v250, s[46:47] ; @cpf' % ar(A_SP, 4))
    e('v_and_b32 v244, 15, v0')
    e('v_lshrrev_b32 v245, 4, v0')
    e('s_lshl_b32 %s, %s, 12' % (sr(S_WB), sr(S_W)))
    e('s_mul_i32 %s, %s, %d' % (sr(S_OW), sr(S_W), 80 * 256))
    e('s_lshl_b32 %s, %s, 13' % (sr(S_SW), sr(S_W)))
    e('s_add_u32 %s, %s, %d' % (sr(S_SW), sr(S_SW), STAGE))
    e('s_lshl_b32 %s, s2, 1' % sr(S_HEAD))
    e('s_mul_i32 %s, %s, %d' % (sr(S_T0), sr(S_HEAD), QH))
    e('s_lshl_b32 %s, %s, 18' % (sr(S_T2), sr(S_HEAD)))
    for srd in (S_SRDK, S_SRDV, S_SRDQ, S_SRDO, S_SRDO2):
        e('s_mov_b32 %s, 0x00020000' % sr(srd + 3))
    if opt.get('yield', 7):
        e('s_getreg_b32 s33, hwreg(HW_REG_XCC_ID)')
        e('s_and_b32 s33, s33, 1')
    e('v_lshlrev_b32 v246, 8, v245')
    for p in range(4):
        e('v_add_u32 v247, %d, v245' % (4 * p))
        e('v_xor_b32 v247, v247, v244')
        e('v_lshl_add_u32 %s, v247, 4, v246' % vr(V_DK[p]))
    e('s_waitcnt lgkmcnt(0)')
    set_srd(a, S_SRDQ, 4, S_T0, QH)
    QAREA = [(S_WB, 2 * SLOT), (S_WB, 3 * SLOT), (S_WB, VRING + 2 * SLOT), (S_WB, VRING + 3 * SLOT), (S_SW, 0)]
    qd = [qdma(opt, j, QAREA[j][0], QAREA[j][1], 'q%d' % j) for j in range(5)]
    nyield = opt.get('yield', 7)
    ycount = [0]

    def gate(ops, n):
        if n >= nyield:
            return ops
        ycount[0] += 1
        L = 'L_y%d' % ycount[0]
        return ['s_cmp_lg_u32 s33, 0', 's_cbranch_scc1 ' + L, 's_waitcnt vmcnt(%d)' % opt.get('ydepth', 0), L + ':'] + ops
    for t in qd[0]:
        e(t)
    e('s_mov_b32 %s, %s' % (sr(S_OFF), sr(S_WB)))
    set_srd(a, S_SRDK, 6, S_T2, 2 * KH)
    if opt.get('touch2', False):
        e('buffer_load_dword %s, off, %s, %s' % (ar(A_SP + 8), sr(S_SRDK, 4), sr(S_OFF)))
        set_srd(a, S_SRDV, 8, S_T2, 2 * KH)
        e('buffer_load_dword %s, off, %s, %s' % (ar(A_SP + 9), sr(S_SRDV, 4), sr(S_OFF)))
        if cpf and not opt.get('cpfearly', True):
            e('global_load_dwordx4 %s, v250, s[46:47] ; @cpf' % ar(A_SP, 4))
    st = [dma_ops(opt, n & 3, 's%d' % n, split=True) for n in range(6)]
    for t in (gate(st[0][:5], 0) if opt.get('prog', True) else qd[1]):
        e(t)
    for p in range(2):
        e('v_add_u32 v247, %d, v245' % (4 * p))
        e('v_lshlrev_b32 v247, 1, v247')
        e('v_xor_b32 v247, v247, v244')
        e('v_lshl_add_u32 %s, v247, 4, v246' % vr(V_DV[p]))
    c = f32bits(128 ** -0.5 * math.log2(math.e))
    e('s_mov_b32 %s, 0x%08x' % (sr(S_C), c))
    e('s_mov_b32 %s, 0x%08x' % (sr(S_C + 1), c))
    e('s_mov_b32 %s, 0x%08x' % (sr(S_THR), f32bits(opt.get('thr', 2.0 ** 64))))
    e('s_mov_b32 %s, 0xffff0000' % sr(S_MASK))
    if opt.get('rot', 0):
        e('s_lshr_b32 %s, s2, 4' % sr(S_R))
        e('s_xor_b32 %s, %s, s2' % (sr(S_R), sr(S_R)))
        e('s_and_b32 %s, %s, 15' % (sr(S_R), sr(S_R)))
        e('s_lshl_b32 %s, %s, 14' % (sr(S_R), sr(S_R)))
        e('s_mov_b32 %s, 0' % sr(S_N))
        e('s_mov_b32 %s, %s' % (sr(S_OFF), sr(S_R)))
    if opt.get('trace'):
        e('s_mov_b32 s88, 0')
        e('v_mov_b32 v29, 0')
    if not opt.get('touch2', False):
        set_srd(a, S_SRDV, 8, S_T2, 2 * KH)
    for js in range(4):
        e('v_add_u32 v247, %d, v245' % (4 * js))
        e('v_xor_b32 v247, v247, v244')
        e('v_lshlrev_b32 v247, 4, v247')
        e('v_lshl_add_u32 %s, v244, 8, v247' % vr(V_KA[js]))
    e('v_mul_u32_u24 v247, 272, v244')
    e('v_lshl_add_u32 v247, v245, 3, v247')
    e('v_add_u32 %s, %s, v247' % (vr(V_PW), sr(S_SW)))
    e('v_mul_u32_u24 v247, 272, v245')
    e('v_lshl_add_u32 v247, v244, 4, v247')
    e('v_add_u32 %s, %s, v247' % (vr(V_PR), sr(S_SW)))
    e('v_lshlrev_b32 %s, 4, v0' % vr(V_LIN))
    e('v_and_b32 v247, 1, v245')
    e('v_lshlrev_b32 v247, 5, v247')
    e('v_lshl_add_u32 v247, v244, 8, v247')
    e('v_lshrrev_b32 v248, 1, v245')
    e('v_lshl_add_u32 %s, v248, 4, v247' % vr(V_OS))
    e('v_bfe_u32 v246, v0, 2, 2')
    e('v_lshl_add_u32 v247, v245, 2, v246')
    e('v_and_b32 v248, 7, v247')
    e('v_lshlrev_b32 v247, 8, v247')
    e('v_and_b32 v249, 3, v0')
    e('v_lshl_add_u32 v247, v249, 3, v247')
    e('v_add_u32 v247, %d, v247' % VRING)
    for db in range(8):
        e('v_xor_b32 v249, %d, v248' % db)
        e('v_lshl_add_u32 %s, v249, 5, v247' % vr(V_VA[db]))
    set_srd(a, S_SRDO, 10, S_T0, QH)
    e('s_add_u32 %s, %s, %d' % (sr(S_T0), sr(S_T0), QH))
    set_srd(a, S_SRDO2, 10, S_T0, QH)
    e('s_mov_b64 %s, 0' % sr(S_FLAG[0], 2))
    e('s_mov_b64 %s, 0' % sr(S_FLAG[1], 2))
    e('s_mov_b32 %s, 4' % sr(S_CNT))
    e('s_mov_b32 %s, 0' % sr(S_ENDV))
    e('s_mov_b64 vcc, 0')
    if opt.get('touch'):
        e('v_lshlrev_b32 v247, 16, v0')
        e('s_cmp_lg_u32 %s, 0' % sr(S_W))
        e('s_cbranch_scc1 L_notouch')
        e('buffer_load_dword %s, v247, %s, 0 offen nt' % (ar(A_SP + 8), sr(S_SRDK, 4)))
        e('buffer_load_dword %s, v247, %s, 0 offen nt' % (ar(A_SP + 9), sr(S_SRDV, 4)))
        e('buffer_load_dword %s, v247, %s, 0 offen nt' % (ar(A_SP + 10), sr(S_SRDO, 4)))
        e('buffer_load_dword %s, v247, %s, 0 offen nt' % (ar(A_SP + 11), sr(S_SRDO2, 4)))
        a.label('L_notouch')
        a.vmq = a.vmq[:-4]
    QA = 252
    e('s_add_u32 %s, %s, %d' % (sr(S_T2), sr(S_WB), VRING))
    QWIN = [(S_WB, 2 * SLOT), (S_WB, 3 * SLOT), (S_T2, 2 * SLOT), (S_T2, 3 * SLOT), (S_SW, 0)]
    RAW = OB + 128

    def qprep(j, dma):
        return (qaddr(QA, QWIN[j][0]) + ['WAITVM q%d' % j] + qread(lambda js: vr(RAW + 4 * js, 4), QA, QWIN[j][1])
                + dma + prescale(j, RAW, False))

    bad = []
    w3 = opt.get('w3', True)

    def main(skip4):
        m_begin = a.mark()
        opt['_auto'] = skip4
        a.drop = tuple(opt.get('dropall', ())) + (('#4',) if skip4 else ())
        ab = opt.get('lead', 'ab') == 'ab'
        lead = 2 if ab else opt['lead']
        W1, W2 = 8 * (lead - 1), 8 * (lead - 1) + 4
        if opt.get('prog', True):
            for t in gate(qd[1], 1):
                e(t)
            stamp(1, 0)
            for t in qprep(0, gate(st[0][5:], 2)):
                e(t)
            e('WAITVM s0k')
            e('s_barrier')
            for i in range(16):
                e(kread(i, 0))
            for t in gate(qd[2], 3):
                e(t)
            m_head = a.mark()
            stamp(2, 0)
            for t in max_one(0):
                e(t)
            stamp(3, 0)
            mf, gaps = body_tables(opt, 0, cold=True, fresh=True, dma=False, kpre=False)
            block(gaps, 15, qprep(1, gate(qd[3], 4)) + max_one(1))
            block(gaps, 47, ['WAITVM s0', 's_barrier'] + [vread(i, t, 0) for i in range(16) for t in range(2)] + gate(qd[4], 5))
            block(gaps, 63, qprep(2, gate(st[1][:5], 6)) + max_one(2))
            block(gaps, 95, qprep(3, gate(st[1][5:], 7)) + max_one(3))
            block(gaps, 127, qprep(4, gate(st[2][:5], 8)) + max_one(4) + ZERO4P)
            block(gaps, 143, ['WAITVM s1k', 's_barrier'])
            place(gaps, [kread(i, 1) for i in range(16)], [144 + i for i in range(16)])
            place(gaps, st[2][5:], [144, 146, 150, 154, 158, 158])
            emit_body(a, opt, mf, gaps, None, auto=True)
            set_srd(a, S_SRDQ, 4, S_T0, QH)
            if lead == 2:
                e('WAITVM s1')
                e('s_barrier')
                e('s_branch L_b1')
            else:
                mf, gaps = body_tables(opt, 1, dma=False)
                block(gaps, 15, ['WAITVM s1', 's_barrier'])
                place(gaps, st[3] + st[4][:5], [16, 19, 31, 43, 55, 59, 67, 79, 91, 103, 107, 111, 115, 131, 143, 155])
                emit_body(a, opt, mf, gaps, 'WAITVM s2', auto=True)
                mf, gaps = body_tables(opt, 2, dma=False)
                place(gaps, st[4][5:] + st[5], [3, 7, 19, 31, 43, 47, 51, 55, 67, 79, 91, 95, 103, 115, 131, 143, 147])
                gaps[99].append((1, 's_sub_u32 %s, %s, 1' % (sr(S_CNT), sr(S_CNT))))
                emit_body(a, opt, mf, gaps, 'WAITVM s3', auto=True)
                e('s_branch L_b3')
        else:
            for t in qd[2]:
                e(t)
            later = {0: qd[3], 1: qd[4], 2: st[0][:5], 3: st[0][5:], 4: st[1][:5]}
            for j in range(5):
                for t in qprep(j, later[j]):
                    e(t)
                if j == 0:
                    stamp(1, 0)
            set_srd(a, S_SRDQ, 4, S_T0, QH)
            e('WAITVM s0k')
            e('s_barrier')
            for i in range(16):
                e(kread(i, 0))
            for t in st[1][5:]:
                e(t)
            m_head = a.mark()
            stamp(2, 0)
            max_phase(a, ZERO4, 'a')
            e('WAITVM s0')
            e('s_barrier')
            stamp(3, 0)
            mf, gaps = body_tables(opt, 0, cold=True, fresh=True, dma=False)
            place(gaps, [vread(i, t, 0) for i in range(16) for t in range(2)], [(i if i < 7 else 33 + (i - 7)) for i in range(16) for t in range(2)])
            place(gaps, st[2], [7, 8, 10, 12, 14, 43, 47, 51, 55, 59, 63])
            if lead == 3:
                place(gaps, st[3], [79, 83, 87, 91, 95, 99, 103, 107, 111, 115, 119])
            emit_body(a, opt, mf, gaps, 'WAITVM s1', auto=True)
            e('s_branch L_b1')
        m_first_end = a.mark()

        marks = {}

        def seed_pend(slot):
            a.pend = [(Ins(kread(i, slot)).wr, a.nmfma - (31 - 2 * i)) for i in range(16)]

        late = opt.get('trace') or max(opt.get('dgaps', DG)) > 98
        cg = 155 if late else 103
        FREE0 = [1, 3, 7, 11, 15]
        variants = []
        a.raw('.p2align 6')
        def qvariant(gaps, rd, dm):
            if rd is not None:
                place(gaps, qaddr(T0, S_SW), [0, 0, 1, 1])
                place(gaps, qread(lambda js: ar(A_SP + 16 * rd[1] + 4 * js, 4), T0, rd[0] * 4096), [2, 2, 4, 5])
                block(gaps, 13, prescale(rd[1] + 2, A_SP + 16 * rd[1], True, dst=A_SP + 16 * rd[1]))
            spots = [3, 7, 11, 15] if sum(len(x[2]) for x in dm) == 4 else [3, 9, 15]
            for j, half, pcs in dm:
                q = qdma(opt, j, S_SW, half * 4096, 'q')
                mine = [spots.pop(0) for _ in pcs]
                if rd is not None and half == rd[0]:
                    assert mine[0] > 13
                place(gaps, q[:2], [mine[0] - 1, mine[0] - 1])
                place(gaps, [q[2 + x] for x in pcs], mine)

        np_ = opt.get('np', 3)
        smooth = opt.get('smooth', True)
        smoothb = opt.get('smoothb', False)
        if smooth:
            QP = {2: (None, [(2, 0, [0, 1, 2])]), 4: (None, [(2, 0, [3]), (3, 1, [0, 1])]), 6: ((0, 0), [(3, 1, [2, 3]), (4, 0, [0])]),
                  8: ((1, 1), [(4, 0, [1, 2, 3])]), 10: ((0, 2), [(0, 1, [0, 1, 2])]), 12: (None, [(0, 1, [3]), (1, 0, [0, 1])]),
                  14: (None, [(1, 0, [2, 3])])}
            QHALF = [1, 0]
        else:
            A4 = [0, 1, 2, 3]
            QP = {4: (None, [(2, 0, A4)]), 6: ((0, 0), [(3, 1, A4)]), 8: ((1, 1), [(4, 0, A4)]), 10: ((0, 2), [(1, 1, A4)]), 12: (None, [(0, 0, A4)])}
            QHALF = [0, 1]

        for name, rd, dm, j in (('qa3',) + QP[4] + (0,), ('qa2',) + QP[8] + (0,), ('qb3', 0, 0, 2), ('qb2', 0, 0, 3), ('qb1', 0, 0, 4), ('qa1',) + QP[12] + (0,)):
            a.label('L_' + name)
            m0_ = a.mark()
            seed_pend(0)
            mf, gaps = body_tables(opt, 0)
            if name[1] == 'a':
                qvariant(gaps, rd, dm)
            elif park and np_ > 2:
                allst = [(jj, x) for jj in range(np_, 5) for x in range(4)]
                n3 = [len(allst) * x // 3 for x in range(4)]
                mine = allst[n3[j - 2]:n3[j - 1]]
                spots = [3, 9, 15]
                prev = None
                for (jj, x), k in zip(mine, spots):
                    q = epi_store(jj, S_SRDO, stP, parked=True)
                    if jj != prev:
                        place(gaps, [q[0]], [k - 1])
                    place(gaps, [q[1 + x]], [k])
                    prev = jj
            elif park and smoothb:
                q = epi_store(j, S_SRDO, stP, parked=True)
                place(gaps, [q[0], q[3], q[4]], [1, 3, 11])
            elif park:
                place(gaps, epi_store(j, S_SRDO, stP, parked=True), FREE0)
            emit_body(a, opt, mf, gaps, None, lo=0, hi=16)
            if name != 'qa1':
                e('s_branch L_b0g1')
            variants.append((m0_, a.mark()))
        for slot in range(4):
            mf, gaps = body_tables(opt, slot)
            bw = 's_waitcnt vmcnt(%d)' % W1
            if slot == 0 and park and opt.get('exactw', True):
                bw = 's_waitcnt vmcnt(%d)' % W2
            if slot == 1:
                gaps[99].append((1, 's_sub_u32 %s, %s, 2' % (sr(S_T2), sr(S_CNT))))
                gaps[cg].append((1, 's_cmp_le_u32 %s, 1' % sr(S_T2)))
            if slot == 2:
                gaps[99].append((1, 's_sub_u32 %s, %s, 1' % (sr(S_CNT), sr(S_CNT))))
                if opt.get('exactw', True) and not smooth:
                    gaps[127 if late else 103].append((1, 's_cmp_le_u32 %s, 1' % sr(S_T2)))
                    bw = ['s_waitcnt vmcnt(%d)' % W2, 's_cbranch_scc1 L_w2', 's_waitcnt vmcnt(%d)' % W1, 'L_w2:']
                gaps[155].append((1, 's_cmp_eq_u32 %s, %s' % (sr(S_CNT), sr(S_ENDV))))
            if slot == 3:
                gaps[99].append((1, 's_sub_u32 %s, %s, %s' % (sr(S_T2), sr(S_CNT), sr(S_ENDV))))
                gaps[cg].append((1, 's_cmp_eq_u32 %s, 3' % sr(S_T2)))
            if ab:
                L = 'L_wd%d' % slot
                wb = (18 if smoothb else 20) if (slot == 0 and park) else 16
                bw = ['s_waitcnt vmcnt(%d)' % wb, 's_cbranch_vccnz ' + L]
                if smooth and slot in (0, 2):
                    bw += ['s_waitcnt vmcnt(10)']
                elif slot == 0:
                    bw += ['s_waitcnt vmcnt(12)']
                elif slot == 2:
                    bw += ['s_waitcnt vmcnt(12)', 's_cbranch_scc1 ' + L, 's_waitcnt vmcnt(8)']
                else:
                    bw += ['s_waitcnt vmcnt(8)']
                bw += [L + ':']
                if opt.get('strict', True):
                    bw = ['s_waitcnt vmcnt(%d)' % (10 if slot in (((0,) if np_ == 2 else ()) if opt.get('nocatch', True) else (0, 2)) else 8)]
            marks[slot] = a.mark()
            if slot != 0:
                a.label('L_b%d' % slot)
                seed_pend(slot)
                emit_body(a, opt, mf, gaps, None, lo=0, hi=16)
            a.label('L_b%dg1' % slot)
            a.pend = []
            emit_body(a, opt, mf, gaps, bw, lo=16)
            if slot == 1:
                e('s_cbranch_vccz L_qlds' if smooth else 's_cbranch_scc1 L_qlds')
                if smoothb:
                    e('s_cmp_lg_u32 %s, 11' % sr(S_CNT))
                    e('s_cbranch_scc1 L_qn')
            if slot == 2:
                e('s_cbranch_scc1 L_exit')
        marks[4] = a.mark()
        e('s_cbranch_vccnz L_backb')
        e('s_cbranch_scc1 L_qa3')
        e('s_cmp_eq_u32 %s, 2' % sr(S_T2))
        e('s_cbranch_scc1 L_qa2')
        e('s_branch L_qa1')
        a.label('L_backb')
        e('s_cbranch_scc1 L_qb3')
        e('s_cmp_eq_u32 %s, 2' % sr(S_T2))
        e('s_cbranch_scc1 L_qb2')
        e('s_branch L_qb1')
        a.label('L_qlds')
        if smooth:
            e('s_cbranch_scc0 L_qm41')
        e('s_cmp_eq_u32 %s, 2' % sr(S_CNT))
        e('s_cbranch_scc1 L_qm2')
        v2 = []
        for name, rd, dm in [('qm3',) + QP[6], ('qm2',) + QP[10]] + ([('qm4',) + QP[2], ('qm1',) + QP[14]] if smooth else []):
            if name == 'qm4':
                a.label('L_qm41')
                e('s_cmp_eq_u32 %s, 1' % sr(S_CNT))
                e('s_cbranch_scc1 L_qm1')
            a.label('L_' + name)
            m0_ = a.mark()
            seed_pend(2)
            mf, gaps = body_tables(opt, 2)
            qvariant(gaps, rd, dm)
            emit_body(a, opt, mf, gaps, None, lo=0, hi=16)
            e('s_branch L_b2g1')
            v2.append((m0_, a.mark()))
        if smoothb:
            a.label('L_qn')
            e('s_cmp_eq_u32 %s, 13' % sr(S_CNT))
            e('s_cbranch_scc1 L_qn3')
            e('s_cmp_eq_u32 %s, 12' % sr(S_CNT))
            e('s_cbranch_scc1 L_qn4')
            for j in (2, 3, 4):
                a.label('L_qn%d' % j)
                m0_ = a.mark()
                seed_pend(2)
                mf, gaps = body_tables(opt, 2)
                q = epi_store(j, S_SRDO, stP, parked=True)
                place(gaps, q[:3], [1, 3, 11])
                emit_body(a, opt, mf, gaps, None, lo=0, hi=16)
                e('s_branch L_b2g1')
                v2.append((m0_, a.mark()))
        a.label('L_exit')
        e('s_cbranch_vccnz L_lastb')
        m_last = a.mark()
        stamp(4, 0)
        seed_pend(3)
        a.vmq = ['ql'] * 2 + ['n1'] * 8 + ['n2'] * (8 * (lead - 2))
        mf, gaps = body_tables(opt, 3, dma=not ab)
        if ab:
            kw = dma_ops(opt, 0, 'kw')
            if opt.get('spreadb', False):
                place(gaps, dma_ops(opt, 0, 'kv'), [1, 5, 19, 28, 43, 45, 55, 63, 75, 83, 85])
                place(gaps, kw[:5], [107, 111, 127, 143, 155])
            elif opt.get('nocatch', True):
                assert opt.get('strict', True)
                place(gaps, dma_ops(opt, 0, 'kv'), [1, 5, 19, 28, 43, 45, 55, 63, 75, 83, 85])
            else:
                place(gaps, dma_ops(opt, 0, 'kv'), [1, 5, 9, 13, 19, 21, 27, 35, 43, 51, 53])
                place(gaps, kw, opt.get('kwg', [55, 59, 75, 83, 99, 101, 107, 115, 123, 131, 133]))
        place(gaps, qaddr(QA, S_SW), [3, 7, 11, 15])
        for j in range(2):
            place(gaps, qread(lambda js: ar(A_Q + 16 * j + 4 * js, 4), QA, QHALF[j] * 4096), [32 * j + 16] * 4)
            if j == 1:
                gaps[47].append((8, 'WAITVM ql'))
            block(gaps, 32 * j + 29, prescale(j, A_Q + 16 * j, True))
        for j in (2, 3, 4):
            if opt.get('early', True):
                block(gaps, 32 * j + 17, ['v_accvgpr_mov_b32 %s, %s' % (ar(A_Q + 16 * j + x), ar(A_SP + 16 * (j - 2) + x)) for x in range(16)])
            else:
                block(gaps, 32 * j + 17, prescale(j, A_SP + 16 * (j - 2), True))
        for j in range(3):
            k = 48 + 32 * j + 17
            pk_ = park and j >= np_
            fill(gaps, epi_head(j, 0), k - 19, k - 1, 2)
            block(gaps, k, epi_pack(j))
            epi_spread(gaps, j, k, S_SRDO, stA, pk_, tight=(j == 2), nostore=(j == 1 and opt.get('late1', False)))
        fill(gaps, epi_head(3, 0), 142, 159, 2)
        emit_body(a, opt, mf, gaps, 'WAITVM n1', auto=True)
        if lead == 2:
            a.vmq = ['n2' if t == 'kv' else t for t in a.vmq]
        stamp(5, 0)
        stamp(7, 0, True)
        for x in (0, 1, 2):
            stamp(x, 1)
        stamp(6, 1, True)
        e('s_mov_b32 %s, 14' % sr(S_CNT))
        e('s_mov_b32 %s, 10' % sr(S_ENDV))
        e('s_mov_b64 vcc, -1')
        p3, p3n = epi_pack(3), epi_pack(3, False)
        max_phase(a, p3n[:24] + p3n[24:32] + p3[20:], 'b')
        stamp(3, 1)
        mf, gaps = body_tables(opt, 0, fresh=True, dma=not (ab and opt.get('spreadb', False)))
        if ab and opt.get('spreadb', False):
            place(gaps, kw[5:], [1, 3, 15, 31, 46, 46])
            place(gaps, dma_ops(opt, 0, 'kx'), [51, 55, 67, 79, 91, 95, 103, 114, 123, 139, 141])
        epi_spread(gaps, 3, -1, S_SRDO, stA, park and np_ <= 3)
        if opt.get('late1', False):
            place(gaps, epi_store(1, S_SRDO, stA), [0, 1, 16, 32, 46])
        fill(gaps, epi_head(4, 0), 22, 46, 2)
        block(gaps, 47, epi_pack(4))
        epi_spread(gaps, 4, 47, S_SRDO, stA, park)
        block(gaps, 115, ZERO4P)
        emit_body(a, opt, mf, gaps, 'WAITVM n2', auto=True)
        e('s_branch L_b1')
        m_last_end = a.mark()
        a.label('L_lastb')
        m_lastb = a.mark()
        stamp(4, 1)
        seed_pend(3)
        a.vmq = ['n2'] * 8
        a.drop = tuple(a.drop) + tuple(opt.get('droplast', ()))
        mf, gaps = body_tables(opt, 3, dma=False, kpre=False)
        for j in range(3):
            k = 48 + 32 * j + 17
            fill(gaps, epi_head(j, 1), k - 19, k - 1, 2)
            block(gaps, k, epi_pack(j))
            epi_spread(gaps, j, k, S_SRDO2, stB, False, tight=(j == 2))
        fill(gaps, epi_head(3, 1), 142, 159, 2)
        gaps[3].append((1, 's_waitcnt vmcnt(0)'))
        emit_body(a, opt, mf, gaps, [], auto=True)
        sb4 = (3 + 4) & 1
        sm = [t for g, t in softmax_ops(4, sb4) if 128 + W0 + g >= 160]
        p3 = epi_pack(3)
        F = []
        for t in sm:
            F.append((t, 0))
            if t.startswith('v_exp'):
                F.append((p3.pop(0), 0))
        F += [(t, 0) for t in p3]
        n4 = len(F)
        h4 = epi_head(4, 1)
        for x, t in enumerate(epi_write(3)):
            F += [(t, 0), (h4[x], 0)]
        F += [(h4[8], 0)] + [(t, 0) for t in epi_fetch(3)]
        merge(a, [(t, n4) for t in pv(4, sb4)], F)
        d4 = epi_direct(4, S_SRDO2, stB)
        for t in epi_store(3, S_SRDO2, stB) + d4:
            e(t)
        stamp(5, 1)
        stamp(7, 1, True)
        m_end = a.mark()
        I = a.ins
        B = lambda s: I[marks[s]:marks[s + 1]]
        seq = I[m_head:m_first_end] + (B(1) + B(2) if (lead == 2 or not opt.get('prog', True)) else []) + B(3)
        for lo, hi in variants:
            seq += I[lo:hi] + B(0) + B(1) + B(2) + B(3)
        bad.extend(check_hazards(seq, 'loop'))
        g1 = [k for k in range(marks[2], marks[3]) if I[k].text == 'L_b2g1:'][0]
        for lo, hi in v2:
            bad.extend(check_hazards(B(1) + I[lo:hi] + I[g1:marks[3]], 'mid'))
        bad.extend(check_hazards(B(2) + I[m_last:m_last_end] + B(1) + B(2) + I[m_lastb:m_end], 'edges'))
        print('body instrs: %d' % sum(1 for i in B(1) if i.kind != 'none'), file=sys.stderr)
        a.drop = ()
        if skip4:
            for i in a.ins[m_begin:]:
                i.text = re.sub(r'\bL_(\w+)', lambda m: m.group(0) + '_w3', i.text)

    if w3:
        e('s_cmp_eq_u32 %s, 3' % sr(S_W))
        e('s_cbranch_scc1 L_wave3')
    vmq0, pend0 = list(a.vmq), list(a.pend)
    main(False)
    if w3:
        e('s_branch L_slow')
        a.label('L_wave3')
        a.vmq, a.pend = list(vmq0), list(pend0)
        main(True)
    m_end = a.mark()
    a.label('L_slow')
    slow_path(a, opt)
    a.label('L_fin')
    if opt.get('dbg'):
        e('s_cmp_ge_u32 s2, 4')
        e('s_cbranch_scc1 L_end')
        e('s_cmp_lg_u32 %s, 0' % sr(S_W))
        e('s_cbranch_scc1 L_end')
        e('s_load_dwordx2 s[82:83], s[0:1], 32')
        e('s_waitcnt lgkmcnt(0)')
        vals = ['s_sub_u32 s80, s62, s76', 's_sub_u32 s80, s72, s64', 's_sub_u32 s80, s56, s54', 's_sub_u32 s80, s58, s64']
        for n, t in enumerate(vals):
            e(t)
            e('v_mov_b32 v%d, s80' % (252 + n))
        e('s_lshl_b32 s80, s2, 4')
        e('v_mov_b32 v31, s80')
        e('s_mov_b64 exec, 1')
        e('global_store_dwordx4 v31, v[252:255], s[82:83]')
    else:
        dump_stamps()
    if opt.get('trace'):
        e('s_lshl_b32 s80, s80, 1')
        e('s_add_u32 s80, s80, 131072')
        e('v_lshl_add_u32 v31, v0, 2, s80')
        e('global_store_dword v31, v29, s[84:85]')
    a.label('L_end')
    e('s_endpgm')

    I = a.ins
    sl = I[m_end:]
    bad += check_hazards(sl + sl, 'slow')
    for b in bad[:8]:
        print('HAZARD', b, file=sys.stderr)
    assert not bad or opt.get('nocheck')
    print('total %d' % len(I), file=sys.stderr)

    hdr = open('cdna_kernels/%s.s.ref' % NAME).read().split('\n')
    out = '\n'.join(hdr[:9]) + '\n'
    out += '; @launch grid=(256,1,1) block=(256,1,1) lds=%d\n' % LDS_BYTES
    out += DOC
    out += '.amdgcn_target "amdgcn-amd-amdhsa--gfx950"\n.text\n.globl %s_kernel\n.p2align 8\n.type %s_kernel,@function\n%s_kernel:\n' % (NAME, NAME, NAME)
    out += a.text()
    out += '''.section .rodata,"a"
.p2align 6
.amdhsa_kernel %s_kernel
  .amdhsa_next_free_vgpr 512
  .amdhsa_next_free_sgpr 102
  .amdhsa_accum_offset 256
  .amdhsa_group_segment_fixed_size 0
  .amdhsa_kernarg_size 48
  .amdhsa_user_sgpr_count 2
  .amdhsa_user_sgpr_kernarg_segment_ptr 1
  .amdhsa_system_sgpr_workgroup_id_x 1
.end_amdhsa_kernel
''' % NAME
    return out


if __name__ == '__main__':
    opt = {}
    outp = sys.argv[1]
    for kv in sys.argv[2:]:
        k, v = kv.split('=', 1)
        try:
            v = eval(v)
        except Exception:
            pass
        opt[k] = v
    open(outp, 'w').write(gen(opt))
```
